```python
import torch

def _softmax(x, axis=-1):
    return torch.softmax(x, dim=axis)
def _gelu(x):
    return torch.nn.functional.gelu(x, approximate="tanh")
def _silu(x):
    return torch.nn.functional.silu(x)
def _sigmoid(x):
    return torch.sigmoid(x)
def _layernorm(x, axis=-1, eps=1e-5):
    m = x.mean(dim=axis, keepdim=True)
    v = x.var(dim=axis, keepdim=True, unbiased=False)
    return (x - m) / torch.sqrt(v + eps)
def _scatter_add(tgt, idx, src, axis=0):
    return tgt.clone().index_add_(axis, idx, src)
def _segment_sum(src, seg, n):
    out = torch.zeros((n,) + src.shape[1:], dtype=src.dtype)
    return out.index_add_(0, seg, src)
def _pad(x, pw):
    flat = tuple(v for pair in reversed(pw) for v in pair)
    return torch.nn.functional.pad(x, flat)

kernel_name = 'recurrent_scan__mha_block_cached__swiglu_ffn__prompt'

def setup_inputs():

    _w = (lambda a: (lambda t: t.to(torch.bfloat16) if t.is_floating_point() else t)(torch.as_tensor(a)))
    def _A_setup():
        B, Sq, D = 1, 2048, 640
        H, Sk, Dh = 32, 2048, 192
        return {
            "x": _w((lambda *s: torch.randn(*s, dtype=torch.bfloat16) * 0.05)(B, Sq, D)),
            "k_cache": _w((lambda *s: torch.randn(*s, dtype=torch.bfloat16) * 0.8)(B, H, Sk, Dh)),
            "v_cache": _w((lambda *s: torch.randn(*s, dtype=torch.bfloat16) * 0.2)(B, H, Sk, Dh)),
            "wq": _w((lambda *s: torch.randn(*s, dtype=torch.bfloat16) * 0.8)(D, H * Dh) * (D ** -0.5)),
            "wo": _w((lambda *s: torch.randn(*s, dtype=torch.bfloat16) * 0.2)(H * Dh, D) * ((H * Dh) ** -0.5)),
        }
    _A_in = _A_setup()

    def _B_setup():
        B, S, D, F = 1, 2048, 640, 1536
        return {
            "x": _w((lambda *s: torch.randn(*s, dtype=torch.bfloat16) * 0.05)(B, S, D)),
            "w_gate": _w((lambda *s: torch.randn(*s, dtype=torch.bfloat16) * 0.1)(D, F)),
            "w_up": _w((lambda *s: torch.randn(*s, dtype=torch.bfloat16) * 0.1)(D, F)),
            "w_down": _w((lambda *s: torch.randn(*s, dtype=torch.bfloat16) * 0.1)(F, D)),
        }
    _B_in = _B_setup()

    return {
        "A_x": _A_in["x"],
        "A_k_cache": _A_in["k_cache"],
        "A_v_cache": _A_in["v_cache"],
        "A_wq": _A_in["wq"],
        "A_wo": _A_in["wo"],
        "B_x": _B_in["x"],
        "B_w_gate": _B_in["w_gate"],
        "B_w_up": _B_in["w_up"],
        "B_w_down": _B_in["w_down"],
    }

def reference(A_x, A_k_cache, A_v_cache, A_wq, A_wo, B_x, B_w_gate, B_w_up, B_w_down):
    def _A_ref(x, k_cache, v_cache, wq, wo):
        B, Sq, D = x.shape
        H, Dh = 32, 192
        q = (lambda x, *d: x.permute(*d))((x @ wq).reshape(B, Sq, H, Dh), 0, 2, 1, 3)
        scores = torch.einsum("bhqd,bhkd->bhqk", q, k_cache) * (Dh ** -0.5)
        p = _softmax(scores, axis=-1)
        o = torch.einsum("bhqk,bhkd->bhqd", p, v_cache)
        return (lambda x, *d: x.permute(*d))(o, 0, 2, 1, 3).reshape(B, Sq, H * Dh) @ wo

    def _B_ref(x, w_gate, w_up, w_down):
        g = _silu(x @ w_gate)
        u = x @ w_up
        return (g * u) @ w_down

    x = A_x
    xn = _layernorm(x, axis=-1)
    s = _A_ref(xn, A_k_cache, A_v_cache, A_wq, A_wo)
    g = _silu(_B_ref(xn, B_w_gate, B_w_up, B_w_down))
    return x + s * g
```

```python
import re, sys

REG_RE = re.compile(r'\b([vas])(?:\[(\d+):(\d+)\]|(\d+))')

def regs_of(tok):
    out = []
    for m in REG_RE.finditer(tok):
        c = m.group(1)
        if m.group(2) is not None:
            out += [(c, i) for i in range(int(m.group(2)), int(m.group(3)) + 1)]
        else:
            out.append((c, int(m.group(4))))
    t = tok.strip()
    if t == 'vcc': out += [('s', 'vcc')]
    if t == 'm0': out += [('s', 'm0')]
    if t == 'exec': out += [('s', 'exec')]
    return out

TRANS = ('v_exp_f32', 'v_log_f32', 'v_rcp_f32', 'v_rsq_f32', 'v_sqrt_f32', 'v_sin_f32', 'v_cos_f32')

class Ins:
    __slots__ = ('text', 'op', 'kind', 'rd', 'wr', 'meta', 'mA', 'mB', 'mC')
    def __init__(self, text, **meta):
        self.text = text; self.meta = meta
        t = text.split(';')[0].strip()
        parts = t.split(None, 1)
        self.op = parts[0] if parts else ''
        ops = [x.strip() for x in parts[1].split(',')] if len(parts) > 1 else []
        op = self.op
        self.rd = []; self.wr = []; self.mA = self.mB = self.mC = ()
        k = 'other'
        if op.endswith(':') or op.startswith('.') or op == '':
            k = 'label'
        elif op.startswith('v_mfma'):
            k = 'mfma'
            self.wr = regs_of(ops[0]); self.mA = regs_of(ops[1]); self.mB = regs_of(ops[2]); self.mC = regs_of(ops[3])
            self.rd = list(self.mA) + list(self.mB) + list(self.mC)
        elif op.startswith('ds_read') or op.startswith('ds_bpermute') or op.startswith('ds_swizzle'):
            k = 'ds'; self.wr = regs_of(ops[0]); self.rd = sum((regs_of(x) for x in ops[1:]), [])
        elif op.startswith('ds_'):
            k = 'ds'; self.rd = sum((regs_of(x) for x in ops), [])
        elif op.startswith('buffer_load') or op.startswith('global_load'):
            k = 'vm'
            if re.search(r'\blds\b', t) or '_lds_' in op:
                self.rd = sum((regs_of(x) for x in ops), []) + [('s', 'm0')]
                self.meta['dma'] = True
            else:
                self.wr = regs_of(ops[0]); self.rd = sum((regs_of(x) for x in ops[1:]), [])
        elif op.startswith('buffer_store') or op.startswith('global_store') or op.startswith('buffer_atomic') or op.startswith('global_atomic'):
            k = 'vm'; self.rd = sum((regs_of(x) for x in ops), [])
            if 'atomic' in op and re.search(r'\bsc0\b', t): self.wr = regs_of(ops[0])
            self.meta['store'] = True
            if op.startswith('buffer'): self.meta['sdata'] = regs_of(ops[0])
            else: self.meta['sdata'] = regs_of(ops[1])
        elif op.startswith('buffer_wbl2') or op.startswith('buffer_inv'):
            k = 'vm'
        elif op.startswith('s_load') or op.startswith('s_memtime') or op.startswith('s_memrealtime'):
            k = 'smem'; self.wr = regs_of(ops[0]); self.rd = sum((regs_of(x) for x in ops[1:]), [])
        elif op == 's_waitcnt': k = 'wait'
        elif op == 's_barrier': k = 'barrier'
        elif op == 's_nop': k = 'nop'
        elif op.startswith('s_cbranch') or op == 's_branch' or op == 's_endpgm' or op == 's_setprio' or op == 's_sleep':
            k = 'salu'
            if 'vcc' in op: self.rd = [('s', 'vcc')]
        elif op.startswith('s_cmp'):
            k = 'salu'; self.rd = sum((regs_of(x) for x in ops), [])
        elif op.startswith('s_'):
            k = 'salu'; self.wr = regs_of(ops[0]); self.rd = sum((regs_of(x) for x in ops[1:]), [])
            if 'saveexec' in op: self.wr += [('s', 'exec')]
        elif op.startswith('v_'):
            k = 'valu'
            if op.startswith('v_permlane') and 'swap' in op:
                self.wr = regs_of(ops[0]) + regs_of(ops[1]); self.rd = list(self.wr)
            elif op.startswith('v_cmp'):
                self.wr = regs_of(ops[0]); self.rd = sum((regs_of(x) for x in ops[1:]), [])
            elif op.startswith('v_add_co') or op.startswith('v_addc_co') or op.startswith('v_sub_co'):
                self.wr = regs_of(ops[0]) + regs_of(ops[1]); self.rd = sum((regs_of(x) for x in ops[2:]), [])
            else:
                self.wr = regs_of(ops[0]); self.rd = sum((regs_of(x) for x in ops[1:]), [])
                if op.startswith('v_fmac') or op.startswith('v_dot2c') or op.startswith('v_writelane'): self.rd += self.wr
        self.kind = k
    def states(self):
        if self.kind == 'label': return 0
        if self.kind == 'nop': return int(self.text.split()[1], 0) + 1
        return 1

class Wait:
    def __init__(self, vm=None, lgkm=None):
        self.vm = vm; self.lgkm = lgkm; self.vmv = None; self.lgv = None
    @property
    def text(self):
        s = []
        if self.vm is not None: s.append(f"vmcnt({self.vmv})")
        if self.lgkm is not None: s.append(f"lgkmcnt({self.lgv})")
        return "s_waitcnt " + " ".join(s)

class Loop:
    def __init__(self, label, trips, body): self.label = label; self.trips = trips; self.body = body

class Prog:
    def __init__(self): self.items = []; self.stack = [self.items]
    def __call__(self, text, **meta):
        for ln in text.split('\n'):
            if ln.strip(): self.stack[-1].append(Ins(ln.strip(), **meta))
    def add(self, x):
        if isinstance(x, str): self(x)
        elif isinstance(x, (list, tuple)):
            for y in x: self.add(y)
        else: self.stack[-1].append(x)
    def wait(self, vm=None, lgkm=None): self.stack[-1].append(Wait(vm, lgkm))
    def loop_begin(self, label, trips):
        lp = Loop(label, trips, []); self.stack[-1].append(lp); self.stack.append(lp.body)
    def loop_end(self): self.stack.pop()

    def expand(self, items=None, maxtrips=3):
        out = []
        for x in (self.items if items is None else items):
            if isinstance(x, Loop):
                for it in range(x.trips):
                    out += [(y, it) for (y, _) in self.expand(x.body)]
            else: out.append((x, 0))
        return out

    def resolve(self):
        tr = self.expand()
        vmq = []; lgq = []
        def dyn(tag, it):
            if tag is None: return None
            name, idx, stride = (tuple(tag) + (0,))[:3]
            return (name, idx + it * stride)
        for x, it in tr:
            if isinstance(x, Wait):
                for cls, q, mx in (('vm', vmq, 63), ('lgkm', lgq, 15)):
                    tg = getattr(x, cls)
                    if tg is None: continue
                    if tg == 'all': n = 0
                    else:
                        tags = [dyn(t, it) for t in (tg if isinstance(tg, list) else [tg])]
                        last = max((i for i, t in enumerate(q) if t in tags), default=-1)
                        n = len(q) - 1 - last
                    n = min(n, mx)
                    attr = 'vmv' if cls == 'vm' else 'lgv'
                    cur = getattr(x, attr)
                    setattr(x, attr, n if cur is None else min(cur, n))
            elif x.kind == 'vm': vmq.append(dyn(x.meta.get('tag'), it))
            elif x.kind == 'ds': lgq.append(dyn(x.meta.get('tag'), it))
            elif x.kind == 'smem': lgq.append(None); lgq.append(None)

    def emit(self, items=None):
        out = []
        for x in (self.items if items is None else items):
            if isinstance(x, Loop):
                out += self.emit(x.body)
            else: out.append(x.text)
        return out

    def check(self, name=''):
        tr = self.expand()
        errs = []
        def err(i, msg):
            x = tr[i][0]
            errs.append(f"[{name}] #{i} it{tr[i][1]} '{x.text}': {msg}")
        vmq = []; lgq = []
        pend = {}
        slot_dma = {}
        slot_rd = {}
        hist = []
        pos = 0
        lastw = {}
        lastmC = {}
        laststore = {}
        def dsl(m, it):
            s = m.get('slot')
            if s is None: return None
            return s
        for i, (x, it) in enumerate(tr):
            if isinstance(x, Wait) or x.kind == 'wait':
                t = x.text
                m = re.search(r'vmcnt\((\d+)\)', t)
                if m:
                    n = int(m.group(1))
                    while len(vmq) > n:
                        e = vmq.pop(0); e['done'] = True
                        for r in e['wr']:
                            if pend.get(r) is e: del pend[r]
                m = re.search(r'lgkmcnt\((\d+)\)', t)
                if m:
                    n = int(m.group(1))
                    if n > 0 and any(e.get('smem') for e in lgq): err(i, 'counted lgkm with smem outstanding')
                    while len(lgq) > n:
                        e = lgq.pop(0); e['done'] = True
                        for r in e['wr']:
                            if pend.get(r) is e: del pend[r]
                pos += 1
                continue
            if x.kind == 'label': continue
            if x.kind == 'barrier':
                for s, l in slot_dma.items():
                    for e in l:
                        if e.get('done'): e['bar'] = True
                for s, l in slot_rd.items():
                    for e in l:
                        if e.get('done'): e['bar'] = True
                pos += 1; continue
            for r in x.rd + x.wr:
                if r in pend: err(i, f"touches pending load reg {r} ('{pend[r]['ins'].text}')")
            def need(reg, cls, n, why):
                p = lastw.get((reg, cls))
                if p is not None and pos - p - 1 < n: err(i, f"hazard {why} on {reg}: {pos-p-1} < {n}")
            if x.kind == 'mfma':
                for r in x.rd: need(r, 'valu', 2, 'valu->mfma')
                for r in list(x.mA) + list(x.mB): need(r, 'mfma', 8, 'mfma D->mfma AB')
                for r in x.mC:
                    p = lastw.get((r, 'mfma'))
                    if p is not None and lastw.get((r, 'mfmaD')) != tuple(x.mC) and pos - p - 1 < 6: err(i, f"mfma D->C partial overlap {r}")
                need(('s', 'exec'), 'valu', 4, 'exec->mfma')
            if x.kind in ('valu', 'vm', 'ds'):
                for r in x.rd: need(r, 'mfma', 8, 'mfma D->read')
                for r in x.wr: need(r, 'mfma', 8, 'mfma D->write')
            if x.kind == 'valu':
                for r in x.wr:
                    p = lastmC.get(r)
                    if p is not None and pos - p - 1 < 3: err(i, f"WAR mfma C {r}")
                    p = laststore.get(r)
                    if p is not None and pos - p - 1 < 2: err(i, f"WAR store data {r}")
                if not x.op.startswith(TRANS):
                    for r in x.rd: need(r, 'trans', 1, 'trans->valu')
                if x.op.startswith('v_permlane'):
                    for r in x.rd: need(r, 'valu', 2, 'valu->permlane')
                if x.op.startswith('v_readfirstlane') or x.op.startswith('v_readlane'):
                    for r in x.rd: need(r, 'valu', 1, 'valu->readlane')
                if 'dpp' in x.text or 'row_' in x.text or 'quad_perm' in x.text:
                    for r in x.rd: need(r, 'valu', 2, 'valu->dpp')
                for r in x.rd:
                    if r[0] == 's': need(r, 'valu', 2, 'valu sgpr->valu')
                if x.op.startswith('v_cndmask') and 'vcc' in x.text: need(('s', 'vcc'), 'valu', 2, 'vcc->cndmask')
            if x.kind in ('vm', 'ds'):
                for r in x.rd: need(r, 'trans', 1, 'trans->mem')
                for r in x.wr:
                    p = laststore.get(r)
                    if p is not None and pos - p - 1 < 1: err(i, f"WAR store data {r}")
            if x.kind == 'vm':
                for r in x.rd:
                    if r[0] == 's': need(r, 'valu', 5, 'valu sgpr->vmem')
                if x.meta.get('dma'): need(('s', 'm0'), 'salu', 1, 'm0->dma')
            if x.kind == 'salu' and x.op.startswith('s_cbranch') and 'vcc' in x.op:
                need(('s', 'vcc'), 'valu', 5, 'vcc->cbranch (conservative)')
            sl = x.meta.get('slot')
            if sl is not None:
                sls = sl if isinstance(sl, list) else [sl]
                isw = x.meta.get('dma') or (x.kind == 'ds' and not x.wr)
                priv = x.meta.get('priv')
                for s in sls:
                    if isw:
                        for e in slot_rd.get(s, []):
                            if not (e.get('bar') or (priv and e.get('done'))): err(i, f"LDS WAR on slot {s}: read '{e['ins'].text}' not fenced")
                        slot_rd[s] = []
                        if x.meta.get('gen') is not None:
                            pass
                    else:
                        for e in slot_dma.get(s, []):
                            if not (e.get('bar') or (priv and e.get('done'))): err(i, f"LDS RAW on slot {s}: write '{e['ins'].text}' not fenced")
                        g = x.meta.get('gen')
                        if g is not None:
                            gd = g[0] + it * g[1]
                            gens = set(e.get('gen') for e in slot_dma.get(s, []))
                            if gens != {gd}: err(i, f"LDS generation mismatch slot {s}: want {gd} have {gens}")
            e = None
            if x.kind == 'vm':
                e = dict(wr=list(x.wr), ins=x); vmq.append(e)
                if len(vmq) > 63: err(i, 'vmcnt overflow (>63 outstanding)')
                if x.meta.get('store') and len(x.meta['sdata']) >= 3:
                    for r in x.meta['sdata']: laststore[r] = pos
            elif x.kind == 'ds':
                e = dict(wr=list(x.wr), ins=x); lgq.append(e)
            elif x.kind == 'smem':
                e = dict(wr=list(x.wr), ins=x, smem=True); lgq.append(e)
            if e is not None:
                for r in x.wr: pend[r] = e
                if sl is not None:
                    for s in sls:
                        if isw:
                            g = x.meta.get('gen'); gd = None if g is None else g[0] + it * g[1]
                            e['gen'] = gd
                            old = [o for o in slot_dma.get(s, []) if o.get('gen') == gd]
                            slot_dma[s] = old + [e]
                        else: slot_rd.setdefault(s, []).append(e)
            if x.kind == 'mfma':
                for r in x.wr: lastw[(r, 'mfma')] = pos; lastw[(r, 'mfmaD')] = tuple(x.wr); lastw.pop((r, 'valu'), None)
                for r in x.mC: lastmC[r] = pos
            elif x.kind == 'valu':
                for r in x.wr:
                    lastw[(r, 'valu')] = pos; lastw.pop((r, 'mfma'), None)
                    if x.op.startswith(TRANS): lastw[(r, 'trans')] = pos
                    else: lastw.pop((r, 'trans'), None)
            elif x.kind == 'salu':
                for r in x.wr: lastw[(r, 'salu')] = pos; lastw.pop((r, 'valu'), None)
            pos += x.states()
        seen = set(); n = 0
        for e in errs:
            key = e.split("'")[1] + e.split(':')[-1]
            if key in seen: continue
            seen.add(key); sys.stderr.write(e + '\n'); n += 1
            if n > 40: break
        return len(errs) == 0

class Gaps:
    def __init__(self, mf):
        self.M = mf; n = len(mf); self.n = n
        self.S = [[] for _ in range(n)]; self.N = [[] for _ in range(n)]; self.V = [[] for _ in range(n)]
        self.cap = [2] * n
    def mem(self, g, ins):
        g %= self.n
        assert not self.N[g], f"gap {g} already has mem {self.N[g][0].text}"
        assert self.cap[g] >= 1
        self.N[g].append(ins); self.cap[g] -= 1
    def mem_from(self, g, ins):
        while self.N[g % self.n] or self.cap[g % self.n] < 1: g += 1
        self.mem(g, ins); return g
    def sc(self, g, ins): self.S[g % self.n].append(ins)
    def sc_free(self, g):
        return not self.S[g % self.n]
    def valu(self, g, ins, cost=1):
        g %= self.n
        assert self.cap[g] >= cost
        self.V[g].append(ins); self.cap[g] -= cost
    def items(self, lo=0, hi=None):
        out = []
        for i in range(lo, self.n if hi is None else hi):
            if self.M[i] is not None: out.append(self.M[i])
            out += self.S[i] + self.N[i] + self.V[i]
        return out
```

```python
import sys, struct
from asmlib import *

OPT = dict(stamp=0, look=5, barg=80)
for a in sys.argv[1:]:
    k, v = a.split('='); OPT[k] = int(v, 0)

WS_XN = 0x0;        SZ_XN = 2048 * 640 * 2
WS_WP = 0x400000;   SZ_WP = 7680 * 640 * 2
WS_OF = 0x1000000;  SZ_OF = 2048 * 7680 * 2
def f32(x): return "0x%08x" % struct.unpack('<I', struct.pack('<f', x))[0]
MF = "v_mfma_f32_16x16x32_bf16"
def vr(b, n=4): return f"v[{b}:{b+n-1}]"
def ar(b, n=4): return f"a[{b}:{b+n-1}]"

def srd(p, d, lo, hi, size):
    if d != lo: p(f"s_mov_b32 s{d}, s{lo}")
    if d + 1 != hi: p(f"s_mov_b32 s{d+1}, s{hi}")
    p(f"s_mov_b32 s{d+2}, {size}")
    p(f"s_mov_b32 s{d+3}, 0x20000")

def xlane(p, op, a, t):
    p(f"v_mov_b32 v{t}, v{a}"); p("s_nop 1")
    p(f"v_permlane32_swap_b32 v{a}, v{t}"); p("s_nop 1")
    p(f"{op} v{a}, v{a}, v{t}")
    p(f"v_mov_b32 v{t}, v{a}"); p("s_nop 1")
    p(f"v_permlane16_swap_b32 v{a}, v{t}"); p("s_nop 1")
    p(f"{op} v{a}, v{a}, v{t}")

def stamp(p, idx, sreg=90):
    if OPT['stamp']:
        p(f"s_memrealtime s[{sreg+0}:{sreg+1}]"); p("s_waitcnt lgkmcnt(0)")
        p(f"s_mov_b32 s{70+idx}, s{sreg}")
def stamp_out(p, n, lab):
    if not OPT['stamp']: return
    p(f"s_cmp_ge_u32 s2, 4"); p(f"s_cbranch_scc1 {lab}")
    p("s_load_dwordx2 s[92:93], s[0:1], 80"); p("s_waitcnt lgkmcnt(0)")
    p("s_mov_b32 s94, 256"); p("s_mov_b32 s95, 0x20000")
    p("s_lshl_b32 s96, s2, 6")
    p("v_mov_b32 v1, s96")
    p("v_cmp_eq_u32 vcc, 0, v0"); p("s_and_saveexec_b64 s[98:99], vcc"); p(f"s_cbranch_execz {lab}")
    for i in range(n):
        p(f"v_mov_b32 v2, s{70+i}")
        p(f"buffer_store_dword v2, v1, s[92:95], 0 offen offset:{4*i}")
        p("s_waitcnt vmcnt(0)")
    p(f"{lab}:")

def k0():
    p = Prog()
    p("s_cmp_ge_u32 s2, 368"); p("s_cbranch_scc1 K0_end")
    stamp(p, 0)
    p("s_load_dwordx2 s[4:5], s[0:1], 0")
    p("s_load_dwordx2 s[6:7], s[0:1], 32")
    p("s_load_dwordx2 s[8:9], s[0:1], 64")
    p("s_load_dwordx2 s[10:11], s[0:1], 88")
    p("v_lshrrev_b32 v1, 6, v0"); p("v_and_b32 v2, 63, v0")
    p("v_readfirstlane_b32 s3, v1")
    p("v_and_b32 v3, 15, v2"); p("v_lshrrev_b32 v4, 4, v2")
    p("v_lshlrev_b32 v5, 4, v2")
    p("s_waitcnt lgkmcnt(0)")
    p("s_cmp_ge_u32 s2, 128"); p("s_cbranch_scc1 K0_pack")
    srd(p, 12, 4, 5, SZ_XN)
    srd(p, 16, 10, 11, SZ_XN)
    p("v_mul_u32_u24 v6, 1280, v3"); p("v_lshl_add_u32 v6, v4, 4, v6")
    p("s_mul_i32 s20, s2, 20480"); p("s_mul_i32 s21, s3, 320"); p("s_add_u32 s20, s20, s21")
    for j in range(5):
        p(f"buffer_load_dwordx4 {vr(16+4*j)}, v6, s[12:15], s20 offen offset:{64*j}")
    p("v_lshlrev_b32 v7, 4, v3")
    p("s_lshl_b32 s21, s3, 2"); p("v_add_u32 v8, s21, v7")
    p("s_waitcnt vmcnt(0)")
    U = 40
    for i in range(20):
        p(f"v_lshlrev_b32 v{U+2*i}, 16, v{16+i}")
        p(f"v_and_b32 v{U+2*i+1}, 0xffff0000, v{16+i}")
    p(f"v_add_f32 v9, v{U}, v{U+1}"); p(f"v_add_f32 v10, v{U+2}, v{U+3}")
    for i in range(4, 40, 2):
        p(f"v_add_f32 v9, v9, v{U+i}"); p(f"v_add_f32 v10, v10, v{U+i+1}")
    p("v_add_f32 v9, v9, v10")
    xlane(p, "v_add_f32", 9, 10)
    p("ds_write_b32 v8, v9"); p("s_waitcnt lgkmcnt(0)"); p("s_barrier")
    p("ds_read_b128 v[12:15], v7"); p("s_waitcnt lgkmcnt(0)")
    p("v_add_f32 v12, v12, v13"); p("v_add_f32 v14, v14, v15"); p("v_add_f32 v12, v12, v14")
    p(f"v_mul_f32 v11, {f32(1/640)}, v12")
    p("v_mov_b32 v9, 0"); p("v_mov_b32 v10, 0")
    for i in range(0, 40, 2):
        p(f"v_sub_f32 v12, v{U+i}, v11"); p(f"v_sub_f32 v13, v{U+i+1}, v11")
        p("v_fmac_f32 v9, v12, v12"); p("v_fmac_f32 v10, v13, v13")
    p("v_add_f32 v9, v9, v10")
    xlane(p, "v_add_f32", 9, 10)
    p("ds_write_b32 v8, v9 offset:256"); p("s_waitcnt lgkmcnt(0)"); p("s_barrier")
    p("ds_read_b128 v[12:15], v7 offset:256"); p("s_waitcnt lgkmcnt(0)")
    p("v_add_f32 v12, v12, v13"); p("v_add_f32 v14, v14, v15"); p("v_add_f32 v12, v12, v14")
    p(f"v_mul_f32 v12, {f32(1/640)}, v12")
    p("v_cvt_pk_bf16_f32 v13, v11, v12")
    p("v_lshlrev_b32 v11, 16, v13")
    p("v_and_b32 v12, 0xffff0000, v13")
    p(f"v_add_f32 v12, {f32(1e-5)}, v12")
    p("v_cvt_pk_bf16_f32 v12, v12, v12"); p("v_lshlrev_b32 v12, 16, v12")
    p("v_sqrt_f32 v12, v12"); p("s_nop 0")
    p("v_cvt_pk_bf16_f32 v12, v12, v12"); p("v_lshlrev_b32 v12, 16, v12")
    p("v_rcp_f32 v12, v12"); p("s_nop 0")
    for i in range(20):
        p(f"v_sub_f32 v13, v{U+2*i}, v11"); p(f"v_sub_f32 v14, v{U+2*i+1}, v11")
        p("v_cvt_pk_bf16_f32 v13, v13, v14")
        p("v_and_b32 v14, 0xffff0000, v13"); p("v_lshlrev_b32 v13, 16, v13")
        p("v_mul_f32 v13, v13, v12"); p("v_mul_f32 v14, v14, v12")
        p(f"v_cvt_pk_bf16_f32 v{16+i}, v13, v14")
    p("s_lshr_b32 s20, s2, 2"); p("s_mul_i32 s20, s20, 81920")
    p("s_and_b32 s21, s2, 3"); p("s_lshl_b32 s21, s21, 10"); p("s_add_u32 s20, s20, s21")
    p("s_mul_i32 s21, s3, 20480"); p("s_add_u32 s20, s20, s21")
    for j in range(5):
        p(f"buffer_store_dwordx4 {vr(16+4*j)}, v5, s[16:19], s20 offen")
        p("s_add_u32 s20, s20, 4096")
    p("s_waitcnt vmcnt(0)")
    stamp(p, 1); stamp_out(p, 2, "K0_so")
    p("s_endpgm")
    p("K0_pack:")
    p("s_sub_u32 s20, s2, 128")
    p("s_cmp_lt_u32 s20, 192")
    p("s_cselect_b32 s12, s6, s8"); p("s_cselect_b32 s13, s7, s9")
    p(f"s_mov_b32 s22, {6144*1280}"); p(f"s_mov_b32 s23, {1536*1280}")
    p("s_cselect_b32 s14, s22, s23")
    p("s_cselect_b32 s21, 0, 192")
    p("s_mov_b32 s15, 0x20000")
    p("s_sub_u32 s21, s20, s21"); p("s_mul_i32 s21, s21, 40960")
    p(f"s_add_u32 s16, s10, {WS_WP}"); p("s_addc_u32 s17, s11, 0")
    p(f"s_mov_b32 s18, {SZ_WP}"); p("s_mov_b32 s19, 0x20000")
    p("s_mul_i32 s22, s3, 10240")
    p("s_add_u32 s21, s21, s22")
    for j in range(10):
        p(f"s_add_u32 m0, s22, {1024*j}")
        p(f"s_add_u32 s23, s21, {1024*j}")
        p("buffer_load_dwordx4 v5, s[12:15], s23 offen lds")
    p("v_lshrrev_b32 v6, 2, v2"); p("v_mul_u32_u24 v6, 1280, v6")
    p("v_and_b32 v7, 3, v2"); p("v_lshl_add_u32 v6, v7, 3, v6")
    p("s_mul_i32 s23, s3, 320"); p("v_add_u32 v6, s23, v6")
    p("s_waitcnt vmcnt(0)"); p("s_barrier")
    for t in range(10):
        p(f"ds_read_b64_tr_b16 {vr(16+4*t,2)}, v6 offset:{32*t}")
        p(f"ds_read_b64_tr_b16 {vr(18+4*t,2)}, v6 offset:{32*t+16*1280}")
        if t == 4: p("s_waitcnt lgkmcnt(0)")
    p("s_waitcnt lgkmcnt(0)")
    p("s_mul_i32 s22, s3, 480"); p("s_add_u32 s22, s22, s20"); p("s_mul_i32 s22, s22, 5120")
    for t in range(10):
        p(f"s_add_u32 s23, s22, {(t//5)*240*5120 + (t%5)*1024}")
        p(f"buffer_store_dwordx4 {vr(16+4*t)}, v5, s[16:19], s23 offen")
    p("s_waitcnt vmcnt(0)")
    p("K0_end:")
    p("s_endpgm")
    return p, p

A_STAGE = 36864
K_RING = 114688; V_RING = 65536; SLOT = 12288
QSCALE = 1.4426950408889634 / (192 ** 0.5)
vLANE16 = 3; vK0 = 4; vK1 = 5; vV = 6; vDK = 10; vDV = 11; vWQ = 12; vGU = 13; vAQ = 16
vT = 28
QACC = 64; QF = 64; SR = 160; PR = 192; MR = 224; LR = 240; MXI = 244
XB = 96; RING = 192
sW = 28; sH = 29; sKb = 30; sVb = 31; sKo = 32; sVo = 33; sCnt = 34; sPass = 35; sWQm = 36; sGUm = 37; sT = 40

def kv_dma(kind, tile, slot, soff, stride=0):
    out = []
    for blk in range(3):
        base = sKb if kind == 'K' else sVb
        m = Ins(f"s_add_u32 m0, s{base}, {slot*SLOT + blk*4096 - blk*128}")
        d = Ins(f"buffer_load_dwordx4 v{vDK if kind=='K' else vDV}, s[{4 if kind=='K' else 8}:{7 if kind=='K' else 11}], s{soff} offen offset:{blk*128} lds",
                tag=(kind, tile, stride), slot=(kind, slot), gen=(tile, stride))
        out.append((m, d))
    return out

def kfrag_read(f, rs, tile, stride=0):
    kt, ks = divmod(f, 6); slot = tile % 4
    return [Ins(f"ds_read_b128 {ar(RING+4*rs)}, v{vK0 + (ks&1)} offset:{slot*SLOT + (ks>>1)*4096 + kt*2048}",
                tag=('kf', tile*12+f, stride*12), slot=('K', slot), gen=(tile, stride))]
def vfrag_read(dt, rs, tile, stride=0):
    slot = tile % 4
    return [Ins(f"ds_read_b64_tr_b16 {ar(RING+4*rs+2*rd,2)}, v{vV + (dt&3)} offset:{slot*SLOT + (dt>>2)*4096 + rd*2048}",
                tag=('vf', tile*12+dt, stride*12), slot=('V', slot), gen=(tile, stride)) for rd in range(2)]

def qk_mfmas(czero=False):
    M = []
    for kt in range(2):
        for ks in range(6):
            f = kt*6+ks
            for qt in range(4):
                s = SR + (kt*4+qt)*4
                c = vr(s) if ks else ("0" if czero else vr(MR+4*qt))
                M.append(Ins(f"{MF} {vr(s)}, {ar(RING+4*(f%8))}, {vr(QF+(ks*4+qt)*4)}, {c}"))
    return M
def pv_mfmas(pb, czero=False):
    M = []
    for dt in range(12):
        for qt in range(4):
            o = (dt*4+qt)*4
            M.append(Ins(f"{MF} {ar(o)}, {ar(RING+4*((12+dt)%8))}, {vr(PR+16*pb+4*qt)}, {'0' if czero else ar(o)}"))
    return M

def softmax_items(pb):
    it = []
    seq = [(kt, qt, r) for kt in range(2) for qt in range(4) for r in range(4)]
    def reg(e): return SR + (e[0]*4+e[1])*4 + e[2]
    def post(e):
        o = [(1, f"v_add_f32 v{LR+e[1]}, v{LR+e[1]}, v{reg(e)}", e[0], e[1])]
        if e[2] & 1: o.append((1, f"v_cvt_pk_bf16_f32 v{PR+16*pb+4*e[1]+2*e[0]+(e[2]>>1)}, v{reg(e)-1}, v{reg(e)}", e[0], e[1]))
        return o
    for i, e in enumerate(seq):
        it.append((2, f"v_exp_f32 v{reg(e)}, v{reg(e)}", e[0], e[1]))
        if i >= 2: it += post(seq[i-2])
    it += post(seq[-2]) + post(seq[-1])
    return it

def plan_step():
    LOOK = OPT['look']; BARG = OPT['barg']
    n = 96
    mem = {}
    for dt in range(12):
        g = 4*(12+dt-LOOK)
        mem[g] = ('v', dt, 0); mem[g+1] = ('v', dt, 1)
    assert 4*(23-LOOK)+1 < BARG-4
    g_next = BARG+1
    for f in range(12):
        g = 96 + 4*(f-LOOK)
        g = max(g, g_next)
        if f + 16 < 24: g = max(g, 4*(f+16)+4)
        while (g % n) in mem: g += 1
        mem[g % n] = ('k', f, g >= n)
        g_next = g+2
    g = BARG+4
    for i in range(6):
        while (g % n) in mem or ((g-1) % n) in (BARG, BARG-1): g += 1
        mem[g % n] = ('dma', i, g >= n)
        g += 5
    cap = [2 - (1 if i in mem else 0) for i in range(n)]
    items = softmax_items(0)
    tot = sum(x[0] for x in items); g0 = 27; span = 84
    pos = [None]*len(items); acc = 0; g = g0
    pend = list(range(len(items)))
    while pend:
        tgt = g0 + int(acc*span/tot)
        g = max(g, tgt)
        placed = False
        for j in range(min(2, len(pend))):
            c, t, kt, qt = items[pend[j]]
            if j > 0 and not (c == 1 and items[pend[0]][0] == 2): continue
            if c <= cap[g % n] and g >= 24*kt + 20 + qt + 7:
                pos[pend[j]] = g; cap[g % n] -= c; acc += c; pend.pop(j); placed = True
                assert g < 96 + 24*kt + qt - 1, (g, t)
                break
        if not placed: g += 1
    return dict(mem=mem, vpos=pos)

PLAN = None
def attn_step(i, stride, first=False, last=False, ndma=True, nk2=True):
    BARG = OPT['barg']
    M = ([None]*48 if last else qk_mfmas()) + pv_mfmas(i % 2, czero=first)
    G = Gaps(M)
    mem = PLAN['mem']
    for g, m in sorted(mem.items()):
        if m[0] == 'v':
            G.mem(g, vfrag_read(m[1], (12+m[1]) % 8, i, stride)[m[2]])
        elif m[0] == 'k':
            tile = i+1 if m[2] else i+2
            if tile > 63 - 0 and stride == 0: continue
            G.mem(g, kfrag_read(m[1], m[1] % 8, tile, stride)[0])
        else:
            ep = i if m[2] else i+1
            kind = 'K' if m[1] < 3 else 'V'
            tile = ep+4 if kind == 'K' else ep+3
            if stride == 0 and tile > 63: continue
            mi, d = kv_dma(kind, tile, tile % 4, sKo if kind == 'K' else sVo, stride)[m[1] % 3]
            G.sc(g-1, mi) if g > 0 else G.sc(g, mi)
            G.mem(g, d)
            if m[1] % 3 == 2: G.sc(g+1, Ins(f"s_add_u32 s{sKo if kind=='K' else sVo}, s{sKo if kind=='K' else sVo}, {SLOT}"))
    for f in range(0, 24, 2):
        g = 4*f - 1
        if f < 12:
            if f == 0:
                if not (stride == 0 and i+2 > 63): G.sc(95, Wait(lgkm=[('kf', (i+2)*12+0, stride*12), ('kf', (i+2)*12+1, stride*12)]))
            elif not last: G.sc(g, Wait(lgkm=[('kf', (i+1)*12+f+1, stride*12)]))
        elif g < BARG-1:
            G.sc(g, Wait(lgkm=[('vf', i*12+f-12+1, stride*12)]))
    need = []
    if not (stride == 0 and i+2 > 63): need.append(('K', i+2, stride))
    if not (stride == 0 and i+1 > 63): need.append(('V', i+1, stride))
    if need:
        G.sc(BARG-1, Wait(vm=need, lgkm='all')); G.sc(BARG, Ins("s_barrier"))
    else:
        G.sc(BARG-1, Wait(lgkm='all'))
    for (c, t, kt, qt), g in zip(softmax_items(i % 2), PLAN['vpos']):
        if g >= 96: G.valu(g-96, Ins(t), c)
    if not last:
        for (c, t, kt, qt), g in zip(softmax_items((i+1) % 2), PLAN['vpos']):
            if g < 96: G.valu(g, Ins(t), c)
    return G

def k1():
    global PLAN
    PLAN = plan_step()
    p = Prog()
    p("s_cmp_ge_u32 s2, 256"); p("s_cbranch_scc1 K1_end")
    stamp(p, 0)
    p("s_load_dwordx4 s[44:47], s[0:1], 8")
    p("s_load_dwordx2 s[48:49], s[0:1], 24")
    p("s_load_dwordx4 s[52:55], s[0:1], 48")
    p("s_load_dwordx2 s[50:51], s[0:1], 88")
    p("v_lshrrev_b32 v1, 6, v0"); p("v_and_b32 v2, 63, v0")
    p(f"v_readfirstlane_b32 s{sW}, v1")
    p(f"s_and_b32 s{sH}, s2, 7"); p(f"s_lshl_b32 s{sH}, s{sH}, 2"); p(f"s_bfe_u32 s{sT}, s2, 0x20003"); p(f"s_add_u32 s{sH}, s{sH}, s{sT}")
    p(f"s_lshr_b32 s{sT+1}, s2, 5"); p(f"s_lshl_b32 s{sT+1}, s{sT+1}, 2"); p(f"s_add_u32 s{sT+1}, s{sT+1}, s{sW}")
    p(f"v_lshlrev_b32 v{vLANE16}, 4, v2")
    t = vT
    p(f"v_lshrrev_b32 v{t}, 3, v2")
    p(f"v_and_b32 v{t+1}, 7, v2")
    p(f"v_bfe_u32 v{t+2}, v2, 4, 2")
    p(f"v_lshlrev_b32 v{t+3}, 1, v{t+2}")
    p(f"v_xor_b32 v{t+3}, v{t+3}, v{t+1}")
    p(f"v_lshlrev_b32 v{t+3}, 4, v{t+3}")
    p(f"v_lshrrev_b32 v{t+4}, 2, v{t}"); p(f"v_lshlrev_b32 v{t+4}, 3, v{t+4}")
    p(f"v_and_b32 v{t+5}, 3, v{t}"); p(f"v_add_u32 v{t+4}, v{t+4}, v{t+5}")
    p(f"s_lshr_b32 s{sT+2}, s{sW}, 1"); p(f"s_lshl_b32 s{sT+2}, s{sT+2}, 5")
    p(f"s_and_b32 s{sT+3}, s{sW}, 1"); p(f"s_lshl_b32 s{sT+3}, s{sT+3}, 2"); p(f"s_add_u32 s{sT+2}, s{sT+2}, s{sT+3}")
    p(f"v_add_u32 v{t+4}, s{sT+2}, v{t+4}")
    p(f"v_mul_u32_u24 v{t+4}, 12288, v{t+4}"); p(f"v_add_u32 v{vWQ}, v{t+4}, v{t+3}")
    p(f"s_lshl_b32 s{sT+2}, s{sW}, 3"); p(f"v_add_u32 v{t+4}, s{sT+2}, v{t}")
    p(f"v_mul_u32_u24 v{t+5}, 384, v{t+4}"); p(f"v_add_u32 v{vDV}, v{t+5}, v{t+3}")
    p(f"v_bfe_u32 v{t+6}, v{t+4}, 1, 3"); p(f"v_xor_b32 v{t+6}, v{t+6}, v{t+1}")
    p(f"v_lshl_add_u32 v{vDK}, v{t+6}, 4, v{t+5}")
    p(f"s_and_b32 s{sT+3}, s{sW}, 1"); p(f"s_lshl_b32 s{sT+3}, s{sT+3}, 5")
    for j in range(3):
        p(f"v_add_u32 v{t+4}, {64*j}, v2")
        p(f"v_mul_u32_u24 v{t+5}, 171, v{t+4}"); p(f"v_lshrrev_b32 v{t+5}, 10, v{t+5}")
        p(f"v_mul_u32_u24 v{t+6}, 6, v{t+5}"); p(f"v_sub_u32 v{t+6}, v{t+4}, v{t+6}")
        p(f"v_bfe_u32 v{t+7}, v{t+5}, 2, 2"); p(f"v_lshlrev_b32 v{t+7}, 3, v{t+7}")
        p(f"v_lshrrev_b32 v{t+8}, 4, v{t+5}"); p(f"v_lshl_add_u32 v{t+7}, v{t+8}, 2, v{t+7}")
        p(f"v_and_b32 v{t+8}, 3, v{t+5}"); p(f"v_add3_u32 v{t+7}, v{t+7}, v{t+8}, s{sT+3}")
        p(f"v_mul_u32_u24 v{t+7}, 3072, v{t+7}"); p(f"v_lshl_add_u32 v{vGU+j}, v{t+6}, 4, v{t+7}")
    p(f"v_lshrrev_b32 v{t}, 2, v2"); p(f"v_and_b32 v{t+1}, 3, v2"); p(f"v_bfe_u32 v{t+2}, v2, 3, 2")
    p(f"v_lshlrev_b32 v{t+3}, 7, v{t}")
    p(f"v_lshlrev_b32 v{t+4}, 1, v{t+2}"); p(f"v_xor_b32 v{t+4}, v{t+4}, v{t+1}")
    p(f"v_lshl_add_u32 v{vAQ}, v{t+4}, 4, v{t+3}"); p(f"v_xor_b32 v{vAQ+1}, 64, v{vAQ}")
    p(f"v_mul_u32_u24 v{t+4}, 96, v{t}"); p(f"v_lshl_add_u32 v{vAQ+2}, v{t+1}, 3, v{t+4}")
    for s in (1, 2):
        for j in range(3): p(f"v_add_u32 v{vAQ+3*s+j}, {s*A_STAGE}, v{vAQ+j}")
    p(f"v_lshl_add_u32 v{t+4}, v{t+2}, 5, v{t+3}"); p(f"v_lshl_add_u32 v{t+4}, v{t+1}, 3, v{t+4}")
    p(f"v_add_u32 v{vV}, {V_RING}, v{t+4}")
    for u in range(1, 4): p(f"v_xor_b32 v{vV+u}, {32*u}, v{vV}")
    p(f"v_and_b32 v{t}, 15, v2"); p(f"v_lshrrev_b32 v{t+1}, 4, v2"); p(f"v_bfe_u32 v{t+2}, v2, 1, 3")
    p(f"v_xor_b32 v{t+1}, v{t+1}, v{t+2}"); p(f"v_lshlrev_b32 v{t}, 7, v{t}"); p(f"v_lshl_add_u32 v{t}, v{t+1}, 4, v{t}")
    p(f"v_add_u32 v{vK0}, {K_RING}, v{t}"); p(f"v_xor_b32 v{vK1}, 64, v{vK0}")
    p("s_waitcnt lgkmcnt(0)")
    p(f"s_mul_i32 s{sT+2}, s{sH}, 786432")
    p(f"s_add_u32 s4, s44, s{sT+2}"); p("s_addc_u32 s5, s45, 0"); p("s_mov_b32 s6, 786432"); p("s_mov_b32 s7, 0x20000")
    p(f"s_add_u32 s8, s46, s{sT+2}"); p("s_addc_u32 s9, s47, 0"); p("s_mov_b32 s10, 786432"); p("s_mov_b32 s11, 0x20000")
    p(f"s_mul_i32 s{sT+2}, s{sH}, 384")
    p(f"s_add_u32 s12, s48, s{sT+2}"); p("s_addc_u32 s13, s49, 0"); p(f"s_sub_u32 s14, {640*12288}, s{sT+2}"); p("s_mov_b32 s15, 0x20000")
    p(f"s_cmp_lt_u32 s{sW}, 2"); p("s_cselect_b32 s16, s52, s54"); p("s_cselect_b32 s17, s53, s55")
    p(f"s_mul_i32 s{sT+2}, s{sH}, 96")
    p(f"s_add_u32 s16, s16, s{sT+2}"); p("s_addc_u32 s17, s17, 0"); p(f"s_sub_u32 s18, {640*3072}, s{sT+2}"); p("s_mov_b32 s19, 0x20000")
    p(f"s_mul_i32 s{sT+2}, s{sT+1}, 81920")
    p(f"s_add_u32 s20, s50, s{sT+2}"); p("s_addc_u32 s21, s51, 0"); p("s_mov_b32 s22, 81920"); p("s_mov_b32 s23, 0x20000")
    p(f"s_mul_i32 s{sT+2}, s{sT+1}, {240*4096}"); p(f"s_add_u32 s{sT+2}, s{sT+2}, {WS_OF}")
    p(f"s_add_u32 s24, s50, s{sT+2}"); p("s_addc_u32 s25, s51, 0"); p(f"s_mov_b32 s26, {240*4096}"); p("s_mov_b32 s27, 0x20000")
    p(f"s_lshl_b32 s{sT+2}, s{sW}, 10")
    p(f"s_add_u32 s{sKb}, s{sT+2}, {K_RING}"); p(f"s_add_u32 s{sVb}, s{sT+2}, {V_RING}")
    p(f"s_lshl_b32 s{sWQm}, s{sW}, 11"); p(f"s_mul_i32 s{sGUm}, s{sW}, 3072")
    p(f"s_mov_b32 s{sPass}, 0")

    def a_loads(it):
        st = it % 3; out = []
        sl = [('A', st)]
        for j in range(2):
            for blk in range(3):
                sc = [Ins(f"s_add_u32 m0, s{sWQm}, {st*A_STAGE + blk*8192 + j*1024 - blk*128}")]
                if blk == 0: sc.insert(0, Ins(f"s_mov_b32 s{sT}, {(it*64 + j*16)*12288}"))
                out.append((sc, Ins(f"buffer_load_dwordx4 v{vWQ}, s[12:15], s{sT} offen offset:{blk*128} lds", tag=('A', it), slot=sl, gen=(it, 0))))
        for j in range(3):
            sc = [Ins(f"s_add_u32 m0, s{sGUm}, {st*A_STAGE + 24576 + j*1024}")]
            if j == 0: sc.insert(0, Ins(f"s_mov_b32 s{sT}, {it*64*3072}"))
            out.append((sc, Ins(f"buffer_load_dwordx4 v{vGU+j}, s[16:19], s{sT} offen lds", tag=('A', it), slot=sl, gen=(it, 0))))
        for ks in range(2):
            for qt in range(4):
                sc = [Ins(f"s_mov_b32 s{sT+1}, {(it*2+ks)*4096}")] if qt == 0 else []
                out.append((sc, Ins(f"buffer_load_dwordx4 {ar(XB+32*st+(ks*4+qt)*4)}, v{vLANE16}, s[20:23], s{sT+1} offen offset:{qt*1024}", tag=('A', it))))
        return out
    def a_read(it, f):
        st = it % 3; ks, nt = divmod(f, 18); rs = (it*36+f) % 8
        o = []
        for rd in range(2):
            if nt < 12:
                j = nt >> 1; e = nt & 1
                a = vAQ + 3*st + (j & 1); off = (j >> 1)*8192 + ks*4096 + rd*2048 + 8*e
            else:
                mtx, tt = divmod(nt-12, 3)
                a = vAQ + 3*st + 2; off = 24576 + mtx*6144 + ks*3072 + rd*1536 + tt*32
            o.append(Ins(f"ds_read_b64_tr_b16 {ar(RING+4*rs+2*rd,2)}, v{a} offset:{off}", tag=('af', it*36+f), slot=('A', st), gen=(it, 0)))
        return o
    for it in range(2):
        for sc, m in a_loads(it):
            p.add(sc)
            if m.meta.get('dma'): p("s_nop 0")
            p.add(m)
    stamp(p, 1)
    p.wait(vm=('A', 0)); p("s_barrier")
    stamp(p, 2)
    LA = 4
    for f in range(LA): p.add(a_read(0, f))
    p.wait(lgkm=('af', 1))
    for it in range(10):
        st = it % 3
        M = []
        for ks in range(2):
            for nt in range(18):
                rs = (it*36 + ks*18+nt) % 8
                for qt in range(4):
                    d = vr(QACC + (nt*4+qt)*4) if nt < 12 else ar(((nt-12)*4+qt)*4)
                    c = "0" if (it == 0 and ks == 0) else d
                    M.append(Ins(f"{MF} {d}, {ar(RING+4*rs)}, {ar(XB+32*st+(ks*4+qt)*4)}, {c}"))
        G = Gaps(M)
        BG = 4*(36-LA)
        for f in range(LA, 36):
            r = a_read(it, f); g = 4*(f-LA) - (2 if f >= 30 else 0)
            g = G.mem_from(g, r[0]); G.mem_from(g+1, r[1])
        if it < 9:
            G.sc(BG-1, Wait(vm=('A', it+1), lgkm='all')); G.sc(BG, Ins("s_barrier"))
            g = BG+1
            for f in range(LA):
                r = a_read(it+1, f)
                g = max(g, 4*(36+f-8)+4)
                g = G.mem_from(g, r[0]); g = G.mem_from(g+1, r[1]) + 1
            G.sc(143, Wait(lgkm=('af', (it+1)*36+1)))
        for f in range(2, 36, 2):
            if 4*f-1 < BG-1 or it == 9: G.sc(4*f-1, Wait(lgkm=('af', it*36+f+1)))
        L = []
        if it+2 < 10: L = a_loads(it+2)
        elif it == 8:
            for tl in range(4):
                for b, (mi, d) in enumerate(kv_dma('K', tl, tl, sKo)):
                    L.append((([Ins(f"s_mov_b32 s{sKo}, {tl*SLOT}")] if b == 0 else []) + [mi], d))
        else:
            for tl in range(3):
                for b, (mi, d) in enumerate(kv_dma('V', tl, tl, sVo)):
                    d.meta['slot'] = [d.meta['slot'], ('A', 1), ('A', 2)]
                    L.append((([Ins(f"s_mov_b32 s{sVo}, {tl*SLOT}")] if b == 0 else []) + [mi], d))
        g = 2
        for sc, m in L:
            while G.N[g] or not G.sc_free(g-1) or (len(sc) > 1 and not G.sc_free(g-2)): g += 1
            for k, s_ in enumerate(reversed(sc)): G.sc(g-1-k, s_)
            G.mem(g, m); g += 4
        assert g < BG
        p.add(G.items())
    stamp(p, 3)
    p("s_nop 7")
    p(f"s_mov_b32 s{sT+4}, {f32(-1.4426950408889634)}")
    p(f"s_mul_i32 s{sT+2}, s{sH}, 3")
    for tt in range(3):
        p(f"s_add_u32 s{sT+3}, s{sT+2}, {tt}"); p(f"s_and_b32 s{sT}, s{sT+3}, 1"); p(f"s_lshl_b32 s{sT}, s{sT}, 3")
        p(f"s_lshr_b32 s{sT+3}, s{sT+3}, 1"); p(f"s_add_u32 s{sT+3}, s{sT+3}, 192"); p(f"s_lshl_b32 s{sT+3}, s{sT+3}, 12")
        p(f"s_add_u32 s{sT}, s{sT}, s{sT+3}")
        for qt in range(4):
            b = vT + 16*(qt & 1)
            for r in range(4): p(f"v_accvgpr_read_b32 v{b+r}, a{(tt*4+qt)*4+r}")
            for r in range(4): p(f"v_mul_f32 v{b+8+r}, s{sT+4}, v{b+r}")
            for r in range(4): p(f"v_exp_f32 v{b+8+r}, v{b+8+r}")
            for r in range(4): p(f"v_accvgpr_read_b32 v{b+4+r}, a{48+(tt*4+qt)*4+r}")
            for r in range(4): p(f"v_add_f32 v{b+8+r}, 1.0, v{b+8+r}")
            for r in range(4): p(f"v_rcp_f32 v{b+8+r}, v{b+8+r}")
            for r in range(4): p(f"v_mul_f32 v{b+r}, v{b+r}, v{b+4+r}")
            for r in range(4): p(f"v_mul_f32 v{b+r}, v{b+r}, v{b+8+r}")
            p(f"v_cvt_pk_bf16_f32 v{b+12}, v{b}, v{b+1}"); p(f"v_cvt_pk_bf16_f32 v{b+13}, v{b+2}, v{b+3}")
            p(f"buffer_store_dwordx2 {vr(b+12,2)}, v{vLANE16}, s[24:27], s{sT} offen offset:{qt*1024}")
    p(f"s_mov_b32 s{sT+4}, {f32(QSCALE)}"); p(f"s_mov_b32 s{sT+5}, s{sT+4}")
    for ks in range(6):
        for qt in range(4):
            d = QF + (ks*4+qt)*4
            for e in range(2):
                s = QACC + ((2*ks+e)*4+qt)*4
                p(f"v_pk_mul_f32 {vr(s,2)}, {vr(s,2)}, s[{sT+4}:{sT+5}]")
                p(f"v_pk_mul_f32 {vr(s+2,2)}, {vr(s+2,2)}, s[{sT+4}:{sT+5}]")
                p(f"v_cvt_pk_bf16_f32 v{d+2*e}, v{s}, v{s+1}"); p(f"v_cvt_pk_bf16_f32 v{d+2*e+1}, v{s+2}, v{s+3}")
    for qt in range(4): p(f"v_mov_b32 v{MXI+qt}, 0xff800000")
    pre = p.items;

    a = Prog()
    a("K1_attn:")
    a(f"s_mov_b32 s{sKo}, {4*SLOT}"); a(f"s_mov_b32 s{sVo}, {3*SLOT}")
    a.wait(vm=[('K', 0), ('K', 1), ('V', 0)]); a("s_barrier")
    stamp(a, 4)
    for f in range(4): a.add(kfrag_read(f, f, 0))
    G = Gaps(qk_mfmas(czero=True))
    a.wait(lgkm=('kf', 0))
    for f in range(4, 12): G.mem(4*(f-4), kfrag_read(f, f % 8, 0)[0])
    for f in range(1, 12): G.sc(4*f-1, Wait(lgkm=('kf', f)))
    a.add(G.items())
    a("s_barrier")
    BARG = OPT['barg']
    for g, m in sorted(PLAN['mem'].items()):
        if g > BARG and not m[2]:
            if m[0] == 'k': a.add(kfrag_read(m[1], m[1] % 8, 1))
            elif m[0] == 'dma':
                kind = 'K' if m[1] < 3 else 'V'; tile = 4 if kind == 'K' else 3
                mi, d = kv_dma(kind, tile, tile % 4, sKo if kind == 'K' else sVo)[m[1] % 3]
                a.add(mi); a("s_nop 0"); a.add(d)
                if m[1] % 3 == 2: a(f"s_add_u32 s{sKo if kind=='K' else sVo}, s{sKo if kind=='K' else sVo}, {SLOT}")
    a("s_nop 4")
    for qt in range(4):
        s0 = SR + qt*4; s1 = SR + 16 + qt*4; m = vT + qt
        a(f"v_max3_f32 v{m}, v{s0}, v{s0+1}, v{MXI+qt}")
        a(f"v_max3_f32 v{m}, v{s0+2}, v{s0+3}, v{m}")
        a(f"v_max3_f32 v{m}, v{s1}, v{s1+1}, v{m}")
        a(f"v_max3_f32 v{m}, v{s1+2}, v{s1+3}, v{m}")
    for qt in range(4): xlane(a, "v_max_f32", vT+qt, vT+4)
    for qt in range(4):
        for r in range(4): a(f"v_sub_f32 v{MR+4*qt+r}, 0, v{vT+qt}")
        a(f"v_mov_b32 v{LR+qt}, 0")
        for kt in range(2):
            for r in range(4):
                s = SR + (kt*4+qt)*4 + r
                a(f"v_sub_f32 v{s}, v{s}, v{vT+qt}")
    prev = None
    for (c, t_, kt, qt), g in sorted(zip(softmax_items(0), PLAN['vpos']), key=lambda x: x[1]):
        if g < 96:
            if prev is not None and prev.startswith("v_exp") and not t_.startswith("v_exp"): a("s_nop 0")
            a(t_); prev = t_
    a.wait(lgkm=[('kf', 12), ('kf', 13)])
    a("s_nop 1")
    for i in range(4): a.add(attn_step(i, 0, first=(i == 0)).items())
    a(f"s_mov_b32 s{sCnt}, 14")
    a(".p2align 6")
    a("K1_loop:")
    a.loop_begin("K1_loop", 14)
    for i in range(4, 8):
        G = attn_step(i, 4)
        if i == 7:
            g = 60
            while not G.sc_free(g): g += 1
            G.sc(g, Ins(f"s_sub_u32 s{sCnt}, s{sCnt}, 1"))
            G.sc(95, Ins(f"s_cmp_lg_u32 s{sCnt}, 0"))
        a.add(G.items())
    a("s_cbranch_scc1 K1_loop")
    a.loop_end()
    for i in range(60, 64): a.add(attn_step(i, 0, last=(i == 63)).items())
    stamp(a, 5)
    for qt in range(4): xlane(a, "v_add_f32", LR+qt, vT)
    a(f"s_mov_b32 s{sT}, 0x5d800000")
    a(f"v_cmp_nle_f32 s[{sT+2}:{sT+3}], v{LR}, s{sT}")
    for qt in range(1, 4):
        a(f"v_cmp_nle_f32 vcc, v{LR+qt}, s{sT}"); a(f"s_or_b64 s[{sT+2}:{sT+3}], s[{sT+2}:{sT+3}], vcc")
    a(f"s_or_b32 s{sT+2}, s{sT+2}, s{sT+3}")
    a(f"v_mov_b32 v{vT}, s{sT+2}"); a(f"s_lshl_b32 s{sT}, s{sW}, 2"); a(f"v_mov_b32 v{vT+1}, s{sT}")
    a(f"ds_write_b32 v{vT+1}, v{vT}"); a(f"v_mov_b32 v{vT+1}, 0")
    a("s_waitcnt lgkmcnt(0)"); a("s_barrier")
    a(f"ds_read_b128 {vr(vT+4)}, v{vT+1}"); a("s_waitcnt lgkmcnt(0)")
    a(f"v_or_b32 v{vT+4}, v{vT+4}, v{vT+5}"); a(f"v_or3_b32 v{vT+4}, v{vT+4}, v{vT+6}, v{vT+7}"); a("s_nop 0")
    a(f"v_readfirstlane_b32 s{sT}, v{vT+4}")
    a(f"s_cmp_eq_u32 s{sT}, 0"); a("s_cbranch_scc1 K1_epi")
    a(f"s_cmp_eq_u32 s{sPass}, 0"); a("s_cbranch_scc1 K1_fb")

    e = Prog()
    e("K1_epi:")
    for qt in range(4): e(f"v_rcp_f32 v{vT+2*qt}, v{LR+qt}")
    e("s_nop 0")
    for qt in range(4): e(f"v_mov_b32 v{vT+2*qt+1}, v{vT+2*qt}")
    e(f"s_mul_i32 s{sT}, s{sH}, {6*4096}")
    n = 0
    for j in range(6):
        for qt in range(4):
            b = 64 + 12*(n % 8); n += 1
            for ee in range(2):
                for r in range(4): e(f"v_accvgpr_read_b32 v{b+4*ee+r}, a{((2*j+ee)*4+qt)*4+r}")
            for h in range(4): e(f"v_pk_mul_f32 {vr(b+2*h,2)}, {vr(b+2*h,2)}, {vr(vT+2*qt,2)}")
            for h in range(4): e(f"v_cvt_pk_bf16_f32 v{b+8+h}, v{b+2*h}, v{b+2*h+1}")
            e(f"buffer_store_dwordx4 {vr(b+8)}, v{vLANE16}, s[24:27], s{sT} offen offset:{qt*1024}")
        e(f"s_add_u32 s{sT}, s{sT}, 4096")
    e("s_waitcnt vmcnt(0)")
    stamp(e, 6); stamp_out(e, 7, "K1_so")
    e("K1_end:")
    e("s_endpgm")

    fb = Prog()
    fb("K1_fb:")
    fb(f"s_mov_b32 s{sPass}, 1"); fb(f"s_mov_b32 s{sKo}, 0"); fb(f"s_mov_b32 s{sCnt}, 64")
    fb("K1_fbl:")
    fb.loop_begin("K1_fbl", 2)
    for mi, d in kv_dma('K', 1000, 0, sKo, 4):
        fb.add(mi); fb("s_nop 0"); fb.add(d)
    fb(f"s_add_u32 s{sKo}, s{sKo}, {SLOT}")
    fb("s_waitcnt vmcnt(0)"); fb("s_barrier")
    Mq = qk_mfmas(czero=True)
    for f in range(12):
        fb.add(kfrag_read(f, f % 8, 1000, 4)); fb("s_waitcnt lgkmcnt(0)"); fb.add(Mq[4*f:4*f+4])
    fb("s_nop 7")
    for qt in range(4):
        for kt in range(2):
            s0 = SR + (kt*4+qt)*4
            fb(f"v_max3_f32 v{MXI+qt}, v{s0}, v{s0+1}, v{MXI+qt}")
            fb(f"v_max3_f32 v{MXI+qt}, v{s0+2}, v{s0+3}, v{MXI+qt}")
    fb("s_barrier")
    fb(f"s_sub_u32 s{sCnt}, s{sCnt}, 1"); fb(f"s_cmp_lg_u32 s{sCnt}, 0"); fb("s_cbranch_scc1 K1_fbl")
    fb.loop_end()
    for kind, cnt, so in (('K', 4, sKo), ('V', 3, sVo)):
        for tl in range(cnt):
            fb(f"s_mov_b32 s{so}, {tl*SLOT}")
            for mi, d in kv_dma(kind, tl, tl, so):
                fb.add(mi); fb("s_nop 0"); fb.add(d)
    fb("s_waitcnt vmcnt(0)")
    fb("s_branch K1_attn")

    out = Prog(); out.items += pre + a.items + e.items + fb.items
    chk = Prog(); chk.items += pre + a.items + fb.items + a.items + e.items
    res = Prog(); res.items += pre + a.items + e.items
    res.resolve()
    return out, chk

def k2():
    p = Prog()
    D = 6; NB = 7
    p("s_cmp_ge_u32 s2, 256"); p("s_cbranch_scc1 K2_end")
    stamp(p, 0)
    p("s_load_dwordx2 s[20:21], s[0:1], 0")
    p("s_load_dwordx2 s[22:23], s[0:1], 72")
    p("s_load_dwordx2 s[24:25], s[0:1], 88")
    p("v_lshrrev_b32 v1, 6, v0"); p("v_and_b32 v2, 63, v0")
    p("v_readfirstlane_b32 s28, v1")
    p("s_and_b32 s29, s2, 7"); p("s_lshl_b32 s29, s29, 2"); p("s_bfe_u32 s30, s2, 0x20003"); p("s_add_u32 s29, s29, s30")
    p("s_lshr_b32 s30, s2, 5")
    p("v_lshlrev_b32 v3, 4, v2"); p("v_add_u32 v1, 1024, v3")
    p("s_waitcnt lgkmcnt(0)")
    p(f"s_mul_i32 s31, s29, {240*4096}"); p(f"s_add_u32 s31, s31, {WS_OF}")
    p("s_add_u32 s4, s24, s31"); p("s_addc_u32 s5, s25, 0"); p(f"s_mov_b32 s6, {240*4096}"); p("s_mov_b32 s7, 0x20000")
    p(f"s_mul_i32 s31, s30, {240*5120}"); p(f"s_add_u32 s31, s31, {WS_WP}")
    p("s_add_u32 s8, s24, s31"); p("s_addc_u32 s9, s25, 0"); p(f"s_mov_b32 s10, {240*5120}"); p("s_mov_b32 s11, 0x20000")
    srd(p, 12, 20, 21, SZ_XN); srd(p, 16, 22, 23, SZ_XN)
    p(f"s_mul_i32 s32, s28, {48*4096}"); p(f"s_mul_i32 s33, s28, {48*5120}")
    p("s_mul_i32 s34, s28, 12"); p("s_add_u32 s34, s34, 192"); p("s_mul_i32 s35, s34, 5120"); p("s_lshl_b32 s34, s34, 12")
    def buf(st): return 4 + 36*(st % NB)
    def loads(st):
        out = []
        so, sw = (32, 33) if st < 48 else (34, 35)
        b = buf(st)
        for qt in range(4):
            out.append(([], Ins(f"buffer_load_dwordx4 {vr(b+4*qt)}, v3, s[4:7], s{so} offen offset:{qt*1024}", tag=('L', st))))
        for t in range(5):
            if t == 0: out.append(([Ins(f"s_add_u32 s{so}, s{so}, 4096")], Ins(f"buffer_load_dwordx4 {vr(b+16)}, v3, s[8:11], s{sw} offen", tag=('L', st))))
            else: out.append(([], Ins(f"buffer_load_dwordx4 {vr(b+16+4*t)}, v1, s[8:11], s{sw} offen offset:{(t-1)*1024}", tag=('L', st))))
        return out, Ins(f"s_add_u32 s{sw}, s{sw}, 5120")
    for st in range(D):
        L, post = loads(st)
        for sc, m in L: p.add(sc); p.add(m)
        p.add(post)
    for st in range(60):
        b = buf(st); ab = 0 if st < 48 else 80
        M = []
        for t in range(5):
            for qt in range(4):
                d = ar(ab + (t*4+qt)*4); c = "0" if st in (0, 48) else d
                M.append(Ins(f"{MF} {d}, {vr(b+16+4*t)}, {vr(b+4*qt)}, {c}"))
        G = Gaps(M)
        p.wait(vm=('L', st))
        if st == 0: stamp(p, 1)
        if st + D < 60:
            L, post = loads(st+D)
            for k, (sc, m) in enumerate(L):
                for s_ in sc: G.sc(2*k, s_)
                G.mem(2*k, m)
            G.sc(18, post)
        p.add(G.items())
    stamp(p, 2)
    p("v_and_b32 v4, 15, v2"); p("v_lshrrev_b32 v5, 4, v2")
    p("v_mul_u32_u24 v4, 1280, v4"); p("v_lshl_add_u32 v4, v5, 3, v4")
    p("s_lshl_b32 s31, s29, 2"); p("s_add_u32 s31, s31, s28"); p("s_mul_i32 s31, s31, 20480")
    p("s_mul_i32 s32, s30, 160"); p("s_add_u32 s31, s31, s32")
    for t in range(5): p(f"buffer_load_dwordx2 {vr(8+2*t,2)}, v4, s[12:15], s31 offen offset:{32*t}")
    p("s_mul_i32 s32, s28, 10240"); p("v_add_u32 v5, s32, v3")
    p("v_add_u32 v6, 81920, v5")
    p("s_mul_i32 s32, s28, 40960"); p("v_add_u32 v7, s32, v3")
    p("s_nop 4")
    for qt in range(4):
        for tt in range(10):
            acc = (tt // 5)*80 + ((tt % 5)*4+qt)*4
            p(f"ds_write_b128 v{5 + (qt>>1)}, {ar(acc)} offset:{(qt&1)*40960 + tt*1024}")
    p("s_waitcnt lgkmcnt(0)"); p("s_barrier")
    R = 32
    for w in range(4):
        for tt in range(10):
            p(f"ds_read_b128 {vr(R + (w*10+tt)*4)}, v7 offset:{w*10240 + tt*1024}")
        p("s_waitcnt lgkmcnt(0)")
    for i in range(40):
        p(f"v_add_f32 v{R+i}, v{R+i}, v{R+40+i}"); p(f"v_add_f32 v{R+80+i}, v{R+80+i}, v{R+120+i}")
    for i in range(40): p(f"v_add_f32 v{R+i}, v{R+i}, v{R+80+i}")
    T = R+40
    def rnd2(a, b, t):
        p(f"v_cvt_pk_bf16_f32 v{t}, v{a}, v{b}"); p(f"v_lshlrev_b32 v{a}, 16, v{t}"); p(f"v_and_b32 v{b}, 0xffff0000, v{t}")
    for i in range(0, 40, 2): rnd2(R+i, R+i+1, T)
    p(f"s_mov_b32 s33, {f32(-1.4426950408889634)}")
    for i in range(20): p(f"v_mul_f32 v{T+i}, s33, v{R+20+i}")
    for i in range(20): p(f"v_exp_f32 v{T+i}, v{T+i}")
    for i in range(20): p(f"v_add_f32 v{T+i}, 1.0, v{T+i}")
    for i in range(20): p(f"v_rcp_f32 v{T+i}, v{T+i}")
    for i in range(20): p(f"v_mul_f32 v{R+20+i}, v{R+20+i}, v{T+i}")
    for i in range(20, 40, 2): rnd2(R+i, R+i+1, T)
    for i in range(20): p(f"v_mul_f32 v{R+i}, v{R+i}, v{R+20+i}")
    for i in range(0, 20, 2): rnd2(R+i, R+i+1, T)
    p("s_waitcnt vmcnt(0)")
    for i in range(10):
        p(f"v_lshlrev_b32 v{T}, 16, v{8+i}"); p(f"v_and_b32 v{T+1}, 0xffff0000, v{8+i}")
        p(f"v_add_f32 v{T}, v{T}, v{R+2*i}"); p(f"v_add_f32 v{T+1}, v{T+1}, v{R+2*i+1}")
        p(f"v_cvt_pk_bf16_f32 v{20+i}, v{T}, v{T+1}")
    for t in range(5): p(f"buffer_store_dwordx2 {vr(20+2*t,2)}, v4, s[16:19], s31 offen offset:{32*t}")
    p("s_waitcnt vmcnt(0)")
    stamp(p, 3); stamp_out(p, 4, "K2_so")
    p("K2_end:")
    p("s_endpgm")
    p.resolve()
    return p, p

HDR = open('recurrent_scan__mha_block_cached__swiglu_ffn__prompt.s.ref').read().split('; Override launch')[0]
def main():
    ks = [("prep_kernel", k0, (368, 256, 40960), 96, 96), ("attn_kernel", k1, (256, 256, 163840), 512, 256), ("proj_kernel", k2, (256, 256, 163840), 416, 256)]
    out = [HDR.rstrip()]
    for name, fn, (g, b, lds), nv, ao in ks:
        out.append(f"; @launch kernel={name} grid=({g},1,1) block=({b},1,1) lds={lds}")
    out.append('.amdgcn_target "amdgcn-amd-amdhsa--gfx950"'); out.append(".text")
    ok = True
    for name, fn, _, nv, ao in ks:
        prog, chk = fn()
        ok &= chk.check(name)
        out += [f".globl {name}", ".p2align 8", f".type {name},@function", f"{name}:"]
        out += prog.emit()
    out += ['.section .rodata,"a"']
    for name, fn, _, nv, ao in ks:
        out += [".p2align 6", f".amdhsa_kernel {name}", f"  .amdhsa_next_free_vgpr {nv}", "  .amdhsa_next_free_sgpr 102",
                f"  .amdhsa_accum_offset {ao}", "  .amdhsa_group_segment_fixed_size 0", "  .amdhsa_kernarg_size 96",
                "  .amdhsa_user_sgpr_count 2", "  .amdhsa_user_sgpr_kernarg_segment_ptr 1", "  .amdhsa_system_sgpr_workgroup_id_x 1", ".end_amdhsa_kernel"]
    print("\n".join(out))
    if not ok: sys.stderr.write("CHECK FAILED\n"); sys.exit(1)
main()
```

```python
import re, sys

REG_RE = re.compile(r'\b([vas])(?:\[(\d+):(\d+)\]|(\d+))')

def regs_of(tok):
    out = []
    for m in REG_RE.finditer(tok):
        c = m.group(1)
        if m.group(2) is not None:
            out += [(c, i) for i in range(int(m.group(2)), int(m.group(3)) + 1)]
        else:
            out.append((c, int(m.group(4))))
    t = tok.strip()
    if t == 'vcc': out += [('s', 'vcc')]
    if t == 'm0': out += [('s', 'm0')]
    if t == 'exec': out += [('s', 'exec')]
    return out

TRANS = ('v_exp_f32', 'v_log_f32', 'v_rcp_f32', 'v_rsq_f32', 'v_sqrt_f32', 'v_sin_f32', 'v_cos_f32')

class Ins:
    __slots__ = ('text', 'op', 'kind', 'rd', 'wr', 'meta', 'mA', 'mB', 'mC')
    def __init__(self, text, **meta):
        self.text = text; self.meta = meta
        t = text.split(';')[0].strip()
        parts = t.split(None, 1)
        self.op = parts[0] if parts else ''
        ops = [x.strip() for x in parts[1].split(',')] if len(parts) > 1 else []
        op = self.op
        self.rd = []; self.wr = []; self.mA = self.mB = self.mC = ()
        k = 'other'
        if op.endswith(':') or op.startswith('.') or op == '':
            k = 'label'
        elif op.startswith('v_mfma'):
            k = 'mfma'
            self.wr = regs_of(ops[0]); self.mA = regs_of(ops[1]); self.mB = regs_of(ops[2]); self.mC = regs_of(ops[3])
            self.rd = list(self.mA) + list(self.mB) + list(self.mC)
        elif op.startswith('ds_read') or op.startswith('ds_bpermute') or op.startswith('ds_swizzle'):
            k = 'ds'; self.wr = regs_of(ops[0]); self.rd = sum((regs_of(x) for x in ops[1:]), [])
        elif op.startswith('ds_'):
            k = 'ds'; self.rd = sum((regs_of(x) for x in ops), [])
        elif op.startswith('buffer_load') or op.startswith('global_load'):
            k = 'vm'
            if re.search(r'\blds\b', t) or '_lds_' in op:
                self.rd = sum((regs_of(x) for x in ops), []) + [('s', 'm0')]
                self.meta['dma'] = True
            else:
                self.wr = regs_of(ops[0]); self.rd = sum((regs_of(x) for x in ops[1:]), [])
        elif op.startswith('buffer_store') or op.startswith('global_store') or op.startswith('buffer_atomic') or op.startswith('global_atomic'):
            k = 'vm'; self.rd = sum((regs_of(x) for x in ops), [])
            if 'atomic' in op and re.search(r'\bsc0\b', t): self.wr = regs_of(ops[0])
            self.meta['store'] = True
            if op.startswith('buffer'): self.meta['sdata'] = regs_of(ops[0])
            else: self.meta['sdata'] = regs_of(ops[1])
        elif op.startswith('buffer_wbl2') or op.startswith('buffer_inv'):
            k = 'vm'
        elif op.startswith('s_load') or op.startswith('s_memtime') or op.startswith('s_memrealtime'):
            k = 'smem'; self.wr = regs_of(ops[0]); self.rd = sum((regs_of(x) for x in ops[1:]), [])
        elif op == 's_waitcnt': k = 'wait'
        elif op == 's_barrier': k = 'barrier'
        elif op == 's_nop': k = 'nop'
        elif op.startswith('s_cbranch') or op == 's_branch' or op == 's_endpgm' or op == 's_setprio' or op == 's_sleep':
            k = 'salu'
            if 'vcc' in op: self.rd = [('s', 'vcc')]
        elif op.startswith('s_cmp'):
            k = 'salu'; self.rd = sum((regs_of(x) for x in ops), [])
        elif op.startswith('s_'):
            k = 'salu'; self.wr = regs_of(ops[0]); self.rd = sum((regs_of(x) for x in ops[1:]), [])
            if 'saveexec' in op: self.wr += [('s', 'exec')]
        elif op.startswith('v_'):
            k = 'valu'
            if op.startswith('v_permlane') and 'swap' in op:
                self.wr = regs_of(ops[0]) + regs_of(ops[1]); self.rd = list(self.wr)
            elif op.startswith('v_cmp'):
                self.wr = regs_of(ops[0]); self.rd = sum((regs_of(x) for x in ops[1:]), [])
            elif op.startswith('v_add_co') or op.startswith('v_addc_co') or op.startswith('v_sub_co'):
                self.wr = regs_of(ops[0]) + regs_of(ops[1]); self.rd = sum((regs_of(x) for x in ops[2:]), [])
            else:
                self.wr = regs_of(ops[0]); self.rd = sum((regs_of(x) for x in ops[1:]), [])
                if op.startswith('v_fmac') or op.startswith('v_dot2c') or op.startswith('v_writelane'): self.rd += self.wr
        self.kind = k
    def states(self):
        if self.kind == 'label': return 0
        if self.kind == 'nop': return int(self.text.split()[1], 0) + 1
        return 1

class Wait:
    def __init__(self, vm=None, lgkm=None, cap=63):
        self.cap = cap; self.vm = vm; self.lgkm = lgkm; self.vmv = None; self.lgv = None
    @property
    def text(self):
        s = []
        if self.vm is not None: s.append(f"vmcnt({self.vmv})")
        if self.lgkm is not None: s.append(f"lgkmcnt({self.lgv})")
        return "s_waitcnt " + " ".join(s)

class Loop:
    def __init__(self, label, trips, body): self.label = label; self.trips = trips; self.body = body

class Prog:
    def __init__(self): self.items = []; self.stack = [self.items]
    def __call__(self, text, **meta):
        for ln in text.split('\n'):
            if ln.strip(): self.stack[-1].append(Ins(ln.strip(), **meta))
    def add(self, x):
        if isinstance(x, str): self(x)
        elif isinstance(x, (list, tuple)):
            for y in x: self.add(y)
        else: self.stack[-1].append(x)
    def wait(self, vm=None, lgkm=None): self.stack[-1].append(Wait(vm, lgkm))
    def loop_begin(self, label, trips):
        lp = Loop(label, trips, []); self.stack[-1].append(lp); self.stack.append(lp.body)
    def loop_end(self): self.stack.pop()

    def expand(self, items=None, maxtrips=3):
        out = []
        for x in (self.items if items is None else items):
            if isinstance(x, Loop):
                for it in range(x.trips):
                    out += [(y, it) for (y, _) in self.expand(x.body)]
            else: out.append((x, 0))
        return out

    def resolve(self):
        tr = self.expand()
        vmq = []; lgq = []
        def dyn(tag, it):
            if tag is None: return None
            name, idx, stride = (tuple(tag) + (0,))[:3]
            return (name, idx + it * stride)
        for x, it in tr:
            if isinstance(x, Wait):
                for cls, q, mx in (('vm', vmq, 63), ('lgkm', lgq, 15)):
                    tg = getattr(x, cls)
                    if tg is None: continue
                    if tg == 'all': n = 0
                    else:
                        tags = [dyn(t, it) for t in (tg if isinstance(tg, list) else [tg])]
                        last = max((i for i, t in enumerate(q) if t in tags), default=-1)
                        n = len(q) - 1 - last
                    n = min(n, mx, x.cap)
                    attr = 'vmv' if cls == 'vm' else 'lgv'
                    cur = getattr(x, attr)
                    setattr(x, attr, n if cur is None else min(cur, n))
            elif x.kind == 'vm': vmq.append(dyn(x.meta.get('tag'), it))
            elif x.kind == 'ds': lgq.append(dyn(x.meta.get('tag'), it))
            elif x.kind == 'smem': lgq.append(None); lgq.append(None)

    def emit(self, items=None):
        out = []
        for x in (self.items if items is None else items):
            if isinstance(x, Loop):
                out += self.emit(x.body)
            else: out.append(x.text)
        return out

    def check(self, name=''):
        tr = self.expand()
        errs = []
        def err(i, msg):
            x = tr[i][0]
            errs.append(f"[{name}] #{i} it{tr[i][1]} '{x.text}': {msg}")
        vmq = []; lgq = []
        pend = {}
        slot_dma = {}
        slot_rd = {}
        hist = []
        pos = 0
        lastw = {}
        lastmC = {}
        laststore = {}
        m0used = [True]
        def dsl(m, it):
            s = m.get('slot')
            if s is None: return None
            return s
        for i, (x, it) in enumerate(tr):
            if isinstance(x, Wait) or x.kind == 'wait':
                t = x.text
                m = re.search(r'vmcnt\((\d+)\)', t)
                if m:
                    n = int(m.group(1))
                    while len(vmq) > n:
                        e = vmq.pop(0); e['done'] = True
                        for r in e['wr']:
                            if pend.get(r) is e: del pend[r]
                m = re.search(r'lgkmcnt\((\d+)\)', t)
                if m:
                    n = int(m.group(1))
                    if n > 0 and any(e.get('smem') for e in lgq): err(i, 'counted lgkm with smem outstanding')
                    while len(lgq) > n:
                        e = lgq.pop(0); e['done'] = True
                        for r in e['wr']:
                            if pend.get(r) is e: del pend[r]
                pos += 1
                continue
            if x.kind == 'label': continue
            if x.kind == 'barrier':
                for s, l in slot_dma.items():
                    for e in l:
                        if e.get('done'): e['bar'] = True
                for s, l in slot_rd.items():
                    for e in l:
                        if e.get('done'): e['bar'] = True
                pos += 1; continue
            for r in x.rd + x.wr:
                if r in pend: err(i, f"touches pending load reg {r} ('{pend[r]['ins'].text}')")
            def need(reg, cls, n, why):
                p = lastw.get((reg, cls))
                if p is not None and pos - p - 1 < n: err(i, f"hazard {why} on {reg}: {pos-p-1} < {n}")
            if x.kind == 'mfma':
                for r in x.rd: need(r, 'valu', 2, 'valu->mfma')
                for r in list(x.mA) + list(x.mB): need(r, 'mfma', 8, 'mfma D->mfma AB')
                for r in x.mC:
                    p = lastw.get((r, 'mfma'))
                    if p is not None and lastw.get((r, 'mfmaD')) != tuple(x.mC) and pos - p - 1 < 6: err(i, f"mfma D->C partial overlap {r}")
                need(('s', 'exec'), 'valu', 4, 'exec->mfma')
            if x.kind in ('valu', 'vm', 'ds'):
                for r in x.rd: need(r, 'mfma', 8, 'mfma D->read')
                for r in x.wr: need(r, 'mfma', 8, 'mfma D->write')
            if x.kind == 'valu':
                for r in x.wr:
                    p = lastmC.get(r)
                    if p is not None and pos - p - 1 < 3: err(i, f"WAR mfma C {r}")
                    p = laststore.get(r)
                    if p is not None and pos - p - 1 < 2: err(i, f"WAR store data {r}")
                if not x.op.startswith(TRANS):
                    for r in x.rd: need(r, 'trans', 1, 'trans->valu')
                if x.op.startswith('v_permlane'):
                    for r in x.rd: need(r, 'valu', 2, 'valu->permlane')
                if x.op.startswith('v_readfirstlane') or x.op.startswith('v_readlane'):
                    for r in x.rd: need(r, 'valu', 1, 'valu->readlane')
                if 'dpp' in x.text or 'row_' in x.text or 'quad_perm' in x.text:
                    for r in x.rd: need(r, 'valu', 2, 'valu->dpp')
                for r in x.rd:
                    if r[0] == 's': need(r, 'valu', 2, 'valu sgpr->valu')
                if x.op.startswith('v_cndmask') and 'vcc' in x.text: need(('s', 'vcc'), 'valu', 2, 'vcc->cndmask')
            if x.kind in ('vm', 'ds'):
                for r in x.rd: need(r, 'trans', 1, 'trans->mem')
                for r in x.wr:
                    p = laststore.get(r)
                    if p is not None and pos - p - 1 < 1: err(i, f"WAR store data {r}")
            if x.kind == 'vm':
                for r in x.rd:
                    if r[0] == 's': need(r, 'valu', 5, 'valu sgpr->vmem')
                if x.meta.get('dma'):
                    need(('s', 'm0'), 'salu', 1, 'm0->dma')
                    if m0used[0] and not x.meta.get('m0reuse'): err(i, 'DMA reuses an M0 value already consumed')
                    m0used[0] = True
            if x.kind == 'salu' and x.op.startswith('s_cbranch') and 'vcc' in x.op:
                need(('s', 'vcc'), 'valu', 5, 'vcc->cbranch (conservative)')
            sl = x.meta.get('slot')
            if sl is not None:
                sls = sl if isinstance(sl, list) else [sl]
                isw = x.meta.get('dma') or (x.kind == 'ds' and not x.wr)
                priv = x.meta.get('priv')
                for s in sls:
                    if isw:
                        for e in slot_rd.get(s, []):
                            if not (e.get('bar') or (priv and e.get('done'))): err(i, f"LDS WAR on slot {s}: read '{e['ins'].text}' not fenced")
                        slot_rd[s] = []
                        if x.meta.get('gen') is not None:
                            pass
                    else:
                        for e in slot_dma.get(s, []):
                            if not (e.get('bar') or (priv and e.get('done'))): err(i, f"LDS RAW on slot {s}: write '{e['ins'].text}' not fenced")
                        g = x.meta.get('gen')
                        if g is not None:
                            gd = g[0] + it * g[1]
                            gens = set(e.get('gen') for e in slot_dma.get(s, []))
                            if gens != {gd}: err(i, f"LDS generation mismatch slot {s}: want {gd} have {gens}")
            e = None
            if x.kind == 'vm':
                e = dict(wr=list(x.wr), ins=x); vmq.append(e)
                if len(vmq) > 63: err(i, 'vmcnt overflow (>63 outstanding)')
                if x.meta.get('store') and len(x.meta['sdata']) >= 3:
                    for r in x.meta['sdata']: laststore[r] = pos
            elif x.kind == 'ds':
                e = dict(wr=list(x.wr), ins=x); lgq.append(e)
            elif x.kind == 'smem':
                e = dict(wr=list(x.wr), ins=x, smem=True); lgq.append(e)
            if e is not None:
                for r in x.wr: pend[r] = e
                if sl is not None:
                    for s in sls:
                        if isw:
                            g = x.meta.get('gen'); gd = None if g is None else g[0] + it * g[1]
                            e['gen'] = gd
                            old = [o for o in slot_dma.get(s, []) if o.get('gen') == gd]
                            slot_dma[s] = old + [e]
                        else: slot_rd.setdefault(s, []).append(e)
            if x.kind == 'mfma':
                for r in x.wr: lastw[(r, 'mfma')] = pos; lastw[(r, 'mfmaD')] = tuple(x.wr); lastw.pop((r, 'valu'), None)
                for r in x.mC: lastmC[r] = pos
            elif x.kind == 'valu':
                for r in x.wr:
                    lastw[(r, 'valu')] = pos; lastw.pop((r, 'mfma'), None)
                    if x.op.startswith(TRANS): lastw[(r, 'trans')] = pos
                    else: lastw.pop((r, 'trans'), None)
            elif x.kind == 'salu':
                if ('s', 'm0') in x.wr:
                    if not m0used[0]: err(i, 'M0 overwritten before use')
                    m0used[0] = False
                for r in x.wr: lastw[(r, 'salu')] = pos; lastw.pop((r, 'valu'), None)
            pos += x.states()
        seen = set(); n = 0
        for e in errs:
            key = e.split("'")[1] + e.split(':')[-1]
            if key in seen: continue
            seen.add(key); sys.stderr.write(e + '\n'); n += 1
            if n > 40: break
        return len(errs) == 0

class Gaps:
    def __init__(self, mf):
        self.M = mf; n = len(mf); self.n = n
        self.S = [[] for _ in range(n)]; self.N = [[] for _ in range(n)]; self.V = [[] for _ in range(n)]
        self.cap = [2] * n
    def mem(self, g, ins):
        g %= self.n
        assert not self.N[g], f"gap {g} already has mem {self.N[g][0].text}"
        assert self.cap[g] >= 1
        self.N[g].append(ins); self.cap[g] -= 1
    def mem_from(self, g, ins):
        while self.N[g % self.n] or self.cap[g % self.n] < 1: g += 1
        self.mem(g, ins); return g
    def sc(self, g, ins): self.S[g % self.n].append(ins)
    def sc_free(self, g):
        return not self.S[g % self.n]
    def valu(self, g, ins, cost=1):
        g %= self.n
        assert self.cap[g] >= cost
        self.V[g].append(ins); self.cap[g] -= cost
    def items(self, lo=0, hi=None):
        out = []
        for i in range(lo, self.n if hi is None else hi):
            if self.M[i] is not None: out.append(self.M[i])
            out += self.S[i] + self.N[i] + self.V[i]
        return out
```

```python
import sys, struct
from asmlib import *

OPT = dict(stamp=0, look=5, barg=80, slp=2, fpub=0, warm=1, sigst=4, early=1, td=4)
for a in sys.argv[1:]:
    k, v = a.split('='); OPT[k] = int(v, 0)
NAME = "recurrent_scan__mha_block_cached__swiglu_ffn__prompt_kernel"

WS_XN = 0x0;        SZ_XN = 2048 * 640 * 2
WS_WP = 0x400000;   SZ_WP = 7680 * 640 * 2
WS_OF = 0x1000000;  SZ_OF = 2048 * 7680 * 2
WS_XB = 0x3000000;  SZ_XB = 64*4*3*2*4*5120
WS_FL = 0x5000000;  SZ_FL = 32768
FL_LN = 256; FL_H = 2048; FL_O = 4096; FL_X = 8192
def f32(x): return "0x%08x" % struct.unpack('<I', struct.pack('<f', x))[0]
MF = "v_mfma_f32_16x16x32_bf16"
SC1 = " sc1"
def vr(b, n=4): return f"v[{b}:{b+n-1}]"
def ar(b, n=4): return f"a[{b}:{b+n-1}]"
LOG2E = 1.4426950408889634
QSCALE = LOG2E / (192 ** 0.5)

sW = 28; sH = 29; sKb = 30; sVb = 31; sKo = 32; sVo = 33; sCnt = 34; sPass = 35; sWQm = 36; sGUm = 37; sI = 38; cC = 39; sT = 40
cWo = 50; cBo = 51; cM = 52; cXO = 53; cXB = 54; cTile = 55; sFL = 56; sNON = 66; cW1 = 68; sFO = 46; sFH = 47; sFX = 48
kX = 72; kK = 74; kV = 76; kWQ = 78; kWO = 80; kWG = 84; kWU = 86; kWD = 88; kOUT = 90; kWS = 94
vL1K = 1; vLANE = 2; vL16 = 3; vK0 = 4; vV = 6; vDK = 10; vDV = 11
vWQ = 12; vGU = 13; vAQ = 16
cvA = 12; cvB = 15
vSIG = 25; vNON = 26; vP4 = 60; vP8 = 61; vSTAMP = 62
vT = 28; vPOLL = 36
QACC = 64; QF = 64; SR = 160; PR = 192; MR = 224; LR = 240; MXI = 244
XB = 96; RING = 192
A_STAGE = 36864
K_RING = 114688; V_RING = 65536; SLOT = 12288
VOTE = 163840 - 16

def srd(p, d, lo, size, add=None):
    if add is None: p(f"s_mov_b32 s{d}, s{lo}"); p(f"s_mov_b32 s{d+1}, s{lo+1}")
    else: p(f"s_add_u32 s{d}, s{lo}, {add}"); p(f"s_addc_u32 s{d+1}, s{lo+1}, 0")
    if size is not None: p(f"s_mov_b32 s{d+2}, {size}")
    p(f"s_mov_b32 s{d+3}, 0x20000")

def xlane(p, op, a, t):
    p(f"v_mov_b32 v{t}, v{a}"); p("s_nop 1")
    p(f"v_permlane32_swap_b32 v{a}, v{t}"); p("s_nop 1")
    p(f"{op} v{a}, v{a}, v{t}")
    p(f"v_mov_b32 v{t}, v{a}"); p("s_nop 1")
    p(f"v_permlane16_swap_b32 v{a}, v{t}"); p("s_nop 1")
    p(f"{op} v{a}, v{a}, v{t}")
def xlane4(p, op, regs, t):
    for sw in ("v_permlane32_swap_b32", "v_permlane16_swap_b32"):
        for i, a in enumerate(regs): p(f"v_mov_b32 v{t+i}, v{a}")
        p("s_nop 0")
        for i, a in enumerate(regs): p(f"{sw} v{a}, v{t+i}")
        for i, a in enumerate(regs): p(f"{op} v{a}, v{a}, v{t+i}")

NST = [0]
def stamp(p, idx):
    if OPT['stamp']:
        p("s_memrealtime s[64:65]"); p("s_waitcnt lgkmcnt(0)")
        p(f"v_writelane_b32 v{vSTAMP}, s64, {idx}")
def stamp_out(p):
    if not OPT['stamp']: return
    p("s_cmp_ge_u32 s2, 64"); p("s_cbranch_scc1 K_so")
    p(f"s_cmp_lg_u32 s{sW}, 0"); p("s_cbranch_scc1 K_so")
    p(f"s_add_u32 s4, s{kWS}, {0xF000000}"); p(f"s_addc_u32 s5, s{kWS+1}, 0"); p("s_mov_b32 s6, 8192"); p("s_mov_b32 s7, 0x20000")
    p("s_lshl_b32 s64, s2, 7"); p(f"v_lshlrev_b32 v4, 2, v{vLANE}"); p("s_mov_b64 exec, 0xffffffff")
    p(f"buffer_store_dword v{vSTAMP}, v4, s[4:7], s64 offen"); p("s_waitcnt vmcnt(0)")
    p("K_so:")

def signal(soff): return Ins(f"buffer_store_dwordx2 {vr(vNON,2)}, v{vSIG}, s[{sFL}:{sFL+3}], s{soff} offen{SC1}")
def poll(p, lab, voff, soff):
    p(f"s_mov_b32 s{sT+2}, 0")
    p(f"{lab}:")
    p(f"buffer_load_dwordx2 {vr(vPOLL,2)}, v{voff}, s[{sFL}:{sFL+3}], s{soff} offen{SC1}"); p("s_waitcnt vmcnt(0)")
    p(f"v_cmp_ne_u64 vcc, {vr(vNON,2)}, {vr(vPOLL,2)}"); p("s_nop 4")
    p(f"s_cbranch_vccz {lab}_ok")
    p(f"s_sleep {OPT['slp']}")
    p(f"s_add_u32 s{sT+2}, s{sT+2}, 1"); p(f"s_cmp_lt_u32 s{sT+2}, 0x40000"); p(f"s_cbranch_scc1 {lab}")
    p(f"{lab}_ok:")
def hpoll_loads():
    return [Ins(f"buffer_load_dwordx4 {vr(vPOLL+4*j)}, v{vL16}, s[{sFL}:{sFL+3}], 0 offen offset:{FL_H+1024*j}{SC1}", tag=('hp', 0)) for j in range(2)]
def hpoll(p, lab):
    p(f"s_mov_b32 s{sT+2}, 0"); p(f"s_branch {lab}_chk")
    p(f"{lab}:")
    p.add(hpoll_loads()); p("s_waitcnt vmcnt(0)")
    p(f"{lab}_chk:")
    p(f"v_cmp_ne_u64 s[{sT}:{sT+1}], {vr(vNON,2)}, {vr(vPOLL,2)}")
    for j in range(1, 4):
        p(f"v_cmp_ne_u64 vcc, {vr(vNON,2)}, {vr(vPOLL+2*j,2)}"); p(f"s_or_b64 s[{sT}:{sT+1}], s[{sT}:{sT+1}], vcc")
    p(f"s_cbranch_scc0 {lab}_ok")
    p(f"s_sleep 8")
    p(f"s_add_u32 s{sT+2}, s{sT+2}, 1"); p(f"s_cmp_lt_u32 s{sT+2}, 0x40000"); p(f"s_cbranch_scc1 {lab}")
    p(f"{lab}_ok:")

def kv_dma(kind, tile, slot, soff, stride=0):
    out = []
    for blk in range(3):
        base = sKb if kind == 'K' else sVb
        m = Ins(f"s_add_u32 m0, s{base}, {slot*SLOT + blk*4096 - blk*128}")
        d = Ins(f"buffer_load_dwordx4 v{vDK if kind=='K' else vDV}, s[{4 if kind=='K' else 8}:{7 if kind=='K' else 11}], s{soff} offen offset:{blk*128} lds",
                tag=(kind, tile, stride), slot=(kind, slot), gen=(tile, stride))
        out.append((m, d))
    return out
def kfrag_read(f, rs, tile, stride=0):
    kt, ks = divmod(f, 6); slot = tile % 4
    return [Ins(f"ds_read_b128 {ar(RING+4*rs)}, v{vK0 + (ks&1)} offset:{slot*SLOT + (ks>>1)*4096 + kt*2048}",
                tag=('kf', tile*12+f, stride*12), slot=('K', slot), gen=(tile, stride))]
def vfrag_read(dt, rs, tile, stride=0):
    slot = tile % 4
    return [Ins(f"ds_read_b64_tr_b16 {ar(RING+4*rs+2*rd,2)}, v{vV + (dt&3)} offset:{slot*SLOT + (dt>>2)*4096 + rd*2048}",
                tag=('vf', tile*12+dt, stride*12), slot=('V', slot), gen=(tile, stride)) for rd in range(2)]
def qk_mfmas(czero=False):
    M = []
    for kt in range(2):
        for ks in range(6):
            f = kt*6+ks
            for qt in range(4):
                s = SR + (kt*4+qt)*4
                c = vr(s) if ks else ("0" if czero else vr(MR+4*qt))
                M.append(Ins(f"{MF} {vr(s)}, {ar(RING+4*(f%8))}, {vr(QF+(ks*4+qt)*4)}, {c}"))
    return M
def pv_mfmas(pb, czero=False):
    M = []
    for dt in range(12):
        for qt in range(4):
            o = (dt*4+qt)*4
            M.append(Ins(f"{MF} {ar(o)}, {ar(RING+4*((12+dt)%8))}, {vr(PR+16*pb+4*qt)}, {'0' if czero else ar(o)}"))
    return M
def softmax_items(pb):
    it = []
    seq = [(kt, qt, r) for kt in range(2) for qt in range(4) for r in range(4)]
    def reg(e): return SR + (e[0]*4+e[1])*4 + e[2]
    def post(e):
        o = [(1, f"v_add_f32 v{LR+e[1]}, v{LR+e[1]}, v{reg(e)}", e[0], e[1])]
        if e[2] & 1: o.append((1, f"v_cvt_pk_bf16_f32 v{PR+16*pb+4*e[1]+2*e[0]+(e[2]>>1)}, v{reg(e)-1}, v{reg(e)}", e[0], e[1]))
        return o
    for i, e in enumerate(seq):
        it.append((2, f"v_exp_f32 v{reg(e)}, v{reg(e)}", e[0], e[1]))
        if i >= 2: it += post(seq[i-2])
    it += post(seq[-2]) + post(seq[-1])
    return it
def plan_step():
    LOOK = OPT['look']; BARG = OPT['barg']; n = 96
    mem = {}
    for dt in range(12):
        g = 4*(12+dt-LOOK)
        mem[g] = ('v', dt, 0); mem[g+1] = ('v', dt, 1)
    assert 4*(23-LOOK)+1 < BARG-4
    g_next = BARG+1
    for f in range(12):
        g = max(96 + 4*(f-LOOK), g_next)
        if f + 16 < 24: g = max(g, 4*(f+16)+4)
        while (g % n) in mem: g += 1
        mem[g % n] = ('k', f, g >= n)
        g_next = g+2
    g = BARG+4
    for i in range(6):
        while (g % n) in mem or ((g-1) % n) in (BARG, BARG-1): g += 1
        mem[g % n] = ('dma', i, g >= n)
        g += 5
    cap = [2 - (1 if i in mem else 0) for i in range(n)]
    items = softmax_items(0)
    tot = sum(x[0] for x in items); g0 = 27; span = 84
    pos = [None]*len(items); acc = 0; g = g0
    pend = list(range(len(items)))
    while pend:
        g = max(g, g0 + int(acc*span/tot))
        placed = False
        for j in range(min(2, len(pend))):
            c, t, kt, qt = items[pend[j]]
            if j > 0 and not (c == 1 and items[pend[0]][0] == 2): continue
            if c <= cap[g % n] and g >= 24*kt + 20 + qt + 7:
                pos[pend[j]] = g; cap[g % n] -= c; acc += c; pend.pop(j); placed = True
                assert g < 96 + 24*kt + qt - 1, (g, t)
                break
        if not placed: g += 1
    return dict(mem=mem, vpos=pos)
PLAN = plan_step()

def attn_step(i, stride, first=False, last=False):
    BARG = OPT['barg']
    M = ([None]*48 if last else qk_mfmas()) + pv_mfmas(i % 2, czero=first)
    G = Gaps(M)
    for g, m in sorted(PLAN['mem'].items()):
        if m[0] == 'v':
            G.mem(g, vfrag_read(m[1], (12+m[1]) % 8, i, stride)[m[2]])
        elif m[0] == 'k':
            tile = i+1 if m[2] else i+2
            if tile > 63 and stride == 0: continue
            G.mem(g, kfrag_read(m[1], m[1] % 8, tile, stride)[0])
        else:
            ep = i if m[2] else i+1
            kind = 'K' if m[1] < 3 else 'V'
            tile = ep+4 if kind == 'K' else ep+3
            if stride == 0 and tile > 63: continue
            so = sKo if kind == 'K' else sVo
            mi, d = kv_dma(kind, tile, tile % 4, so, stride)[m[1] % 3]
            G.sc(g-1, mi); G.mem(g, d)
            if m[1] % 3 == 2: G.sc(g+1, Ins(f"s_add_u32 s{so}, s{so}, {SLOT}"))
    for f in range(0, 24, 2):
        g = 4*f - 1
        if f < 12:
            if f == 0:
                if not (stride == 0 and i+2 > 63): G.sc(95, Wait(lgkm=[('kf', (i+2)*12+0, stride*12), ('kf', (i+2)*12+1, stride*12)]))
            elif not last: G.sc(g, Wait(lgkm=[('kf', (i+1)*12+f+1, stride*12)]))
        elif g < BARG-1:
            G.sc(g, Wait(lgkm=[('vf', i*12+f-12+1, stride*12)]))
    need = []
    if not (stride == 0 and i+2 > 63): need.append(('K', i+2, stride))
    if not (stride == 0 and i+1 > 63): need.append(('V', i+1, stride))
    if need:
        G.sc(BARG-1, Wait(vm=need, lgkm='all')); G.sc(BARG, Ins("s_barrier"))
    else:
        G.sc(BARG-1, Wait(lgkm='all'))
    for (c, t, kt, qt), g in zip(softmax_items(i % 2), PLAN['vpos']):
        if g >= 96: G.valu(g-96, Ins(t), c)
    if not last:
        for (c, t, kt, qt), g in zip(softmax_items((i+1) % 2), PLAN['vpos']):
            if g < 96: G.valu(g, Ins(t), c)
    return G

C_STAGE = 20480; C_NS = 8; C_LA = 6; C_D = 6
cS = 0; cF = 80; cRING = 160
CB = [('a', 224), ('a', 240), ('v', 44), ('v', 160), ('v', 176), ('v', 192), ('v', 208), ('v', 224)]
def cb(n, o):
    c, b = CB[n % C_NS]
    return f"{c}[{b+o}:{b+o+3}]"
def c_wloads(n, stride=0):
    sl = n % C_NS; out = []
    for j in range(5):
        sc = [Ins(f"s_add_u32 m0, s{cM}, {sl*C_STAGE + (1024 if j == 4 else 0)}")] if j in (0, 4) else []
        out.append((sc, Ins(f"buffer_load_dwordx4 v{vL16 if j < 4 else vL1K}, s[12:15], s{cWo} offen offset:{min(j,3)*1024}{SC1} lds",
                            tag=('cw', n, stride), slot=('C', sl), gen=(n, stride), m0reuse=True)))
    return out, Ins(f"s_add_u32 s{cWo}, s{cWo}, 10240")
def c_bloads(n, stride=0):
    out = []
    for ks in range(2):
        for qs in range(2):
            out.append(([], Ins(f"buffer_load_dwordx4 {cb(n,(ks*2+qs)*4)}, v{cvB+2*ks+qs}, s[16:19], s{cBo} offen{SC1}", tag=('cb', n, stride))))
    return out, Ins(f"s_add_u32 s{cBo}, s{cBo}, 8192")
def c_aread(n, f, stride=0):
    sl = n % C_NS; ks, t = divmod(f, 10); sh, tt = divmod(t, 5)
    return Ins(f"ds_read_b128 {ar(cRING+4*(f%10))}, v{cvA + sl//3} offset:{(sl%3)*C_STAGE + sh*10240 + ks*5120 + tt*1024}",
               tag=('caf', n*20+f, stride*20), slot=('C', sl), gen=(n, stride))
def c_stage(n, acc, stride=0, czero=False, wl=True, bl=True, nxt=True, extra=(), wtags=(), after=(), more=(), cap=54, force_bar=False):
    M = []
    for ks in range(2):
        for t in range(10):
            for qs in range(2):
                d = ar(acc + (t*2+qs)*4)
                M.append(Ins(f"{MF} {d}, {ar(cRING+4*((ks*10+t)%10))}, {cb(n,(ks*2+qs)*4)}, {'0' if (czero and ks==0) else d}"))
    G = Gaps(M)
    BG = 2*(20-C_LA) - 1
    for f in range(C_LA, 20): G.mem(2*(f-C_LA), c_aread(n, f, stride))
    if nxt:
        for f in range(C_LA): G.mem(2*(20+f-C_LA), c_aread(n+1, f, stride))
        G.sc(BG-1, Wait(vm=[('cw', n+1, stride), ('cb', n+1, stride)] + list(wtags), cap=cap)); G.sc(BG, Ins("s_barrier"))
    for f in range(2, 20, 2):
        G.sc(2*f-2 if 2*f-1 != BG else 2*f-3, Wait(lgkm=('caf', n*20+f+1, stride*20)))
    if nxt: G.sc(38, Wait(lgkm=('caf', (n+1)*20+1, stride*20)))
    L = list(more)
    if wl:
        l, po = c_wloads(n+C_D, stride); L += l; L.append(([po], None))
    if bl:
        l, po = c_bloads(n+C_D, stride); L += l; L.append(([po], None))
    for e in extra: G.sc(0, e)
    for m in after: G.mem(BG+2, m)
    nm = sum(1 for sc, m in L if m is not None)
    free = [g for g in range(1, 38, 2) if not G.N[g] and g != BG]
    slots = [free[min(len(free)-1, int((k+0.5)*len(free)/max(nm,1)))] for k in range(nm)] + [39]
    k = 0; lo = 0
    for sc, m in L:
        g = max(slots[k] - 1, lo); pos = []
        for s_ in reversed(sc):
            while g > lo and not G.sc_free(g): g -= 1
            pos.append((g, s_))
            if g > lo: g -= 1
        for g_, s_ in reversed(pos): G.sc(g_, s_)
        if pos: lo = max(lo, max(x[0] for x in pos))
        if m is not None:
            G.mem(slots[k], m); lo = min(slots[k] + 1, 39); k += 1
    return G
def c_pub(acc, kind):
    out = []
    for sg in range(1, 4):
        qs, sh = sg & 1, sg >> 1
        sc = [f"s_xor_b32 s{sT}, s{cC}, {sg}", f"s_mul_i32 s{sT}, s{sT}, {3*2*4*5120}", f"s_add_u32 s{sT}, s{sT}, s{cXB}", f"s_add_u32 s{sT}, s{sT}, {((sg-1)*2+kind)*4*5120}"]
        for tt in range(5):
            out.append(([Ins(x) for x in sc] if tt == 0 else [],
                        Ins(f"buffer_store_dwordx4 {ar(acc+((sh*5+tt)*2+qs)*4)}, v{vL16 if tt < 4 else vL1K}, s[20:23], s{sT} offen offset:{min(tt,3)*1024}{SC1}", tag=('pub', kind))))
    return out
def c_setup(p):
    p(f"s_lshr_b32 s{cC}, s{sH}, 3")
    p(f"v_mov_b32 v{cvA}, v{vL16}"); p(f"v_add_u32 v{cvA+1}, {3*C_STAGE}, v{vL16}"); p(f"v_add_u32 v{cvA+2}, {6*C_STAGE}, v{vL16}")
    p(f"s_and_b32 s{sT}, s{sW}, 1"); p(f"s_mul_i32 s{cW1}, s{sT}, 5120")
    p(f"s_lshl_b32 s{sT}, s{sT}, 1"); p(f"s_and_b32 s{sT+1}, s{cC}, 1"); p(f"s_add_u32 s{sT+4}, s{sT}, s{sT+1}")
    p(f"s_lshl_b32 s{sT}, s{sT+4}, 10"); p(f"v_add_u32 v{cvB}, s{sT}, v{vL16}"); p(f"v_xor_b32 v{cvB+1}, 1024, v{cvB}")
    p(f"v_add_u32 v{cvB+2}, 4096, v{cvB}"); p(f"v_add_u32 v{cvB+3}, 4096, v{cvB+1}")
    p(f"s_bfe_u32 s{sT}, s{sH}, 0x10002"); p(f"s_lshl_b32 s{sT}, s{sT}, 1"); p(f"s_lshr_b32 s{sT+1}, s{sW}, 1"); p(f"s_add_u32 s{sT}, s{sT}, s{sT+1}")
    p(f"s_lshl_b32 s{sT+2}, s{sI}, 2"); p(f"s_add_u32 s{sT+3}, s{sT}, s{sT+2}")
    p(f"s_mul_i32 s{sT}, s{sT+3}, {240*4096}"); p(f"s_add_u32 s{sT}, s{sT}, {WS_OF}")
    srd(p, 16, kWS, 240*4096, f"s{sT}")
    p(f"s_lshr_b32 s{sT}, s{cC}, 1"); p(f"s_xor_b32 s{sT}, s{sT}, s{sT+1}"); p(f"s_and_b32 s{sT+2}, s{sH}, 3"); p(f"s_lshl_b32 s{sT+5}, s{sT+2}, 1"); p(f"s_add_u32 s{sT}, s{sT}, s{sT+5}")
    p(f"s_mul_i32 s{sT}, s{sT}, {240*5120}"); p(f"s_add_u32 s{sT}, s{sT}, {WS_WP}")
    srd(p, 12, kWS, 240*5120, f"s{sT}")
    p(f"s_mul_i32 s{cM}, s{sW}, 5120")
    p(f"s_lshl_b32 s{sT+3}, s{sT+3}, 2"); p(f"s_add_u32 s{sT+3}, s{sT+3}, s{sT+4}"); p(f"s_mul_i32 s{cXO}, s{sT+3}, 20480")
    p(f"s_mul_i32 s{sT+2}, s{sT+2}, 320"); p(f"s_add_u32 s{cXO}, s{cXO}, s{sT+2}")
    p(f"s_lshr_b32 s{sT}, s{cC}, 1"); p(f"s_mul_i32 s{sT}, s{sT}, 160"); p(f"s_add_u32 s{cXO}, s{cXO}, s{sT}")
    p(f"s_lshl_b32 s{cTile}, s{sI}, 3"); p(f"s_and_b32 s{sT}, s{sH}, 7"); p(f"s_add_u32 s{cTile}, s{cTile}, s{sT}")
    p(f"s_mul_i32 s{cXB}, s{cTile}, {4*3*2*4*5120}"); p(f"s_add_u32 s{cXB}, s{cXB}, s{cM}")
    srd(p, 20, kWS, SZ_XB, WS_XB)
    p(f"s_lshl_b32 s{sFO}, s{sI}, 2"); p(f"s_add_u32 s{sFO}, s{sFO}, s{cC}"); p(f"s_lshl_b32 s{sFO}, s{sFO}, 7"); p(f"s_add_u32 s{sFO}, s{sFO}, {FL_O}")
    p(f"s_lshl_b32 s{sFH}, s{sI}, 5"); p(f"s_add_u32 s{sFH}, s{sFH}, s{sH}"); p(f"s_lshl_b32 s{sFH}, s{sFH}, 3"); p(f"s_add_u32 s{sFH}, s{sFH}, {FL_H}")
    p(f"s_lshl_b32 s{sFX}, s{cTile}, 7"); p(f"s_add_u32 s{sFX}, s{sFX}, {FL_X}")
def c_fcursors():
    return [Ins(x) for x in (f"s_mul_i32 s{cWo}, s{cC}, 12", f"s_add_u32 s{cWo}, s{cWo}, 192", f"s_lshl_b32 s{cBo}, s{cWo}, 12",
                             f"s_mul_i32 s{cWo}, s{cWo}, 5120", f"s_add_u32 s{cWo}, s{cWo}, s{cW1}")]
def flat_loads(ns):
    pf = []
    for n in ns:
        for l, po in (c_wloads(n), c_bloads(n)):
            for sc, m in l: pf.append([list(sc), m, []])
            pf[-1][2].append(po)
    return pf

def phase_c(p):
    NE = 3 if OPT['early'] else 0
    if not NE:
        hpoll(p, "C_ph"); p.add(c_fcursors())
    pf = flat_loads(range(NE, C_D))
    if NE: p.wait(vm=[('cw', 0), ('cb', 0)])
    for qt in range(4): p(f"v_rcp_f32 v{4+2*qt}, v{LR+qt}")
    srd(p, 4, kX, SZ_XN); srd(p, 8, kOUT, SZ_XN)
    for qt in range(4): p(f"v_mov_b32 v{4+2*qt+1}, v{4+2*qt}")
    n = 0; stores = []
    for j in range(6):
        for qt in range(4):
            b = 28 + 8*(n % 2); d = 64 + 4*n; n += 1
            for k in range(2 if NE else 3):
                if pf:
                    sc, m, po = pf.pop(0); p.add(sc);
                    if sc: p("s_nop 0")
                    p.add(m); p.add(po)
            for ee in range(2):
                for r in range(4): p(f"v_accvgpr_read_b32 v{b+4*ee+r}, a{((2*j+ee)*4+qt)*4+r}")
            for h in range(4): p(f"v_pk_mul_f32 {vr(b+2*h,2)}, {vr(b+2*h,2)}, {vr(4+2*qt,2)}")
            for h in range(4): p(f"v_cvt_pk_bf16_f32 v{d+h}, v{b+2*h}, v{b+2*h+1}")
            sc = []
            if qt == 0: sc = [Ins(f"s_mul_i32 s{sT+3}, s{sH}, {6*4096}")] if j == 0 else [Ins(f"s_add_u32 s{sT+3}, s{sT+3}, 4096")]
            stores.append((sc, Ins(f"buffer_store_dwordx4 {vr(d)}, v{vL16}, s[24:27], s{sT+3} offen offset:{qt*1024}{SC1}", tag=('O', 0))))
            if not pf and n >= 12 and OPT.get('cst', 1):
                sc, m = stores.pop(0); p.add(sc); p.add(m)
    assert not pf
    stamp(p, 8)
    p(f"s_and_b32 s{sT+4}, s{sH}, 7"); p(f"s_lshl_b32 s{sT+4}, s{sT+4}, 3"); p(f"s_add_u32 s{sT+4}, s{sT+4}, s{sFO}")
    p.add(Wait(vm=[('cw', 0), ('cb', 0)], cap=50)); p("s_barrier")
    for f in range(C_LA): p.add(c_aread(0, f))
    p.wait(lgkm=('caf', 1))
    SG = OPT['sigst']
    per = -(-len(stores) // max(SG-1, 1))
    for n in range(6):
        ex = [Ins(f"s_mul_i32 s{cWo}, s{cC}, {48*5120}"), Ins(f"s_add_u32 s14, s{cWo}, {48*5120}"), Ins(f"s_add_u32 s{cWo}, s{cWo}, s{cW1}")] if n == 0 else ()
        sig = (n == SG)
        mo = stores[:per]; stores = stores[per:]
        G = c_stage(n, cF, czero=(n == 0), bl=False, nxt=(n < 5), extra=ex, wtags=[('O', 0)] if sig else (), after=[signal(sT+4)] if sig else (), more=mo, cap=50)
        p.add(G.items())
        if sig: stamp(p, 9)
    assert not stores
    if SG > 4:
        p.wait(vm=('O', 0)); p("s_barrier"); p.add(signal(sT+4)); stamp(p, 9)
    stamp(p, 10)
    poll(p, "C_po", vP8, sFO)
    stamp(p, 11)
    p(f"s_mul_i32 s{cBo}, s{cC}, {48*4096}"); p(f"s_add_u32 s18, s{cBo}, {48*4096}")
    for n in range(6, 6+C_D):
        l, po = c_bloads(n)
        for sc, m in l: p.add(sc); p.add(m)
        p.add(po)
    p("s_barrier")
    for f in range(C_LA): p.add(c_aread(6, f))
    p(f"s_lshl_b32 s{sT+4}, s{cC}, 3"); p(f"s_add_u32 s{sT+4}, s{sT+4}, s{sFX}")
    p(f"v_and_b32 v4, 15, v{vLANE}"); p(f"v_lshrrev_b32 v5, 4, v{vLANE}")
    p("v_mul_u32_u24 v4, 1280, v4"); p("v_lshl_add_u32 v4, v5, 3, v4")
    if OPT['fpub']:
        p(f"s_mov_b32 s{sCnt}, 2")
        p.wait(vm=('cb', 6), lgkm=('caf', 6*20+1))
        pub = c_pub(cF, 1)
        for n in range(6, 14):
            p.add(c_stage(n, cS, czero=(n == 6), more=pub[2*(n-6):2*(n-6)+2], cap=52).items())
        n0 = 14; trips = 2
    else:
        for r in range(80): p(f"v_accvgpr_write_b32 a{cS+r}, 0")
        p(f"s_mov_b32 s{sCnt}, 3")
        p.wait(vm=('cb', 6), lgkm=('caf', 6*20+1))
        n0 = 6; trips = 3
    p(".p2align 6"); p("C_loop:")
    p.loop_begin("C_loop", trips)
    for n in range(n0, n0+8):
        G = c_stage(n, cS, 8)
        if n == n0+7:
            G.sc(31, Ins(f"s_sub_u32 s{sCnt}, s{sCnt}, 1")); G.sc(39, Ins(f"s_cmp_lg_u32 s{sCnt}, 0"))
        p.add(G.items())
    p("s_cbranch_scc1 C_loop")
    p.loop_end()
    stamp(p, 12)
    p("s_nop 7"); p("s_waitcnt vmcnt(30)")
    for sc, m in c_pub(cS, 0): p.add(sc); p.add(m)
    if not OPT['fpub']:
        for sc, m in c_pub(cF, 1): p.add(sc); p.add(m)
    R = 64; F = 84
    for tt in range(5):
        for r in range(4): p(f"v_accvgpr_read_b32 v{R+tt*4+r}, a{cS+(tt*2)*4+r}")
        for r in range(4): p(f"v_accvgpr_read_b32 v{F+tt*4+r}, a{cF+(tt*2)*4+r}")
    p("s_waitcnt vmcnt(0) lgkmcnt(0)"); p("s_barrier")
    p.add(signal(sT+4))
    stamp(p, 13)
    for t in range(5): p(f"buffer_load_dwordx2 {vr(6+2*t,2)}, v4, s[4:7], s{cXO} offen offset:{32*t}")
    poll(p, "C_px", vP4, sFX)
    stamp(p, 14)
    p(f"s_mul_i32 s{sT}, s{cC}, {3*2*4*5120}"); p(f"s_add_u32 s{sT}, s{sT}, s{cXB}")
    def qb(j): return 104 + 20*j
    for sg in range(3):
        for kind in range(2):
            j = kind*3 + sg
            for tt in range(5):
                p(f"buffer_load_dwordx4 {vr(qb(j)+4*tt)}, v{vL16 if tt < 4 else vL1K}, s[20:23], s{sT} offen offset:{min(tt,3)*1024}{SC1}")
            p(f"s_add_u32 s{sT}, s{sT}, {4*5120}")
    p(f"s_cmp_eq_u32 s2, 0"); p(f"s_cselect_b32 s{sT+1}, 0, 0x10000000")
    p.add(signal(sT+1))
    p("s_waitcnt vmcnt(0)")
    stamp(p, 15)
    for i in range(20):
        p(f"v_add_f32 v{R+i}, v{R+i}, v{qb(0)+i}"); p(f"v_add_f32 v{qb(1)+i}, v{qb(1)+i}, v{qb(2)+i}")
        p(f"v_add_f32 v{F+i}, v{F+i}, v{qb(3)+i}"); p(f"v_add_f32 v{qb(4)+i}, v{qb(4)+i}, v{qb(5)+i}")
    for i in range(20):
        p(f"v_add_f32 v{R+i}, v{R+i}, v{qb(1)+i}"); p(f"v_add_f32 v{F+i}, v{F+i}, v{qb(4)+i}")
    T = 104
    def rnd2(a, b, t):
        p(f"v_cvt_pk_bf16_f32 v{t}, v{a}, v{b}"); p(f"v_lshlrev_b32 v{a}, 16, v{t}"); p(f"v_and_b32 v{b}, 0xffff0000, v{t}")
    for i in range(0, 20, 2): rnd2(R+i, R+i+1, T); rnd2(F+i, F+i+1, T+1)
    p(f"s_mov_b32 s{sT}, {f32(-LOG2E)}")
    for i in range(20): p(f"v_mul_f32 v{T+i}, s{sT}, v{F+i}")
    for i in range(20): p(f"v_exp_f32 v{T+i}, v{T+i}")
    for i in range(20): p(f"v_add_f32 v{T+i}, 1.0, v{T+i}")
    for i in range(20): p(f"v_rcp_f32 v{T+i}, v{T+i}")
    for i in range(20): p(f"v_mul_f32 v{F+i}, v{F+i}, v{T+i}")
    for i in range(0, 20, 2): rnd2(F+i, F+i+1, T)
    for i in range(20): p(f"v_mul_f32 v{R+i}, v{R+i}, v{F+i}")
    for i in range(0, 20, 2): rnd2(R+i, R+i+1, T)
    for i in range(10):
        p(f"v_lshlrev_b32 v{T}, 16, v{6+i}"); p(f"v_and_b32 v{T+1}, 0xffff0000, v{6+i}")
        p(f"v_add_f32 v{T}, v{T}, v{R+2*i}"); p(f"v_add_f32 v{T+1}, v{T+1}, v{R+2*i+1}")
        p(f"v_cvt_pk_bf16_f32 v{F+i}, v{T}, v{T+1}")
    for t in range(5): p(f"buffer_store_dwordx2 {vr(F+2*t,2)}, v4, s[8:11], s{cXO} offen offset:{32*t}")

def a_wloads(it):
    st = it % 3; out = []; sl = [('A', st)]
    for j in range(2):
        for blk in range(3):
            sc = [Ins(f"s_add_u32 m0, s{sWQm}, {st*A_STAGE + blk*8192 + j*1024 - blk*128}")]
            if blk == 0: sc.insert(0, Ins(f"s_mov_b32 s{sT}, {(it*64 + j*16)*12288}"))
            out.append((sc, Ins(f"buffer_load_dwordx4 v{vWQ}, s[12:15], s{sT} offen offset:{blk*128} lds", tag=('A', it), slot=sl, gen=(it, 0))))
    for j in range(3):
        sc = [Ins(f"s_add_u32 m0, s{sGUm}, {st*A_STAGE + 24576 + j*1024}")]
        if j == 0: sc.insert(0, Ins(f"s_mov_b32 s{sT}, {it*64*3072}"))
        out.append((sc, Ins(f"buffer_load_dwordx4 v{vGU+j}, s[16:19], s{sT} offen lds", tag=('A', it), slot=sl, gen=(it, 0))))
    return out
vTA = 44; vTB = 45; vTD = 46
def touch_setup(p):
    t = vT
    p(f"s_lshl_b32 s{sT}, s{sI}, 3"); p(f"s_lshl_b32 s{sT+1}, s{sW}, 1"); p(f"s_add_u32 s{sT+1}, s{sT+1}, s{sT}")
    p(f"v_and_b32 v{t}, 1, v{vLANE}"); p(f"v_lshrrev_b32 v{t+1}, 1, v{vLANE}")
    p(f"v_add_u32 v{t+2}, s{sT+1}, v{t}"); p(f"v_mul_u32_u24 v{t+2}, 12288, v{t+2}"); p(f"v_lshl_add_u32 v{t+2}, v{t+1}, 7, v{t+2}")
    p(f"v_mov_b32 v{t+3}, 0x10000000"); p(f"v_cmp_gt_u32 vcc, 6, v{vLANE}"); p("s_nop 1"); p(f"v_cndmask_b32 v{vTA}, v{t+3}, v{t+2}, vcc")
    p(f"s_and_b32 s{sT+1}, s{sW}, 1"); p(f"s_lshl_b32 s{sT+1}, s{sT+1}, 2"); p(f"s_add_u32 s{sT+1}, s{sT+1}, s{sT}")
    p(f"v_add_u32 v{t+2}, s{sT+1}, v{t+1}"); p(f"v_mul_u32_u24 v{t+2}, 3072, v{t+2}"); p(f"v_mul_u32_u24 v{t}, 92, v{t}"); p(f"v_add_u32 v{t+2}, v{t+2}, v{t}")
    p(f"v_cmp_gt_u32 vcc, 8, v{vLANE}"); p("s_nop 1"); p(f"v_cndmask_b32 v{vTB}, v{t+3}, v{t+2}, vcc")
def touch(it):
    if not OPT['warm'] or it > 9: return []
    d = vTD + 2*(it % 4)
    return [([Ins(f"s_mov_b32 s{sT}, {it*64*12288}")], Ins(f"buffer_load_dword v{d}, v{vTA}, s[12:15], s{sT} offen")),
            ([Ins(f"s_mov_b32 s{sT}, {it*64*3072}")], Ins(f"buffer_load_dword v{d+1}, v{vTB}, s[16:19], s{sT} offen"))]
def a_xloads(it):
    st = it % 3; out = []
    for ks in range(2):
        for qt in range(4):
            sc = [Ins(f"s_mov_b32 s{sT+1}, {(it*2+ks)*4096}")] if qt == 0 else []
            out.append((sc, Ins(f"buffer_load_dwordx4 {ar(XB+32*st+(ks*4+qt)*4)}, v{vL16}, s[20:23], s{sT+1} offen offset:{qt*1024}{SC1}", tag=('A', it))))
    return out
def a_read(it, f):
    st = it % 3; ks, nt = divmod(f, 18); rs = (it*36+f) % 8; o = []
    for rd in range(2):
        if nt < 12:
            j = nt >> 1; e = nt & 1
            a = vAQ + 3*st + (j & 1); off = (j >> 1)*8192 + ks*4096 + rd*2048 + 8*e
        else:
            mtx, tt = divmod(nt-12, 3)
            a = vAQ + 3*st + 2; off = 24576 + mtx*6144 + ks*3072 + rd*1536 + tt*32
        o.append(Ins(f"ds_read_b64_tr_b16 {ar(RING+4*rs+2*rd,2)}, v{a} offset:{off}", tag=('af', it*36+f), slot=('A', st), gen=(it, 0)))
    return o

SCR = 81920
def side_issue(p):
    p(f"s_and_b32 s{sT}, s{sH}, 1"); p(f"s_cmp_eq_u32 s{sT}, 1"); p("s_cbranch_scc1 S_o0")
    srd(p, 4, kX, SZ_XN)
    p(f"v_and_b32 v64, 15, v{vLANE}"); p(f"v_lshrrev_b32 v65, 4, v{vLANE}")
    p("v_mul_u32_u24 v66, 1280, v64"); p("v_lshl_add_u32 v66, v65, 4, v66")
    p(f"s_lshl_b32 s{sT+5}, s{sI}, 4"); p(f"s_lshr_b32 s{sT}, s{sH}, 1"); p(f"s_add_u32 s{sT+5}, s{sT+5}, s{sT}")
    p(f"s_mul_i32 s{sT}, s{sT+5}, 20480"); p(f"s_mul_i32 s{sT+1}, s{sW}, 320"); p(f"s_add_u32 s{sT}, s{sT}, s{sT+1}")
    for j in range(5): p(f"buffer_load_dwordx4 {vr(80+4*j)}, v66, s[4:7], s{sT} offen offset:{64*j}")
    wsrds(p)
    p("s_branch S_c0")
    p("S_o0:")
    wsrds(p)
    p("S_c0:")

def wsrds(p):
    p(f"s_mul_i32 s{sT+2}, s{sH}, 384")
    srd(p, 12, kWQ, None, f"s{sT+2}"); p(f"s_sub_u32 s14, {640*12288}, s{sT+2}")
    p(f"s_cmp_lt_u32 s{sW}, 2"); p(f"s_cselect_b32 s16, s{kWG}, s{kWU}"); p(f"s_cselect_b32 s17, s{kWG+1}, s{kWU+1}")
    p(f"s_mul_i32 s{sT+2}, s{sH}, 96")
    srd(p, 16, 16, None, f"s{sT+2}"); p(f"s_sub_u32 s18, {640*3072}, s{sT+2}")

def pack_issue(p):
    p(f"s_lshl_b32 s{sT+3}, s{sI}, 5"); p(f"s_add_u32 s{sT+3}, s{sT+3}, s{sH}")
    p(f"s_cmp_lt_u32 s{sT+3}, 192")
    p(f"s_cselect_b32 s60, s{kWO}, s{kWD}"); p(f"s_cselect_b32 s61, s{kWO+1}, s{kWD+1}")
    p(f"s_mov_b32 s{sT}, {6144*1280}"); p(f"s_cselect_b32 s62, s{sT}, {1536*1280}"); p("s_mov_b32 s63, 0x20000")
    p(f"s_cselect_b32 s{sT}, 0, 192"); p(f"s_sub_u32 s{sT}, s{sT+3}, s{sT}"); p(f"s_mul_i32 s{sT}, s{sT}, 40960")
    p(f"s_mul_i32 s{sT+1}, s{sW}, 10240"); p(f"s_add_u32 s{sT}, s{sT}, s{sT+1}")
    for j in range(3):
        p(f"s_add_u32 m0, s{sT+1}, {4096*j}"); p("s_nop 0")
        for k in range(4 if j < 2 else 2): p(f"buffer_load_dwordx4 v{vL16}, s[60:63], s{sT} offen offset:{1024*k} lds", m0reuse=True, tag=('pk', 0), slot=[('A', 0), ('A', 1)], gen=(99, 0))
        p(f"s_add_u32 s{sT}, s{sT}, 4096")
    srd(p, 96, kWS, SZ_WP, WS_WP)
    p(f"s_mul_i32 s69, s{sW}, 480"); p(f"s_add_u32 s69, s69, s{sT+3}"); p(f"s_mul_i32 s69, s69, 5120")
    p(f"s_cmp_lt_u32 s{sT+3}, 240"); p(f"s_cselect_b32 s69, s69, 0x10000000")
vPK = 19
def pack_setup(p):
    p(f"v_lshrrev_b32 v{vPK}, 2, v{vLANE}"); p(f"v_mul_u32_u24 v{vPK}, 1280, v{vPK}")
    p(f"v_and_b32 v{vT+1}, 3, v{vLANE}"); p(f"v_lshl_add_u32 v{vPK}, v{vT+1}, 3, v{vPK}")
    p(f"s_mul_i32 s{sT}, s{sW}, 320"); p(f"v_add_u32 v{vPK}, s{sT}, v{vPK}")
def pkreg(t, o=0, n=4): return vr(28+4*t+o, n) if t < 8 else ar(224+4*(t-8)+o, n)
def pack_reads():
    return [[[], Ins(f"ds_read_b64_tr_b16 {pkreg(t,2*rd,2)}, v{vPK} offset:{32*t + rd*16*1280}", slot=('A', 0)), []] for t in range(10) for rd in range(2)]
def pack_stores():
    return [[[Ins(f"s_add_u32 s69, s69, {240*5120}")] if t == 5 else [],
             Ins(f"buffer_store_dwordx4 {pkreg(t)}, v{vL16 if t%5 < 4 else vL1K}, s[96:99], s69 offen offset:{min(t%5,3)*1024}{SC1}", tag=('H', 0)), []] for t in range(10)]
def fill(G, lst, g0, g1, step):
    BARG = OPT['barg']; g = g0
    while lst and g < g1:
        sc, m, po = lst[0]
        if G.cap[g] >= 1 and not (BARG-2 <= g <= BARG+1):
            lst.pop(0)
            for s_ in sc: G.sc(g-1, s_)
            G.N[g].append(m); G.cap[g] -= 1
            for s_ in po: G.sc(g+1, s_)
            g += step
        else: g += 1

def side_work(p, nyoung):
    p(f"s_and_b32 s{sT}, s{sH}, 1"); p(f"s_cmp_eq_u32 s{sT}, 1"); p("s_cbranch_scc1 S_pk1")
    ln = Prog(); q = ln
    srd(q, 4, kWS, SZ_XN)
    q(f"v_lshlrev_b32 v67, 4, v64"); q(f"v_add_u32 v67, {SCR}, v67")
    q(f"s_lshl_b32 s{sT}, s{sW}, 2"); q(f"v_add_u32 v68, s{sT}, v67")
    q(f"s_waitcnt vmcnt({nyoung})")
    X = 80; U = 104
    for i in range(20):
        q(f"v_lshlrev_b32 v{U+2*i}, 16, v{X+i}"); q(f"v_and_b32 v{U+2*i+1}, 0xffff0000, v{X+i}")
    q(f"v_add_f32 v69, v{U}, v{U+1}"); q(f"v_add_f32 v70, v{U+2}, v{U+3}")
    for i in range(4, 40, 2):
        q(f"v_add_f32 v69, v69, v{U+i}"); q(f"v_add_f32 v70, v70, v{U+i+1}")
    q("v_add_f32 v69, v69, v70")
    xlane(q, "v_add_f32", 69, 70)
    q("ds_write_b32 v68, v69"); q("s_waitcnt lgkmcnt(0)"); q("s_barrier")
    q("ds_read_b128 v[72:75], v67"); q("s_waitcnt lgkmcnt(0)")
    q("v_add_f32 v72, v72, v73"); q("v_add_f32 v74, v74, v75"); q("v_add_f32 v72, v72, v74")
    q(f"v_mul_f32 v71, {f32(1/640)}, v72")
    q("v_mov_b32 v69, 0"); q("v_mov_b32 v70, 0")
    for i in range(0, 40, 2):
        q(f"v_sub_f32 v72, v{U+i}, v71"); q(f"v_sub_f32 v73, v{U+i+1}, v71")
        q("v_fmac_f32 v69, v72, v72"); q("v_fmac_f32 v70, v73, v73")
    q("v_add_f32 v69, v69, v70")
    xlane(q, "v_add_f32", 69, 70)
    q("ds_write_b32 v68, v69 offset:256"); q("s_waitcnt lgkmcnt(0)"); q("s_barrier")
    q("ds_read_b128 v[72:75], v67 offset:256"); q("s_waitcnt lgkmcnt(0)")
    q("v_add_f32 v72, v72, v73"); q("v_add_f32 v74, v74, v75"); q("v_add_f32 v72, v72, v74")
    q(f"v_mul_f32 v72, {f32(1/640)}, v72")
    q("v_cvt_pk_bf16_f32 v73, v71, v72")
    q("v_lshlrev_b32 v71, 16, v73"); q("v_and_b32 v72, 0xffff0000, v73")
    q(f"v_add_f32 v72, {f32(1e-5)}, v72")
    q("v_cvt_pk_bf16_f32 v72, v72, v72"); q("v_lshlrev_b32 v72, 16, v72")
    q("v_sqrt_f32 v72, v72"); q("s_nop 0")
    q("v_cvt_pk_bf16_f32 v72, v72, v72"); q("v_lshlrev_b32 v72, 16, v72")
    q("v_rcp_f32 v72, v72")
    q(f"s_lshr_b32 s{sT}, s{sT+5}, 2"); q(f"s_mul_i32 s{sT}, s{sT}, 81920")
    q(f"s_and_b32 s{sT+1}, s{sT+5}, 3"); q(f"s_lshl_b32 s{sT+1}, s{sT+1}, 10"); q(f"s_add_u32 s{sT}, s{sT}, s{sT+1}")
    q(f"s_mul_i32 s{sT+1}, s{sW}, 20480"); q(f"s_add_u32 s{sT}, s{sT}, s{sT+1}")
    for i in range(20):
        q(f"v_sub_f32 v73, v{U+2*i}, v71"); q(f"v_sub_f32 v74, v{U+2*i+1}, v71")
        q("v_cvt_pk_bf16_f32 v73, v73, v74")
        q("v_and_b32 v74, 0xffff0000, v73"); q("v_lshlrev_b32 v73, 16, v73")
        q("v_mul_f32 v73, v73, v72"); q("v_mul_f32 v74, v74, v72")
        q(f"v_cvt_pk_bf16_f32 v{X+i}, v73, v74")
        if i % 4 == 3:
            q(f"buffer_store_dwordx4 {vr(X+i-3)}, v{vL16}, s[4:7], s{sT} offen{SC1}"); q(f"s_add_u32 s{sT}, s{sT}, 4096")
    q(f"s_lshl_b32 s{sT+1}, s{sT+5}, 3"); q(f"s_add_u32 s{sT+1}, s{sT+1}, {FL_LN}")
    q("s_waitcnt vmcnt(0)"); q("s_barrier")
    q.add(signal(sT+1))
    for sc, m in a_wloads(1):
        q.add(sc); q("s_nop 0"); q.add(m)
    q("s_branch S_c1")
    pk = Prog(); q = pk
    q("S_pk1:")
    for sc, m in a_wloads(1):
        q.add(sc); q("s_nop 0"); q.add(m)
    q("S_c1:")
    return ln.items, pk.items

def kernel():
    p = Prog()
    p("s_cmp_ge_u32 s2, 256"); p("s_cbranch_scc1 K_end")
    p(f"s_load_dwordx16 s[72:87], s[0:1], 0"); p(f"s_load_dwordx8 s[88:95], s[0:1], 64")
    p(f"v_lshrrev_b32 v1, 6, v0"); p(f"v_and_b32 v{vLANE}, 63, v0")
    p(f"v_readfirstlane_b32 s{sW}, v1")
    p(f"s_and_b32 s{sH}, s2, 7"); p(f"s_lshl_b32 s{sH}, s{sH}, 2"); p(f"s_bfe_u32 s{sT}, s2, 0x20003"); p(f"s_add_u32 s{sH}, s{sH}, s{sT}")
    p(f"s_lshr_b32 s{sI}, s2, 5")
    p(f"v_lshlrev_b32 v{vL16}, 4, v{vLANE}"); p(f"v_add_u32 v{vL1K}, 1024, v{vL16}")
    if OPT['stamp']: p(f"v_mov_b32 v{vSTAMP}, 0")
    stamp(p, 0)
    p("s_waitcnt lgkmcnt(0)")
    side_issue(p)
    srd(p, sFL, kWS, SZ_FL, WS_FL)
    p(f"s_load_dwordx2 s[{sNON}:{sNON+1}], s[{sFL}:{sFL+1}], 0")
    t = vT
    p(f"v_lshrrev_b32 v{t}, 3, v2"); p(f"v_and_b32 v{t+1}, 7, v2"); p(f"v_bfe_u32 v{t+2}, v2, 4, 2")
    p(f"v_lshlrev_b32 v{t+3}, 1, v{t+2}"); p(f"v_xor_b32 v{t+3}, v{t+3}, v{t+1}"); p(f"v_lshlrev_b32 v{t+3}, 4, v{t+3}")
    p(f"v_lshrrev_b32 v{t+4}, 2, v{t}"); p(f"v_lshlrev_b32 v{t+4}, 3, v{t+4}")
    p(f"v_and_b32 v{t+5}, 3, v{t}"); p(f"v_add_u32 v{t+4}, v{t+4}, v{t+5}")
    p(f"s_lshr_b32 s{sT+2}, s{sW}, 1"); p(f"s_lshl_b32 s{sT+2}, s{sT+2}, 5")
    p(f"s_and_b32 s{sT+3}, s{sW}, 1"); p(f"s_lshl_b32 s{sT+3}, s{sT+3}, 2"); p(f"s_add_u32 s{sT+2}, s{sT+2}, s{sT+3}")
    p(f"v_add_u32 v{t+4}, s{sT+2}, v{t+4}")
    p(f"v_mul_u32_u24 v{t+4}, 12288, v{t+4}"); p(f"v_add_u32 v{vWQ}, v{t+4}, v{t+3}")
    p(f"s_lshl_b32 s{sT+2}, s{sW}, 3"); p(f"v_add_u32 v{t+4}, s{sT+2}, v{t}")
    p(f"v_mul_u32_u24 v{t+5}, 384, v{t+4}"); p(f"v_add_u32 v{vDV}, v{t+5}, v{t+3}")
    p(f"v_bfe_u32 v{t+6}, v{t+4}, 1, 3"); p(f"v_xor_b32 v{t+6}, v{t+6}, v{t+1}")
    p(f"v_lshl_add_u32 v{vDK}, v{t+6}, 4, v{t+5}")
    p(f"s_and_b32 s{sT+3}, s{sW}, 1"); p(f"s_lshl_b32 s{sT+3}, s{sT+3}, 5")
    for j in range(3):
        p(f"v_add_u32 v{t+4}, {64*j}, v2")
        p(f"v_mul_u32_u24 v{t+5}, 171, v{t+4}"); p(f"v_lshrrev_b32 v{t+5}, 10, v{t+5}")
        p(f"v_mul_u32_u24 v{t+6}, 6, v{t+5}"); p(f"v_sub_u32 v{t+6}, v{t+4}, v{t+6}")
        p(f"v_bfe_u32 v{t+7}, v{t+5}, 2, 2"); p(f"v_lshlrev_b32 v{t+7}, 3, v{t+7}")
        p(f"v_lshrrev_b32 v{t+8}, 4, v{t+5}"); p(f"v_lshl_add_u32 v{t+7}, v{t+8}, 2, v{t+7}")
        p(f"v_and_b32 v{t+8}, 3, v{t+5}"); p(f"v_add3_u32 v{t+7}, v{t+7}, v{t+8}, s{sT+3}")
        p(f"v_mul_u32_u24 v{t+7}, 3072, v{t+7}"); p(f"v_lshl_add_u32 v{vGU+j}, v{t+6}, 4, v{t+7}")
    p(f"s_lshl_b32 s{sWQm}, s{sW}, 11"); p(f"s_mul_i32 s{sGUm}, s{sW}, 3072")
    ny = 0
    for sc, m in a_wloads(0):
        p.add(sc); p("s_nop 0"); p.add(m); ny += 1
    touch_setup(p)
    for it in range(1, OPT['td']):
        for sc, m in touch(it): p.add(sc); p.add(m); ny += 1
    p(f"v_lshrrev_b32 v{t}, 2, v2"); p(f"v_and_b32 v{t+1}, 3, v2"); p(f"v_bfe_u32 v{t+2}, v2, 3, 2")
    p(f"v_lshlrev_b32 v{t+3}, 7, v{t}")
    p(f"v_lshlrev_b32 v{t+4}, 1, v{t+2}"); p(f"v_xor_b32 v{t+4}, v{t+4}, v{t+1}")
    p(f"v_lshl_add_u32 v{vAQ}, v{t+4}, 4, v{t+3}"); p(f"v_xor_b32 v{vAQ+1}, 64, v{vAQ}")
    p(f"v_mul_u32_u24 v{t+4}, 96, v{t}"); p(f"v_lshl_add_u32 v{vAQ+2}, v{t+1}, 3, v{t+4}")
    for s in (1, 2):
        for j in range(3): p(f"v_add_u32 v{vAQ+3*s+j}, {s*A_STAGE}, v{vAQ+j}")
    p(f"v_lshl_add_u32 v{t+4}, v{t+2}, 5, v{t+3}"); p(f"v_lshl_add_u32 v{t+4}, v{t+1}, 3, v{t+4}")
    p(f"v_add_u32 v{vV}, {V_RING}, v{t+4}")
    for u in range(1, 4): p(f"v_xor_b32 v{vV+u}, {32*u}, v{vV}")
    p(f"v_lshlrev_b32 v{vP4}, 3, v{t+1}")
    p(f"v_and_b32 v{t}, 15, v2"); p(f"v_lshrrev_b32 v{t+1}, 4, v2"); p(f"v_bfe_u32 v{t+2}, v2, 1, 3")
    p(f"v_xor_b32 v{t+1}, v{t+1}, v{t+2}"); p(f"v_lshlrev_b32 v{t}, 7, v{t}"); p(f"v_lshl_add_u32 v{t}, v{t+1}, 4, v{t}")
    p(f"v_add_u32 v{vK0}, {K_RING}, v{t}"); p(f"v_xor_b32 v{vK0+1}, 64, v{vK0}")
    p(f"v_and_b32 v{vP8}, 7, v2"); p(f"v_lshlrev_b32 v{vP8}, 3, v{vP8}")
    p(f"v_mov_b32 v{t}, 0x10000000"); p("v_cmp_eq_u32 vcc, 0, v0"); p("s_nop 1"); p(f"v_cndmask_b32 v{vSIG}, v{t}, v0, vcc")
    p(f"s_lshl_b32 s{sT+1}, s{sI}, 2"); p(f"s_add_u32 s{sT+1}, s{sT+1}, s{sW}")
    p(f"s_mul_i32 s{sT+2}, s{sT+1}, 81920"); srd(p, 20, kWS, 81920, f"s{sT+2}")
    p(f"s_mul_i32 s{sT+2}, s{sT+1}, {240*4096}"); p(f"s_add_u32 s{sT+2}, s{sT+2}, {WS_OF}"); srd(p, 24, kWS, 240*4096, f"s{sT+2}")
    p(f"s_lshl_b32 s{sT+4}, s{sT+1}, 5"); p(f"s_add_u32 s{sT+4}, s{sT+4}, {FL_LN}")
    p(f"s_lshl_b32 s{sT+2}, s{sW}, 10")
    p(f"s_add_u32 s{sKb}, s{sT+2}, {K_RING}"); p(f"s_add_u32 s{sVb}, s{sT+2}, {V_RING}")
    p(f"s_mov_b32 s{sPass}, 0")
    p("s_waitcnt lgkmcnt(0)")
    p(f"s_add_u32 s{sNON}, s{sNON}, 0x7f4a7c15"); p(f"s_addc_u32 s{sNON+1}, s{sNON+1}, 0x9e3779b9")
    p(f"v_mov_b32 v{vNON}, s{sNON}"); p(f"v_mov_b32 v{vNON+1}, s{sNON+1}")
    stamp(p, 1)
    head = p.items
    ln, pk = side_work(p, ny)
    p = Prog()
    stamp(p, 2)
    poll(p, "A_pl", vP4, sT+4)
    stamp(p, 3)
    for it in range(2):
        for sc, m in a_xloads(it): p.add(sc); p.add(m)
    p(f"s_mul_i32 s{sT+2}, s{sH}, 786432")
    srd(p, 4, kK, 786432, f"s{sT+2}"); srd(p, 8, kV, 786432, f"s{sT+2}")
    p("s_barrier")
    LA = 4
    for f in range(LA): p.add(a_read(0, f))
    p.wait(vm=('A', 0), lgkm=('af', 1))
    stamp(p, 4)
    for it in range(10):
        st = it % 3; M = []
        for ks in range(2):
            for nt in range(18):
                rs = (it*36 + ks*18+nt) % 8
                for qt in range(4):
                    d = vr(QACC + (nt*4+qt)*4) if nt < 12 else ar(((nt-12)*4+qt)*4)
                    c = "0" if (it == 0 and ks == 0) else d
                    M.append(Ins(f"{MF} {d}, {ar(RING+4*rs)}, {ar(XB+32*st+(ks*4+qt)*4)}, {c}"))
        G = Gaps(M)
        BG = 4*(36-LA)
        for f in range(LA, 36):
            r = a_read(it, f); g = 4*(f-LA) - (2 if f >= 30 else 0)
            g = G.mem_from(g, r[0]); G.mem_from(g+1, r[1])
        if it < 9:
            G.sc(BG-1, Wait(vm=('A', it+1), lgkm='all')); G.sc(BG, Ins("s_barrier"))
            g = BG+1
            for f in range(LA):
                r = a_read(it+1, f)
                g = max(g, 4*(36+f-8)+4)
                g = G.mem_from(g, r[0]); g = G.mem_from(g+1, r[1]) + 1
            G.sc(143, Wait(lgkm=('af', (it+1)*36+1)))
        for f in range(2, 36, 2):
            if 4*f-1 < BG-1 or it == 9: G.sc(4*f-1, Wait(lgkm=('af', it*36+f+1)))
        L = []
        if it+2 < 10: L = touch(it+OPT['td']) + a_wloads(it+2) + a_xloads(it+2)
        elif it == 8:
            for tl in range(4):
                for b, (mi, d) in enumerate(kv_dma('K', tl, tl, sKo)):
                    L.append((([Ins(f"s_mov_b32 s{sKo}, {tl*SLOT}")] if b == 0 else []) + [mi], d))
        else:
            for tl in range(3):
                for b, (mi, d) in enumerate(kv_dma('V', tl, tl, sVo)):
                    d.meta['slot'] = [d.meta['slot'], ('A', 1), ('A', 2)]
                    L.append((([Ins(f"s_mov_b32 s{sVo}, {tl*SLOT}")] if b == 0 else []) + [mi], d))
        g = 2
        for sc, m in L:
            while G.N[g] or not G.sc_free(g-1) or (len(sc) > 1 and not G.sc_free(g-2)): g += 1
            for k, s_ in enumerate(reversed(sc)): G.sc(g-1-k, s_)
            G.mem(g, m); g += 4
        assert g < BG
        p.add(G.items())
    stamp(p, 5)
    c_setup(p)
    p(f"s_mov_b32 s{sT+4}, {f32(-LOG2E)}")
    p(f"s_mul_i32 s{sT+2}, s{sH}, 3")
    for tt in range(3):
        p(f"s_add_u32 s{sT+3}, s{sT+2}, {tt}"); p(f"s_and_b32 s{sT}, s{sT+3}, 1"); p(f"s_lshl_b32 s{sT}, s{sT}, 3")
        p(f"s_lshr_b32 s{sT+3}, s{sT+3}, 1"); p(f"s_add_u32 s{sT+3}, s{sT+3}, 192"); p(f"s_lshl_b32 s{sT+3}, s{sT+3}, 12")
        p(f"s_add_u32 s{sT}, s{sT}, s{sT+3}")
        for qt in range(4):
            b = vT + 16*(qt & 1)
            for r in range(4): p(f"v_accvgpr_read_b32 v{b+r}, a{(tt*4+qt)*4+r}")
            for r in range(4): p(f"v_mul_f32 v{b+8+r}, s{sT+4}, v{b+r}")
            for r in range(4): p(f"v_exp_f32 v{b+8+r}, v{b+8+r}")
            for r in range(4): p(f"v_accvgpr_read_b32 v{b+4+r}, a{48+(tt*4+qt)*4+r}")
            for r in range(4): p(f"v_add_f32 v{b+8+r}, 1.0, v{b+8+r}")
            for r in range(4): p(f"v_rcp_f32 v{b+8+r}, v{b+8+r}")
            for r in range(0, 4, 2): p(f"v_pk_mul_f32 {vr(b+r,2)}, {vr(b+r,2)}, {vr(b+4+r,2)}")
            for r in range(0, 4, 2): p(f"v_pk_mul_f32 {vr(b+r,2)}, {vr(b+r,2)}, {vr(b+8+r,2)}")
            p(f"v_cvt_pk_bf16_f32 v{b+12}, v{b}, v{b+1}"); p(f"v_cvt_pk_bf16_f32 v{b+13}, v{b+2}, v{b+3}")
            p(f"buffer_store_dwordx2 {vr(b+12,2)}, v{vL16}, s[24:27], s{sT} offen offset:{qt*1024}{SC1}", tag=('H', 0))
    p(f"s_mov_b32 s{sT+4}, {f32(QSCALE)}"); p(f"s_mov_b32 s{sT+5}, s{sT+4}")
    for ks in range(6):
        for qt in range(4):
            d = QF + (ks*4+qt)*4
            for e in range(2):
                s = QACC + ((2*ks+e)*4+qt)*4
                p(f"v_pk_mul_f32 {vr(s,2)}, {vr(s,2)}, s[{sT+4}:{sT+5}]")
                p(f"v_pk_mul_f32 {vr(s+2,2)}, {vr(s+2,2)}, s[{sT+4}:{sT+5}]")
                p(f"v_cvt_pk_bf16_f32 v{d+2*e}, v{s}, v{s+1}"); p(f"v_cvt_pk_bf16_f32 v{d+2*e+1}, v{s+2}, v{s+3}")
    for qt in range(4): p(f"v_mov_b32 v{MXI+qt}, 0xff800000")
    pack_setup(p)
    p('s_barrier')
    pack_issue(p)
    pa = p.items

    a = Prog(); BARG = OPT['barg']
    a("K_attn:")
    a(f"s_mov_b32 s{sKo}, {4*SLOT}"); a(f"s_mov_b32 s{sVo}, {3*SLOT}")
    a.wait(vm=[('K', 0), ('K', 1), ('V', 0)]); a("s_barrier")
    stamp(a, 6)
    for f in range(4): a.add(kfrag_read(f, f, 0))
    G = Gaps(qk_mfmas(czero=True))
    a.wait(lgkm=('kf', 0))
    for f in range(4, 12): G.mem(4*(f-4), kfrag_read(f, f % 8, 0)[0])
    for f in range(1, 12): G.sc(4*f-1, Wait(lgkm=('kf', f)))
    a.add(G.items())
    a("s_barrier")
    for g, m in sorted(PLAN['mem'].items()):
        if g > BARG and not m[2]:
            if m[0] == 'k': a.add(kfrag_read(m[1], m[1] % 8, 1))
            elif m[0] == 'dma':
                kind = 'K' if m[1] < 3 else 'V'; tile = 4 if kind == 'K' else 3; so = sKo if kind == 'K' else sVo
                mi, d = kv_dma(kind, tile, tile % 4, so)[m[1] % 3]
                a.add(mi); a("s_nop 0"); a.add(d)
                if m[1] % 3 == 2: a(f"s_add_u32 s{so}, s{so}, {SLOT}")
    for qt in range(4):
        s0 = SR + qt*4; s1 = SR + 16 + qt*4; m = vT + qt
        a(f"v_max3_f32 v{m}, v{s0}, v{s0+1}, v{MXI+qt}")
        a(f"v_max3_f32 v{m}, v{s0+2}, v{s0+3}, v{m}")
        a(f"v_max3_f32 v{m}, v{s1}, v{s1+1}, v{m}")
        a(f"v_max3_f32 v{m}, v{s1+2}, v{s1+3}, v{m}")
    xlane4(a, "v_max_f32", [vT+q for q in range(4)], vT+4)
    for qt in range(4):
        for r in range(4): a(f"v_sub_f32 v{MR+4*qt+r}, 0, v{vT+qt}")
        a(f"v_mov_b32 v{LR+qt}, 0")
        for kt in range(2):
            for r in range(4):
                s = SR + (kt*4+qt)*4 + r
                a(f"v_sub_f32 v{s}, v{s}, v{vT+qt}")
    prev = None
    for (c, t_, kt, qt), g in sorted(zip(softmax_items(0), PLAN['vpos']), key=lambda x: x[1]):
        if g < 96: a(t_)
    a.wait(lgkm=[('kf', 12), ('kf', 13)])
    a("s_nop 1")
    prd = pack_reads(); pst = pack_stores()
    for i in range(4):
        G = attn_step(i, 0, first=(i == 0))
        if i == 1: G.S[BARG-1][-1].vm.append(('pk', 0)); fill(G, prd, BARG+2, 94, 1)
        if i == 2: fill(G, prd, 2, BARG-3, 1); assert not prd; fill(G, pst, BARG+2, 94, 2)
        if i == 3: fill(G, pst, 2, 94, 2); assert not pst
        a.add(G.items())
    a(f"s_mov_b32 s{sCnt}, 14")
    a(".p2align 6"); a("K_loop:")
    a.loop_begin("K_loop", 14)
    for i in range(4, 8):
        G = attn_step(i, 4)
        if i == 6:
            G.S[BARG-1][-1].vm.append(('H', 0)); G.mem_from(BARG+1, signal(sFH))
        if i == 7:
            g = 60
            while not G.sc_free(g): g += 1
            G.sc(g, Ins(f"s_sub_u32 s{sCnt}, s{sCnt}, 1"))
            G.sc(95, Ins(f"s_cmp_lg_u32 s{sCnt}, 0"))
        a.add(G.items())
    a("s_cbranch_scc1 K_loop")
    a.loop_end()
    early = flat_loads(range(3)) if OPT['early'] else []
    for i in range(60, 64):
        G = attn_step(i, 0, last=(i == 63))
        if i == (60 if OPT['early'] else 62):
            g = 18
            for m in hpoll_loads(): g = G.mem_from(g, m) + 2
        if OPT['early'] and i >= 61:
            fill(G, early, 2 if i < 63 else 49, 94, 3)
        a.add(G.items())
        if OPT['early'] and i == 60:
            a.wait(vm=('hp', 0)); hpoll(a, "C_ph"); a.add(c_fcursors())
    assert not early, len(early)
    if not OPT['early']: a("s_waitcnt vmcnt(0)")
    stamp(a, 7)
    xlane4(a, "v_add_f32", [LR+q for q in range(4)], vT)
    a(f"s_mov_b32 s{sT}, 0x5d800000")
    a(f"v_cmp_nle_f32 s[{sT+2}:{sT+3}], v{LR}, s{sT}")
    for qt in range(1, 4):
        a(f"v_cmp_nle_f32 vcc, v{LR+qt}, s{sT}"); a(f"s_or_b64 s[{sT+2}:{sT+3}], s[{sT+2}:{sT+3}], vcc")
    a(f"s_or_b32 s{sT+2}, s{sT+2}, s{sT+3}")
    a(f"v_mov_b32 v{vT}, s{sT+2}"); a(f"s_lshl_b32 s{sT}, s{sW}, 2"); a(f"s_add_u32 s{sT}, s{sT}, {VOTE}"); a(f"v_mov_b32 v{vT+1}, s{sT}")
    a(f"ds_write_b32 v{vT+1}, v{vT}"); a(f"v_mov_b32 v{vT+1}, {VOTE}")
    a("s_waitcnt lgkmcnt(0)"); a("s_barrier")
    a(f"ds_read_b128 {vr(vT+4)}, v{vT+1}"); a("s_waitcnt lgkmcnt(0)")
    a(f"v_or_b32 v{vT+4}, v{vT+4}, v{vT+5}"); a(f"v_or3_b32 v{vT+4}, v{vT+4}, v{vT+6}, v{vT+7}"); a("s_nop 0")
    a(f"v_readfirstlane_b32 s{sT}, v{vT+4}")
    a(f"s_cmp_eq_u32 s{sT}, 0"); a("s_cbranch_scc1 K_epi")
    a(f"s_cmp_eq_u32 s{sPass}, 0"); a("s_cbranch_scc1 K_fb")

    e = Prog()
    e("K_epi:")
    phase_c(e)
    if OPT['stamp']: e("s_waitcnt vmcnt(0)")
    stamp(e, 16); stamp_out(e)
    e("K_end:")
    e("s_endpgm")

    fb = Prog()
    fb("K_fb:")
    fb(f"s_mov_b32 s{sPass}, 1"); fb("s_mov_b32 s69, 0x10000000"); fb(f"s_mov_b32 s{sKo}, 0"); fb(f"s_mov_b32 s{sCnt}, 64")
    fb("K_fbl:")
    fb.loop_begin("K_fbl", 2)
    for mi, d in kv_dma('K', 1000, 0, sKo, 4):
        fb.add(mi); fb("s_nop 0"); fb.add(d)
    fb(f"s_add_u32 s{sKo}, s{sKo}, {SLOT}")
    fb("s_waitcnt vmcnt(0)"); fb("s_barrier")
    Mq = qk_mfmas(czero=True)
    for f in range(12):
        fb.add(kfrag_read(f, f % 8, 1000, 4)); fb("s_waitcnt lgkmcnt(0)"); fb.add(Mq[4*f:4*f+4])
    fb("s_nop 7")
    for qt in range(4):
        for kt in range(2):
            s0 = SR + (kt*4+qt)*4
            fb(f"v_max3_f32 v{MXI+qt}, v{s0}, v{s0+1}, v{MXI+qt}")
            fb(f"v_max3_f32 v{MXI+qt}, v{s0+2}, v{s0+3}, v{MXI+qt}")
    fb("s_barrier")
    fb(f"s_sub_u32 s{sCnt}, s{sCnt}, 1"); fb(f"s_cmp_lg_u32 s{sCnt}, 0"); fb("s_cbranch_scc1 K_fbl")
    fb.loop_end()
    for kind, cnt, so in (('K', 4, sKo), ('V', 3, sVo)):
        for tl in range(cnt):
            fb(f"s_mov_b32 s{so}, {tl*SLOT}")
            for mi, d in kv_dma(kind, tl, tl, so):
                fb.add(mi); fb("s_nop 0"); fb.add(d)
    fb("s_waitcnt vmcnt(0)")
    fb("s_branch K_attn")

    out = Prog(); out.items += head + ln + pk + pa + a.items + e.items + fb.items
    res = Prog(); res.items += skip_retry(head + ln + pa + a.items + e.items); res.resolve()
    chk1 = Prog(); chk1.items += skip_retry(head + ln + pa + a.items + fb.items + a.items + e.items)
    chk2 = Prog(); chk2.items += head + pk + pa[:400]
    return out, [chk1, chk2]

def skip_retry(items):
    out = []; skipping = None
    for k, x in enumerate(items):
        if isinstance(x, Ins):
            if x.text.startswith("s_branch") and x.text.endswith("_chk"):
                skipping = x.text.split()[1] + ":"
            elif skipping and x.text == skipping: skipping = None
            elif skipping: continue
        out.append(x)
    return out

HDR = open('recurrent_scan__mha_block_cached__swiglu_ffn__prompt.s.ref').read().split('; Override launch')[0]
def main():
    out = [HDR.rstrip(), "; @launch grid=(256,1,1) block=(256,1,1) lds=163840", '.amdgcn_target "amdgcn-amd-amdhsa--gfx950"', ".text"]
    prog, chks = kernel()
    ok = all([c.check("k") for c in chks])
    out += [f".globl {NAME}", ".p2align 8", f".type {NAME},@function", f"{NAME}:"] + prog.emit()
    out += ['.section .rodata,"a"', ".p2align 6", f".amdhsa_kernel {NAME}", "  .amdhsa_next_free_vgpr 512", "  .amdhsa_next_free_sgpr 102",
            "  .amdhsa_accum_offset 256", "  .amdhsa_group_segment_fixed_size 0", "  .amdhsa_kernarg_size 96",
            "  .amdhsa_user_sgpr_count 2", "  .amdhsa_user_sgpr_kernarg_segment_ptr 1", "  .amdhsa_system_sgpr_workgroup_id_x 1", ".end_amdhsa_kernel"]
    print("\n".join(out))
    if not ok: sys.stderr.write("CHECK FAILED\n"); sys.exit(1)
main()
```

```python
import sys, struct
from asmlib import *

OPT = dict(stamp=0, look=5, barg=80, slp=2, fpub=0, warm=1, sigst=4, early=1, td=4)
for a in sys.argv[1:]:
    k, v = a.split('='); OPT[k] = int(v, 0)
NAME = "recurrent_scan__mha_block_cached__swiglu_ffn__prompt_kernel"

WS_XN = 0x0;        SZ_XN = 2048 * 640 * 2
WS_WP = 0x400000;   SZ_WP = 7680 * 640 * 2
WS_OF = 0x1000000;  SZ_OF = 2048 * 7680 * 2
WS_XB = 0x3000000;  SZ_XB = 64*4*3*2*4*5120
WS_FL = 0x5000000;  SZ_FL = 32768
FL_LN = 256; FL_H = 2048; FL_O = 4096; FL_X = 8192
def f32(x): return "0x%08x" % struct.unpack('<I', struct.pack('<f', x))[0]
MF = "v_mfma_f32_16x16x32_bf16"
SC1 = " sc1"
def vr(b, n=4): return f"v[{b}:{b+n-1}]"
def ar(b, n=4): return f"a[{b}:{b+n-1}]"
LOG2E = 1.4426950408889634
QSCALE = LOG2E / (192 ** 0.5)

sW = 28; sH = 29; sKb = 30; sVb = 31; sKo = 32; sVo = 33; sCnt = 34; sPass = 35; sWQm = 36; sGUm = 37; sI = 38; cC = 39; sT = 40
cWo = 50; cBo = 51; cM = 52; cXO = 53; cXB = 54; cTile = 55; sFL = 56; sNON = 66; cW1 = 68; sFO = 46; sFH = 47; sFX = 48
kX = 72; kK = 74; kV = 76; kWQ = 78; kWO = 80; kWG = 84; kWU = 86; kWD = 88; kOUT = 90; kWS = 94
vL1K = 1; vLANE = 2; vL16 = 3; vK0 = 4; vV = 6; vDK = 10; vDV = 11
vWQ = 12; vGU = 13; vAQ = 16
cvA = 12; cvB = 15
vSIG = 25; vNON = 26; vP4 = 60; vP8 = 61; vSTAMP = 62
vT = 28; vPOLL = 36
QACC = 64; QF = 64; SR = 160; PR = 192; MR = 224; LR = 240; MXI = 244
XB = 96; RING = 192
A_STAGE = 36864
K_RING = 114688; V_RING = 65536; SLOT = 12288
VOTE = 163840 - 16

def srd(p, d, lo, size, add=None):
    if add is None: p(f"s_mov_b32 s{d}, s{lo}"); p(f"s_mov_b32 s{d+1}, s{lo+1}")
    else: p(f"s_add_u32 s{d}, s{lo}, {add}"); p(f"s_addc_u32 s{d+1}, s{lo+1}, 0")
    if size is not None: p(f"s_mov_b32 s{d+2}, {size}")
    p(f"s_mov_b32 s{d+3}, 0x20000")

def xlane(p, op, a, t):
    p(f"v_mov_b32 v{t}, v{a}"); p("s_nop 1")
    p(f"v_permlane32_swap_b32 v{a}, v{t}"); p("s_nop 1")
    p(f"{op} v{a}, v{a}, v{t}")
    p(f"v_mov_b32 v{t}, v{a}"); p("s_nop 1")
    p(f"v_permlane16_swap_b32 v{a}, v{t}"); p("s_nop 1")
    p(f"{op} v{a}, v{a}, v{t}")
def xlane4(p, op, regs, t):
    for sw in ("v_permlane32_swap_b32", "v_permlane16_swap_b32"):
        for i, a in enumerate(regs): p(f"v_mov_b32 v{t+i}, v{a}")
        p("s_nop 0")
        for i, a in enumerate(regs): p(f"{sw} v{a}, v{t+i}")
        for i, a in enumerate(regs): p(f"{op} v{a}, v{a}, v{t+i}")

NST = [0]
def stamp(p, idx):
    if OPT['stamp']:
        p("s_memrealtime s[64:65]"); p("s_waitcnt lgkmcnt(0)")
        p(f"v_writelane_b32 v{vSTAMP}, s64, {idx}")
def stamp_out(p):
    if not OPT['stamp']: return
    if OPT['stamp'] == 2:
        p(f"s_cmp_lg_u32 s2, {OPT.get('dwg', 1)}"); p("s_cbranch_scc1 K_so")
        p(f"s_cmp_lg_u32 s{sW}, 0"); p("s_cbranch_scc1 K_so")
        p("s_mov_b32 s4, s92"); p("s_mov_b32 s5, s93"); p("s_mov_b32 s6, 128"); p("s_mov_b32 s7, 0x20000")
        p(f"v_readlane_b32 s64, v{vSTAMP}, 0"); p(f"v_lshlrev_b32 v4, 2, v{vLANE}"); p("v_subrev_u32 v4, 4, v4"); p("s_nop 1")
        p(f"v_subrev_u32 v5, s64, v{vSTAMP}")
        p(f"buffer_store_dword v5, v4, s[4:7], 0 offen"); p("s_waitcnt vmcnt(0)")
        p("K_so:")
        return
    p("s_cmp_ge_u32 s2, 64"); p("s_cbranch_scc1 K_so")
    p(f"s_cmp_lg_u32 s{sW}, 0"); p("s_cbranch_scc1 K_so")
    p(f"s_add_u32 s4, s{kWS}, {0xF000000}"); p(f"s_addc_u32 s5, s{kWS+1}, 0"); p("s_mov_b32 s6, 8192"); p("s_mov_b32 s7, 0x20000")
    p("s_lshl_b32 s64, s2, 7"); p(f"v_lshlrev_b32 v4, 2, v{vLANE}"); p("s_mov_b64 exec, 0xffffffff")
    p(f"buffer_store_dword v{vSTAMP}, v4, s[4:7], s64 offen"); p("s_waitcnt vmcnt(0)")
    p("K_so:")

def signal(soff): return Ins(f"buffer_store_dwordx2 {vr(vNON,2)}, v{vSIG}, s[{sFL}:{sFL+3}], s{soff} offen{SC1}")
def poll(p, lab, voff, soff):
    p(f"s_mov_b32 s{sT+2}, 0")
    p(f"{lab}:")
    p(f"buffer_load_dwordx2 {vr(vPOLL,2)}, v{voff}, s[{sFL}:{sFL+3}], s{soff} offen{SC1}"); p("s_waitcnt vmcnt(0)")
    p(f"v_cmp_ne_u64 vcc, {vr(vNON,2)}, {vr(vPOLL,2)}"); p("s_nop 4")
    p(f"s_cbranch_vccz {lab}_ok")
    p(f"s_sleep {OPT['slp']}")
    p(f"s_add_u32 s{sT+2}, s{sT+2}, 1"); p(f"s_cmp_lt_u32 s{sT+2}, 0x40000"); p(f"s_cbranch_scc1 {lab}")
    p(f"{lab}_ok:")
def hpoll_loads():
    return [Ins(f"buffer_load_dwordx4 {vr(vPOLL+4*j)}, v{vL16}, s[{sFL}:{sFL+3}], 0 offen offset:{FL_H+1024*j}{SC1}", tag=('hp', 0)) for j in range(2)]
def hpoll(p, lab):
    p(f"s_mov_b32 s{sT+2}, 0"); p(f"s_branch {lab}_chk")
    p(f"{lab}:")
    p.add(hpoll_loads()); p("s_waitcnt vmcnt(0)")
    p(f"{lab}_chk:")
    p(f"v_cmp_ne_u64 s[{sT}:{sT+1}], {vr(vNON,2)}, {vr(vPOLL,2)}")
    for j in range(1, 4):
        p(f"v_cmp_ne_u64 vcc, {vr(vNON,2)}, {vr(vPOLL+2*j,2)}"); p(f"s_or_b64 s[{sT}:{sT+1}], s[{sT}:{sT+1}], vcc")
    p(f"s_cbranch_scc0 {lab}_ok")
    p(f"s_sleep 8")
    p(f"s_add_u32 s{sT+2}, s{sT+2}, 1"); p(f"s_cmp_lt_u32 s{sT+2}, 0x40000"); p(f"s_cbranch_scc1 {lab}")
    p(f"{lab}_ok:")

def kv_dma(kind, tile, slot, soff, stride=0):
    out = []
    for blk in range(3):
        base = sKb if kind == 'K' else sVb
        m = Ins(f"s_add_u32 m0, s{base}, {slot*SLOT + blk*4096 - blk*128}")
        d = Ins(f"buffer_load_dwordx4 v{vDK if kind=='K' else vDV}, s[{4 if kind=='K' else 8}:{7 if kind=='K' else 11}], s{soff} offen offset:{blk*128} lds",
                tag=(kind, tile, stride), slot=(kind, slot), gen=(tile, stride))
        out.append((m, d))
    return out
def kfrag_read(f, rs, tile, stride=0):
    kt, ks = divmod(f, 6); slot = tile % 4
    return [Ins(f"ds_read_b128 {ar(RING+4*rs)}, v{vK0 + (ks&1)} offset:{slot*SLOT + (ks>>1)*4096 + kt*2048}",
                tag=('kf', tile*12+f, stride*12), slot=('K', slot), gen=(tile, stride))]
def vfrag_read(dt, rs, tile, stride=0):
    slot = tile % 4
    return [Ins(f"ds_read_b64_tr_b16 {ar(RING+4*rs+2*rd,2)}, v{vV + (dt&3)} offset:{slot*SLOT + (dt>>2)*4096 + rd*2048}",
                tag=('vf', tile*12+dt, stride*12), slot=('V', slot), gen=(tile, stride)) for rd in range(2)]
def qk_mfmas(czero=False):
    M = []
    for kt in range(2):
        for ks in range(6):
            f = kt*6+ks
            for qt in range(4):
                s = SR + (kt*4+qt)*4
                c = vr(s) if ks else ("0" if czero else vr(MR+4*qt))
                M.append(Ins(f"{MF} {vr(s)}, {ar(RING+4*(f%8))}, {vr(QF+(ks*4+qt)*4)}, {c}"))
    return M
def pv_mfmas(pb, czero=False):
    M = []
    for dt in range(12):
        for qt in range(4):
            o = (dt*4+qt)*4
            M.append(Ins(f"{MF} {ar(o)}, {ar(RING+4*((12+dt)%8))}, {vr(PR+16*pb+4*qt)}, {'0' if czero else ar(o)}"))
    return M
def softmax_items(pb):
    it = []
    seq = [(kt, qt, r) for kt in range(2) for qt in range(4) for r in range(4)]
    def reg(e): return SR + (e[0]*4+e[1])*4 + e[2]
    def post(e):
        o = [(1, f"v_add_f32 v{LR+e[1]}, v{LR+e[1]}, v{reg(e)}", e[0], e[1])]
        if e[2] & 1: o.append((1, f"v_cvt_pk_bf16_f32 v{PR+16*pb+4*e[1]+2*e[0]+(e[2]>>1)}, v{reg(e)-1}, v{reg(e)}", e[0], e[1]))
        return o
    for i, e in enumerate(seq):
        it.append((2, f"v_exp_f32 v{reg(e)}, v{reg(e)}", e[0], e[1]))
        if i >= 2: it += post(seq[i-2])
    it += post(seq[-2]) + post(seq[-1])
    return it
def plan_step():
    LOOK = OPT['look']; BARG = OPT['barg']; n = 96
    mem = {}
    for dt in range(12):
        g = 4*(12+dt-LOOK)
        mem[g] = ('v', dt, 0); mem[g+1] = ('v', dt, 1)
    assert 4*(23-LOOK)+1 < BARG-4
    g_next = BARG+1
    for f in range(12):
        g = max(96 + 4*(f-LOOK), g_next)
        if f + 16 < 24: g = max(g, 4*(f+16)+4)
        while (g % n) in mem: g += 1
        mem[g % n] = ('k', f, g >= n)
        g_next = g+2
    g = BARG+4
    for i in range(6):
        while (g % n) in mem or ((g-1) % n) in (BARG, BARG-1): g += 1
        mem[g % n] = ('dma', i, g >= n)
        g += 5
    cap = [2 - (1 if i in mem else 0) for i in range(n)]
    items = softmax_items(0)
    tot = sum(x[0] for x in items); g0 = 27; span = 84
    pos = [None]*len(items); acc = 0; g = g0
    pend = list(range(len(items)))
    while pend:
        g = max(g, g0 + int(acc*span/tot))
        placed = False
        for j in range(min(2, len(pend))):
            c, t, kt, qt = items[pend[j]]
            if j > 0 and not (c == 1 and items[pend[0]][0] == 2): continue
            if c <= cap[g % n] and g >= 24*kt + 20 + qt + 7:
                pos[pend[j]] = g; cap[g % n] -= c; acc += c; pend.pop(j); placed = True
                assert g < 96 + 24*kt + qt - 1, (g, t)
                break
        if not placed: g += 1
    return dict(mem=mem, vpos=pos)
PLAN = plan_step()

def attn_step(i, stride, first=False, last=False):
    BARG = OPT['barg']
    M = ([None]*48 if last else qk_mfmas()) + pv_mfmas(i % 2, czero=first)
    G = Gaps(M)
    for g, m in sorted(PLAN['mem'].items()):
        if m[0] == 'v':
            G.mem(g, vfrag_read(m[1], (12+m[1]) % 8, i, stride)[m[2]])
        elif m[0] == 'k':
            tile = i+1 if m[2] else i+2
            if tile > 63 and stride == 0: continue
            G.mem(g, kfrag_read(m[1], m[1] % 8, tile, stride)[0])
        else:
            ep = i if m[2] else i+1
            kind = 'K' if m[1] < 3 else 'V'
            tile = ep+4 if kind == 'K' else ep+3
            if stride == 0 and tile > 63: continue
            so = sKo if kind == 'K' else sVo
            mi, d = kv_dma(kind, tile, tile % 4, so, stride)[m[1] % 3]
            G.sc(g-1, mi); G.mem(g, d)
            if m[1] % 3 == 2: G.sc(g+1, Ins(f"s_add_u32 s{so}, s{so}, {SLOT}"))
    for f in range(0, 24, 2):
        g = 4*f - 1
        if f < 12:
            if f == 0:
                if not (stride == 0 and i+2 > 63): G.sc(95, Wait(lgkm=[('kf', (i+2)*12+0, stride*12), ('kf', (i+2)*12+1, stride*12)]))
            elif not last: G.sc(g, Wait(lgkm=[('kf', (i+1)*12+f+1, stride*12)]))
        elif g < BARG-1:
            G.sc(g, Wait(lgkm=[('vf', i*12+f-12+1, stride*12)]))
    need = []
    if not (stride == 0 and i+2 > 63): need.append(('K', i+2, stride))
    if not (stride == 0 and i+1 > 63): need.append(('V', i+1, stride))
    if need:
        G.sc(BARG-1, Wait(vm=need, lgkm='all')); G.sc(BARG, Ins("s_barrier"))
    else:
        G.sc(BARG-1, Wait(lgkm='all'))
    for (c, t, kt, qt), g in zip(softmax_items(i % 2), PLAN['vpos']):
        if g >= 96: G.valu(g-96, Ins(t), c)
    if not last:
        for (c, t, kt, qt), g in zip(softmax_items((i+1) % 2), PLAN['vpos']):
            if g < 96: G.valu(g, Ins(t), c)
    return G

C_STAGE = 20480; C_NS = 8; C_LA = 6; C_D = 6
cS = 0; cF = 80; cRING = 160
CB = [('a', 224), ('a', 240), ('v', 44), ('v', 160), ('v', 176), ('v', 192), ('v', 208), ('v', 224)]
def cb(n, o):
    c, b = CB[n % C_NS]
    return f"{c}[{b+o}:{b+o+3}]"
def c_wloads(n, stride=0):
    sl = n % C_NS; out = []
    for j in range(5):
        sc = [Ins(f"s_add_u32 m0, s{cM}, {sl*C_STAGE + (1024 if j == 4 else 0)}")] if j in (0, 4) else []
        out.append((sc, Ins(f"buffer_load_dwordx4 v{vL16 if j < 4 else vL1K}, s[12:15], s{cWo} offen offset:{min(j,3)*1024}{SC1} lds",
                            tag=('cw', n, stride), slot=('C', sl), gen=(n, stride), m0reuse=True)))
    return out, Ins(f"s_add_u32 s{cWo}, s{cWo}, 10240")
def c_bloads(n, stride=0):
    out = []
    for ks in range(2):
        for qs in range(2):
            out.append(([], Ins(f"buffer_load_dwordx4 {cb(n,(ks*2+qs)*4)}, v{cvB+2*ks+qs}, s[16:19], s{cBo} offen{SC1}", tag=('cb', n, stride))))
    return out, Ins(f"s_add_u32 s{cBo}, s{cBo}, 8192")
def c_aread(n, f, stride=0):
    sl = n % C_NS; ks, t = divmod(f, 10); sh, tt = divmod(t, 5)
    return Ins(f"ds_read_b128 {ar(cRING+4*(f%10))}, v{cvA + sl//3} offset:{(sl%3)*C_STAGE + sh*10240 + ks*5120 + tt*1024}",
               tag=('caf', n*20+f, stride*20), slot=('C', sl), gen=(n, stride))
def c_stage(n, acc, stride=0, czero=False, wl=True, bl=True, nxt=True, extra=(), wtags=(), after=(), more=(), cap=54, force_bar=False):
    M = []
    for ks in range(2):
        for t in range(10):
            for qs in range(2):
                d = ar(acc + (t*2+qs)*4)
                M.append(Ins(f"{MF} {d}, {ar(cRING+4*((ks*10+t)%10))}, {cb(n,(ks*2+qs)*4)}, {'0' if (czero and ks==0) else d}"))
    G = Gaps(M)
    BG = 2*(20-C_LA) - 1
    for f in range(C_LA, 20): G.mem(2*(f-C_LA), c_aread(n, f, stride))
    if nxt:
        for f in range(C_LA): G.mem(2*(20+f-C_LA), c_aread(n+1, f, stride))
        G.sc(BG-1, Wait(vm=[('cw', n+1, stride), ('cb', n+1, stride)] + list(wtags), cap=cap)); G.sc(BG, Ins("s_barrier"))
    for f in range(2, 20, 2):
        G.sc(2*f-2 if 2*f-1 != BG else 2*f-3, Wait(lgkm=('caf', n*20+f+1, stride*20)))
    if nxt: G.sc(38, Wait(lgkm=('caf', (n+1)*20+1, stride*20)))
    L = list(more)
    if wl:
        l, po = c_wloads(n+C_D, stride); L += l; L.append(([po], None))
    if bl:
        l, po = c_bloads(n+C_D, stride); L += l; L.append(([po], None))
    for e in extra: G.sc(0, e)
    for m in after: G.mem(BG+2, m)
    nm = sum(1 for sc, m in L if m is not None)
    free = [g for g in range(1, 38, 2) if not G.N[g] and g != BG]
    slots = [free[min(len(free)-1, int((k+0.5)*len(free)/max(nm,1)))] for k in range(nm)] + [39]
    k = 0; lo = 0
    for sc, m in L:
        g = max(slots[k] - 1, lo); pos = []
        for s_ in reversed(sc):
            while g > lo and not G.sc_free(g): g -= 1
            pos.append((g, s_))
            if g > lo: g -= 1
        for g_, s_ in reversed(pos): G.sc(g_, s_)
        if pos: lo = max(lo, max(x[0] for x in pos))
        if m is not None:
            G.mem(slots[k], m); lo = min(slots[k] + 1, 39); k += 1
    return G
def c_pub(acc, kind):
    out = []
    for sg in range(1, 4):
        qs, sh = sg & 1, sg >> 1
        sc = [f"s_xor_b32 s{sT}, s{cC}, {sg}", f"s_mul_i32 s{sT}, s{sT}, {3*2*4*5120}", f"s_add_u32 s{sT}, s{sT}, s{cXB}", f"s_add_u32 s{sT}, s{sT}, {((sg-1)*2+kind)*4*5120}"]
        for tt in range(5):
            out.append(([Ins(x) for x in sc] if tt == 0 else [],
                        Ins(f"buffer_store_dwordx4 {ar(acc+((sh*5+tt)*2+qs)*4)}, v{vL16 if tt < 4 else vL1K}, s[20:23], s{sT} offen offset:{min(tt,3)*1024}{SC1}", tag=('pub', kind))))
    return out
def c_setup(p):
    p(f"s_lshr_b32 s{cC}, s{sH}, 3")
    p(f"v_mov_b32 v{cvA}, v{vL16}"); p(f"v_add_u32 v{cvA+1}, {3*C_STAGE}, v{vL16}"); p(f"v_add_u32 v{cvA+2}, {6*C_STAGE}, v{vL16}")
    p(f"s_and_b32 s{sT}, s{sW}, 1"); p(f"s_mul_i32 s{cW1}, s{sT}, 5120")
    p(f"s_lshl_b32 s{sT}, s{sT}, 1"); p(f"s_and_b32 s{sT+1}, s{cC}, 1"); p(f"s_add_u32 s{sT+4}, s{sT}, s{sT+1}")
    p(f"s_lshl_b32 s{sT}, s{sT+4}, 10"); p(f"v_add_u32 v{cvB}, s{sT}, v{vL16}"); p(f"v_xor_b32 v{cvB+1}, 1024, v{cvB}")
    p(f"v_add_u32 v{cvB+2}, 4096, v{cvB}"); p(f"v_add_u32 v{cvB+3}, 4096, v{cvB+1}")
    p(f"s_bfe_u32 s{sT}, s{sH}, 0x10002"); p(f"s_lshl_b32 s{sT}, s{sT}, 1"); p(f"s_lshr_b32 s{sT+1}, s{sW}, 1"); p(f"s_add_u32 s{sT}, s{sT}, s{sT+1}")
    p(f"s_lshl_b32 s{sT+2}, s{sI}, 2"); p(f"s_add_u32 s{sT+3}, s{sT}, s{sT+2}")
    p(f"s_mul_i32 s{sT}, s{sT+3}, {240*4096}"); p(f"s_add_u32 s{sT}, s{sT}, {WS_OF}")
    srd(p, 16, kWS, 240*4096, f"s{sT}")
    p(f"s_lshr_b32 s{sT}, s{cC}, 1"); p(f"s_xor_b32 s{sT}, s{sT}, s{sT+1}"); p(f"s_and_b32 s{sT+2}, s{sH}, 3"); p(f"s_lshl_b32 s{sT+5}, s{sT+2}, 1"); p(f"s_add_u32 s{sT}, s{sT}, s{sT+5}")
    p(f"s_mul_i32 s{sT}, s{sT}, {240*5120}"); p(f"s_add_u32 s{sT}, s{sT}, {WS_WP}")
    srd(p, 12, kWS, 240*5120, f"s{sT}")
    p(f"s_mul_i32 s{cM}, s{sW}, 5120")
    p(f"s_lshl_b32 s{sT+3}, s{sT+3}, 2"); p(f"s_add_u32 s{sT+3}, s{sT+3}, s{sT+4}"); p(f"s_mul_i32 s{cXO}, s{sT+3}, 20480")
    p(f"s_mul_i32 s{sT+2}, s{sT+2}, 320"); p(f"s_add_u32 s{cXO}, s{cXO}, s{sT+2}")
    p(f"s_lshr_b32 s{sT}, s{cC}, 1"); p(f"s_mul_i32 s{sT}, s{sT}, 160"); p(f"s_add_u32 s{cXO}, s{cXO}, s{sT}")
    p(f"s_lshl_b32 s{cTile}, s{sI}, 3"); p(f"s_and_b32 s{sT}, s{sH}, 7"); p(f"s_add_u32 s{cTile}, s{cTile}, s{sT}")
    p(f"s_mul_i32 s{cXB}, s{cTile}, {4*3*2*4*5120}"); p(f"s_add_u32 s{cXB}, s{cXB}, s{cM}")
    srd(p, 20, kWS, SZ_XB, WS_XB)
    p(f"s_lshl_b32 s{sFO}, s{sI}, 2"); p(f"s_add_u32 s{sFO}, s{sFO}, s{cC}"); p(f"s_lshl_b32 s{sFO}, s{sFO}, 7"); p(f"s_add_u32 s{sFO}, s{sFO}, {FL_O}")
    p(f"s_lshl_b32 s{sFH}, s{sI}, 5"); p(f"s_add_u32 s{sFH}, s{sFH}, s{sH}"); p(f"s_lshl_b32 s{sFH}, s{sFH}, 3"); p(f"s_add_u32 s{sFH}, s{sFH}, {FL_H}")
    p(f"s_lshl_b32 s{sFX}, s{cTile}, 7"); p(f"s_add_u32 s{sFX}, s{sFX}, {FL_X}")
def c_fcursors():
    return [Ins(x) for x in (f"s_mul_i32 s{cWo}, s{cC}, 12", f"s_add_u32 s{cWo}, s{cWo}, 192", f"s_lshl_b32 s{cBo}, s{cWo}, 12",
                             f"s_mul_i32 s{cWo}, s{cWo}, 5120", f"s_add_u32 s{cWo}, s{cWo}, s{cW1}")]
def flat_loads(ns):
    pf = []
    for n in ns:
        for l, po in (c_wloads(n), c_bloads(n)):
            for sc, m in l: pf.append([list(sc), m, []])
            pf[-1][2].append(po)
    return pf

def phase_c(p):
    NE = 3 if OPT['early'] else 0
    if not NE:
        hpoll(p, "C_ph"); p.add(c_fcursors())
    pf = flat_loads(range(NE, C_D))
    if NE: p.wait(vm=[('cw', 0), ('cb', 0)])
    for qt in range(4): p(f"v_rcp_f32 v{4+2*qt}, v{LR+qt}")
    srd(p, 4, kX, SZ_XN); srd(p, 8, kOUT, SZ_XN)
    for qt in range(4): p(f"v_mov_b32 v{4+2*qt+1}, v{4+2*qt}")
    n = 0; stores = []
    for j in range(6):
        for qt in range(4):
            b = 28 + 8*(n % 2); d = 64 + 4*n; n += 1
            for k in range(2 if NE else 3):
                if pf:
                    sc, m, po = pf.pop(0); p.add(sc);
                    if sc: p("s_nop 0")
                    p.add(m); p.add(po)
            for ee in range(2):
                for r in range(4): p(f"v_accvgpr_read_b32 v{b+4*ee+r}, a{((2*j+ee)*4+qt)*4+r}")
            for h in range(4): p(f"v_pk_mul_f32 {vr(b+2*h,2)}, {vr(b+2*h,2)}, {vr(4+2*qt,2)}")
            for h in range(4): p(f"v_cvt_pk_bf16_f32 v{d+h}, v{b+2*h}, v{b+2*h+1}")
            sc = []
            if qt == 0: sc = [Ins(f"s_mul_i32 s{sT+3}, s{sH}, {6*4096}")] if j == 0 else [Ins(f"s_add_u32 s{sT+3}, s{sT+3}, 4096")]
            stores.append((sc, Ins(f"buffer_store_dwordx4 {vr(d)}, v{vL16}, s[24:27], s{sT+3} offen offset:{qt*1024}{SC1}", tag=('O', 0))))
            if not pf and n >= 12 and OPT.get('cst', 1):
                sc, m = stores.pop(0); p.add(sc); p.add(m)
    assert not pf
    stamp(p, 8)
    p(f"s_and_b32 s{sT+4}, s{sH}, 7"); p(f"s_lshl_b32 s{sT+4}, s{sT+4}, 3"); p(f"s_add_u32 s{sT+4}, s{sT+4}, s{sFO}")
    p.add(Wait(vm=[('cw', 0), ('cb', 0)], cap=50)); p("s_barrier")
    for f in range(C_LA): p.add(c_aread(0, f))
    p.wait(lgkm=('caf', 1))
    SG = OPT['sigst']
    per = -(-len(stores) // max(SG-1, 1))
    for n in range(6):
        ex = [Ins(f"s_mul_i32 s{cWo}, s{cC}, {48*5120}"), Ins(f"s_add_u32 s14, s{cWo}, {48*5120}"), Ins(f"s_add_u32 s{cWo}, s{cWo}, s{cW1}")] if n == 0 else ()
        sig = (n == SG)
        mo = stores[:per]; stores = stores[per:]
        G = c_stage(n, cF, czero=(n == 0), bl=False, nxt=(n < 5), extra=ex, wtags=[('O', 0)] if sig else (), after=[signal(sT+4)] if sig else (), more=mo, cap=50)
        p.add(G.items())
        if sig: stamp(p, 9)
    assert not stores
    if SG > 4:
        p.wait(vm=('O', 0)); p("s_barrier"); p.add(signal(sT+4)); stamp(p, 9)
    stamp(p, 10)
    poll(p, "C_po", vP8, sFO)
    stamp(p, 11)
    p(f"s_mul_i32 s{cBo}, s{cC}, {48*4096}"); p(f"s_add_u32 s18, s{cBo}, {48*4096}")
    for n in range(6, 6+C_D):
        l, po = c_bloads(n)
        for sc, m in l: p.add(sc); p.add(m)
        p.add(po)
    p("s_barrier")
    for f in range(C_LA): p.add(c_aread(6, f))
    p(f"s_lshl_b32 s{sT+4}, s{cC}, 3"); p(f"s_add_u32 s{sT+4}, s{sT+4}, s{sFX}")
    p(f"v_and_b32 v4, 15, v{vLANE}"); p(f"v_lshrrev_b32 v5, 4, v{vLANE}")
    p("v_mul_u32_u24 v4, 1280, v4"); p("v_lshl_add_u32 v4, v5, 3, v4")
    if OPT['fpub']:
        p(f"s_mov_b32 s{sCnt}, 2")
        p.wait(vm=('cb', 6), lgkm=('caf', 6*20+1))
        pub = c_pub(cF, 1)
        for n in range(6, 14):
            p.add(c_stage(n, cS, czero=(n == 6), more=pub[2*(n-6):2*(n-6)+2], cap=52).items())
        n0 = 14; trips = 2
    else:
        for r in range(80): p(f"v_accvgpr_write_b32 a{cS+r}, 0")
        p(f"s_mov_b32 s{sCnt}, 3")
        p.wait(vm=('cb', 6), lgkm=('caf', 6*20+1))
        n0 = 6; trips = 3
    p(".p2align 6"); p("C_loop:")
    p.loop_begin("C_loop", trips)
    for n in range(n0, n0+8):
        G = c_stage(n, cS, 8)
        if n == n0+7:
            G.sc(31, Ins(f"s_sub_u32 s{sCnt}, s{sCnt}, 1")); G.sc(39, Ins(f"s_cmp_lg_u32 s{sCnt}, 0"))
        p.add(G.items())
    p("s_cbranch_scc1 C_loop")
    p.loop_end()
    stamp(p, 12)
    p("s_nop 7"); p("s_waitcnt vmcnt(30)")
    for sc, m in c_pub(cS, 0): p.add(sc); p.add(m)
    if not OPT['fpub']:
        for sc, m in c_pub(cF, 1): p.add(sc); p.add(m)
    R = 64; F = 84
    for tt in range(5):
        for r in range(4): p(f"v_accvgpr_read_b32 v{R+tt*4+r}, a{cS+(tt*2)*4+r}")
        for r in range(4): p(f"v_accvgpr_read_b32 v{F+tt*4+r}, a{cF+(tt*2)*4+r}")
    p("s_waitcnt vmcnt(0) lgkmcnt(0)"); p("s_barrier")
    p.add(signal(sT+4))
    stamp(p, 13)
    for t in range(5): p(f"buffer_load_dwordx2 {vr(6+2*t,2)}, v4, s[4:7], s{cXO} offen offset:{32*t}")
    poll(p, "C_px", vP4, sFX)
    stamp(p, 14)
    p(f"s_mul_i32 s{sT}, s{cC}, {3*2*4*5120}"); p(f"s_add_u32 s{sT}, s{sT}, s{cXB}")
    def qb(j): return 104 + 20*j
    for sg in range(3):
        for kind in range(2):
            j = kind*3 + sg
            for tt in range(5):
                p(f"buffer_load_dwordx4 {vr(qb(j)+4*tt)}, v{vL16 if tt < 4 else vL1K}, s[20:23], s{sT} offen offset:{min(tt,3)*1024}{SC1}")
            p(f"s_add_u32 s{sT}, s{sT}, {4*5120}")
    p(f"s_cmp_eq_u32 s2, 0"); p(f"s_cselect_b32 s{sT+1}, 0, 0x10000000")
    p.add(signal(sT+1))
    p("s_waitcnt vmcnt(0)")
    stamp(p, 15)
    for i in range(20):
        p(f"v_add_f32 v{R+i}, v{R+i}, v{qb(0)+i}"); p(f"v_add_f32 v{qb(1)+i}, v{qb(1)+i}, v{qb(2)+i}")
        p(f"v_add_f32 v{F+i}, v{F+i}, v{qb(3)+i}"); p(f"v_add_f32 v{qb(4)+i}, v{qb(4)+i}, v{qb(5)+i}")
    for i in range(20):
        p(f"v_add_f32 v{R+i}, v{R+i}, v{qb(1)+i}"); p(f"v_add_f32 v{F+i}, v{F+i}, v{qb(4)+i}")
    T = 104
    def rnd2(a, b, t):
        p(f"v_cvt_pk_bf16_f32 v{t}, v{a}, v{b}"); p(f"v_lshlrev_b32 v{a}, 16, v{t}"); p(f"v_and_b32 v{b}, 0xffff0000, v{t}")
    for i in range(0, 20, 2): rnd2(R+i, R+i+1, T); rnd2(F+i, F+i+1, T+1)
    p(f"s_mov_b32 s{sT}, {f32(-LOG2E)}")
    for i in range(20): p(f"v_mul_f32 v{T+i}, s{sT}, v{F+i}")
    for i in range(20): p(f"v_exp_f32 v{T+i}, v{T+i}")
    for i in range(20): p(f"v_add_f32 v{T+i}, 1.0, v{T+i}")
    for i in range(20): p(f"v_rcp_f32 v{T+i}, v{T+i}")
    for i in range(20): p(f"v_mul_f32 v{F+i}, v{F+i}, v{T+i}")
    for i in range(0, 20, 2): rnd2(F+i, F+i+1, T)
    for i in range(20): p(f"v_mul_f32 v{R+i}, v{R+i}, v{F+i}")
    for i in range(0, 20, 2): rnd2(R+i, R+i+1, T)
    for i in range(10):
        p(f"v_lshlrev_b32 v{T}, 16, v{6+i}"); p(f"v_and_b32 v{T+1}, 0xffff0000, v{6+i}")
        p(f"v_add_f32 v{T}, v{T}, v{R+2*i}"); p(f"v_add_f32 v{T+1}, v{T+1}, v{R+2*i+1}")
        p(f"v_cvt_pk_bf16_f32 v{F+i}, v{T}, v{T+1}")
    for t in range(5): p(f"buffer_store_dwordx2 {vr(F+2*t,2)}, v4, s[8:11], s{cXO} offen offset:{32*t}")

def a_wloads(it):
    st = it % 3; out = []; sl = [('A', st)]
    for j in range(2):
        for blk in range(3):
            sc = [Ins(f"s_add_u32 m0, s{sWQm}, {st*A_STAGE + blk*8192 + j*1024 - blk*128}")]
            if blk == 0: sc.insert(0, Ins(f"s_mov_b32 s{sT}, {(it*64 + j*16)*12288}"))
            out.append((sc, Ins(f"buffer_load_dwordx4 v{vWQ}, s[12:15], s{sT} offen offset:{blk*128} lds", tag=('A', it), slot=sl, gen=(it, 0))))
    for j in range(3):
        sc = [Ins(f"s_add_u32 m0, s{sGUm}, {st*A_STAGE + 24576 + j*1024}")]
        if j == 0: sc.insert(0, Ins(f"s_mov_b32 s{sT}, {it*64*3072}"))
        out.append((sc, Ins(f"buffer_load_dwordx4 v{vGU+j}, s[16:19], s{sT} offen lds", tag=('A', it), slot=sl, gen=(it, 0))))
    return out
vTA = 44; vTB = 45; vTD = 46
def touch_setup(p):
    t = vT
    p(f"s_lshl_b32 s{sT}, s{sI}, 3"); p(f"s_lshl_b32 s{sT+1}, s{sW}, 1"); p(f"s_add_u32 s{sT+1}, s{sT+1}, s{sT}")
    p(f"v_and_b32 v{t}, 1, v{vLANE}"); p(f"v_lshrrev_b32 v{t+1}, 1, v{vLANE}")
    p(f"v_add_u32 v{t+2}, s{sT+1}, v{t}"); p(f"v_mul_u32_u24 v{t+2}, 12288, v{t+2}"); p(f"v_lshl_add_u32 v{t+2}, v{t+1}, 7, v{t+2}")
    p(f"v_mov_b32 v{t+3}, 0x10000000"); p(f"v_cmp_gt_u32 vcc, 6, v{vLANE}"); p("s_nop 1"); p(f"v_cndmask_b32 v{vTA}, v{t+3}, v{t+2}, vcc")
    p(f"s_and_b32 s{sT+1}, s{sW}, 1"); p(f"s_lshl_b32 s{sT+1}, s{sT+1}, 2"); p(f"s_add_u32 s{sT+1}, s{sT+1}, s{sT}")
    p(f"v_add_u32 v{t+2}, s{sT+1}, v{t+1}"); p(f"v_mul_u32_u24 v{t+2}, 3072, v{t+2}"); p(f"v_mul_u32_u24 v{t}, 92, v{t}"); p(f"v_add_u32 v{t+2}, v{t+2}, v{t}")
    p(f"v_cmp_gt_u32 vcc, 8, v{vLANE}"); p("s_nop 1"); p(f"v_cndmask_b32 v{vTB}, v{t+3}, v{t+2}, vcc")
def touch(it):
    if not OPT['warm'] or it > 9: return []
    d = vTD + 2*(it % 4)
    return [([Ins(f"s_mov_b32 s{sT}, {it*64*12288}")], Ins(f"buffer_load_dword v{d}, v{vTA}, s[12:15], s{sT} offen")),
            ([Ins(f"s_mov_b32 s{sT}, {it*64*3072}")], Ins(f"buffer_load_dword v{d+1}, v{vTB}, s[16:19], s{sT} offen"))]
def a_xloads(it):
    st = it % 3; out = []
    for ks in range(2):
        for qt in range(4):
            sc = [Ins(f"s_mov_b32 s{sT+1}, {(it*2+ks)*4096}")] if qt == 0 else []
            out.append((sc, Ins(f"buffer_load_dwordx4 {ar(XB+32*st+(ks*4+qt)*4)}, v{vL16}, s[20:23], s{sT+1} offen offset:{qt*1024}{SC1}", tag=('A', it))))
    return out
def a_read(it, f):
    st = it % 3; ks, nt = divmod(f, 18); rs = (it*36+f) % 8; o = []
    for rd in range(2):
        if nt < 12:
            j = nt >> 1; e = nt & 1
            a = vAQ + 3*st + (j & 1); off = (j >> 1)*8192 + ks*4096 + rd*2048 + 8*e
        else:
            mtx, tt = divmod(nt-12, 3)
            a = vAQ + 3*st + 2; off = 24576 + mtx*6144 + ks*3072 + rd*1536 + tt*32
        o.append(Ins(f"ds_read_b64_tr_b16 {ar(RING+4*rs+2*rd,2)}, v{a} offset:{off}", tag=('af', it*36+f), slot=('A', st), gen=(it, 0)))
    return o

SCR = 81920
def side_issue(p):
    p(f"s_and_b32 s{sT}, s{sH}, 1"); p(f"s_cmp_eq_u32 s{sT}, 1"); p("s_cbranch_scc1 S_o0")
    srd(p, 4, kX, SZ_XN)
    p(f"v_and_b32 v64, 15, v{vLANE}"); p(f"v_lshrrev_b32 v65, 4, v{vLANE}")
    p("v_mul_u32_u24 v66, 1280, v64"); p("v_lshl_add_u32 v66, v65, 4, v66")
    p(f"s_lshl_b32 s{sT+5}, s{sI}, 4"); p(f"s_lshr_b32 s{sT}, s{sH}, 1"); p(f"s_add_u32 s{sT+5}, s{sT+5}, s{sT}")
    p(f"s_mul_i32 s{sT}, s{sT+5}, 20480"); p(f"s_mul_i32 s{sT+1}, s{sW}, 320"); p(f"s_add_u32 s{sT}, s{sT}, s{sT+1}")
    for j in range(5): p(f"buffer_load_dwordx4 {vr(80+4*j)}, v66, s[4:7], s{sT} offen offset:{64*j}")
    wsrds(p)
    p("s_branch S_c0")
    p("S_o0:")
    wsrds(p)
    p("S_c0:")

def wsrds(p):
    p(f"s_mul_i32 s{sT+2}, s{sH}, 384")
    srd(p, 12, kWQ, None, f"s{sT+2}"); p(f"s_sub_u32 s14, {640*12288}, s{sT+2}")
    p(f"s_cmp_lt_u32 s{sW}, 2"); p(f"s_cselect_b32 s16, s{kWG}, s{kWU}"); p(f"s_cselect_b32 s17, s{kWG+1}, s{kWU+1}")
    p(f"s_mul_i32 s{sT+2}, s{sH}, 96")
    srd(p, 16, 16, None, f"s{sT+2}"); p(f"s_sub_u32 s18, {640*3072}, s{sT+2}")

def pack_issue(p):
    p(f"s_lshl_b32 s{sT+3}, s{sI}, 5"); p(f"s_add_u32 s{sT+3}, s{sT+3}, s{sH}")
    p(f"s_cmp_lt_u32 s{sT+3}, 192")
    p(f"s_cselect_b32 s60, s{kWO}, s{kWD}"); p(f"s_cselect_b32 s61, s{kWO+1}, s{kWD+1}")
    p(f"s_mov_b32 s{sT}, {6144*1280}"); p(f"s_cselect_b32 s62, s{sT}, {1536*1280}"); p("s_mov_b32 s63, 0x20000")
    p(f"s_cselect_b32 s{sT}, 0, 192"); p(f"s_sub_u32 s{sT}, s{sT+3}, s{sT}"); p(f"s_mul_i32 s{sT}, s{sT}, 40960")
    p(f"s_mul_i32 s{sT+1}, s{sW}, 10240"); p(f"s_add_u32 s{sT}, s{sT}, s{sT+1}")
    for j in range(3):
        p(f"s_add_u32 m0, s{sT+1}, {4096*j}"); p("s_nop 0")
        for k in range(4 if j < 2 else 2): p(f"buffer_load_dwordx4 v{vL16}, s[60:63], s{sT} offen offset:{1024*k} lds", m0reuse=True, tag=('pk', 0), slot=[('A', 0), ('A', 1)], gen=(99, 0))
        p(f"s_add_u32 s{sT}, s{sT}, 4096")
    srd(p, 96, kWS, SZ_WP, WS_WP)
    p(f"s_mul_i32 s69, s{sW}, 480"); p(f"s_add_u32 s69, s69, s{sT+3}"); p(f"s_mul_i32 s69, s69, 5120")
    p(f"s_cmp_lt_u32 s{sT+3}, 240"); p(f"s_cselect_b32 s69, s69, 0x10000000")
vPK = 19
def pack_setup(p):
    p(f"v_lshrrev_b32 v{vPK}, 2, v{vLANE}"); p(f"v_mul_u32_u24 v{vPK}, 1280, v{vPK}")
    p(f"v_and_b32 v{vT+1}, 3, v{vLANE}"); p(f"v_lshl_add_u32 v{vPK}, v{vT+1}, 3, v{vPK}")
    p(f"s_mul_i32 s{sT}, s{sW}, 320"); p(f"v_add_u32 v{vPK}, s{sT}, v{vPK}")
def pkreg(t, o=0, n=4): return vr(28+4*t+o, n) if t < 8 else ar(224+4*(t-8)+o, n)
def pack_reads():
    return [[[], Ins(f"ds_read_b64_tr_b16 {pkreg(t,2*rd,2)}, v{vPK} offset:{32*t + rd*16*1280}", slot=('A', 0)), []] for t in range(10) for rd in range(2)]
def pack_stores():
    return [[[Ins(f"s_add_u32 s69, s69, {240*5120}")] if t == 5 else [],
             Ins(f"buffer_store_dwordx4 {pkreg(t)}, v{vL16 if t%5 < 4 else vL1K}, s[96:99], s69 offen offset:{min(t%5,3)*1024}{SC1}", tag=('H', 0)), []] for t in range(10)]
def fill(G, lst, g0, g1, step):
    BARG = OPT['barg']; g = g0
    while lst and g < g1:
        sc, m, po = lst[0]
        if G.cap[g] >= 1 and not (BARG-2 <= g <= BARG+1):
            lst.pop(0)
            for s_ in sc: G.sc(g-1, s_)
            G.N[g].append(m); G.cap[g] -= 1
            for s_ in po: G.sc(g+1, s_)
            g += step
        else: g += 1

def side_work(p, nyoung):
    p(f"s_and_b32 s{sT}, s{sH}, 1"); p(f"s_cmp_eq_u32 s{sT}, 1"); p("s_cbranch_scc1 S_pk1")
    ln = Prog(); q = ln
    srd(q, 4, kWS, SZ_XN)
    q(f"v_lshlrev_b32 v67, 4, v64"); q(f"v_add_u32 v67, {SCR}, v67")
    q(f"s_lshl_b32 s{sT}, s{sW}, 2"); q(f"v_add_u32 v68, s{sT}, v67")
    q(f"s_waitcnt vmcnt({nyoung})")
    X = 80; U = 104
    for i in range(20):
        q(f"v_lshlrev_b32 v{U+2*i}, 16, v{X+i}"); q(f"v_and_b32 v{U+2*i+1}, 0xffff0000, v{X+i}")
    q(f"v_add_f32 v69, v{U}, v{U+1}"); q(f"v_add_f32 v70, v{U+2}, v{U+3}")
    for i in range(4, 40, 2):
        q(f"v_add_f32 v69, v69, v{U+i}"); q(f"v_add_f32 v70, v70, v{U+i+1}")
    q("v_add_f32 v69, v69, v70")
    xlane(q, "v_add_f32", 69, 70)
    q("ds_write_b32 v68, v69"); q("s_waitcnt lgkmcnt(0)"); q("s_barrier")
    q("ds_read_b128 v[72:75], v67"); q("s_waitcnt lgkmcnt(0)")
    q("v_add_f32 v72, v72, v73"); q("v_add_f32 v74, v74, v75"); q("v_add_f32 v72, v72, v74")
    q(f"v_mul_f32 v71, {f32(1/640)}, v72")
    q("v_mov_b32 v69, 0"); q("v_mov_b32 v70, 0")
    for i in range(0, 40, 2):
        q(f"v_sub_f32 v72, v{U+i}, v71"); q(f"v_sub_f32 v73, v{U+i+1}, v71")
        q("v_fmac_f32 v69, v72, v72"); q("v_fmac_f32 v70, v73, v73")
    q("v_add_f32 v69, v69, v70")
    xlane(q, "v_add_f32", 69, 70)
    q("ds_write_b32 v68, v69 offset:256"); q("s_waitcnt lgkmcnt(0)"); q("s_barrier")
    q("ds_read_b128 v[72:75], v67 offset:256"); q("s_waitcnt lgkmcnt(0)")
    q("v_add_f32 v72, v72, v73"); q("v_add_f32 v74, v74, v75"); q("v_add_f32 v72, v72, v74")
    q(f"v_mul_f32 v72, {f32(1/640)}, v72")
    q("v_cvt_pk_bf16_f32 v73, v71, v72")
    q("v_lshlrev_b32 v71, 16, v73"); q("v_and_b32 v72, 0xffff0000, v73")
    q(f"v_add_f32 v72, {f32(1e-5)}, v72")
    q("v_cvt_pk_bf16_f32 v72, v72, v72"); q("v_lshlrev_b32 v72, 16, v72")
    q("v_sqrt_f32 v72, v72"); q("s_nop 0")
    q("v_cvt_pk_bf16_f32 v72, v72, v72"); q("v_lshlrev_b32 v72, 16, v72")
    q("v_rcp_f32 v72, v72")
    q(f"s_lshr_b32 s{sT}, s{sT+5}, 2"); q(f"s_mul_i32 s{sT}, s{sT}, 81920")
    q(f"s_and_b32 s{sT+1}, s{sT+5}, 3"); q(f"s_lshl_b32 s{sT+1}, s{sT+1}, 10"); q(f"s_add_u32 s{sT}, s{sT}, s{sT+1}")
    q(f"s_mul_i32 s{sT+1}, s{sW}, 20480"); q(f"s_add_u32 s{sT}, s{sT}, s{sT+1}")
    for i in range(20):
        q(f"v_sub_f32 v73, v{U+2*i}, v71"); q(f"v_sub_f32 v74, v{U+2*i+1}, v71")
        q("v_cvt_pk_bf16_f32 v73, v73, v74")
        q("v_and_b32 v74, 0xffff0000, v73"); q("v_lshlrev_b32 v73, 16, v73")
        q("v_mul_f32 v73, v73, v72"); q("v_mul_f32 v74, v74, v72")
        q(f"v_cvt_pk_bf16_f32 v{X+i}, v73, v74")
        if i % 4 == 3:
            q(f"buffer_store_dwordx4 {vr(X+i-3)}, v{vL16}, s[4:7], s{sT} offen{SC1}"); q(f"s_add_u32 s{sT}, s{sT}, 4096")
    q(f"s_lshl_b32 s{sT+1}, s{sT+5}, 3"); q(f"s_add_u32 s{sT+1}, s{sT+1}, {FL_LN}")
    q("s_waitcnt vmcnt(0)"); q("s_barrier")
    q.add(signal(sT+1))
    for sc, m in a_wloads(1):
        q.add(sc); q("s_nop 0"); q.add(m)
    q("s_branch S_c1")
    pk = Prog(); q = pk
    q("S_pk1:")
    for sc, m in a_wloads(1):
        q.add(sc); q("s_nop 0"); q.add(m)
    q("S_c1:")
    return ln.items, pk.items

def kernel():
    p = Prog()
    p("s_cmp_ge_u32 s2, 256"); p("s_cbranch_scc1 K_end")
    p(f"s_load_dwordx16 s[72:87], s[0:1], 0"); p(f"s_load_dwordx8 s[88:95], s[0:1], 64")
    p(f"v_lshrrev_b32 v1, 6, v0"); p(f"v_and_b32 v{vLANE}, 63, v0")
    p(f"v_readfirstlane_b32 s{sW}, v1")
    p(f"s_and_b32 s{sH}, s2, 7"); p(f"s_lshl_b32 s{sH}, s{sH}, 2"); p(f"s_bfe_u32 s{sT}, s2, 0x20003"); p(f"s_add_u32 s{sH}, s{sH}, s{sT}")
    p(f"s_lshr_b32 s{sI}, s2, 5")
    p(f"v_lshlrev_b32 v{vL16}, 4, v{vLANE}"); p(f"v_add_u32 v{vL1K}, 1024, v{vL16}")
    if OPT['stamp']: p(f"v_mov_b32 v{vSTAMP}, 0")
    stamp(p, 0)
    p("s_waitcnt lgkmcnt(0)")
    side_issue(p)
    srd(p, sFL, kWS, SZ_FL, WS_FL)
    p(f"s_load_dwordx2 s[{sNON}:{sNON+1}], s[{sFL}:{sFL+1}], 0")
    t = vT
    p(f"v_lshrrev_b32 v{t}, 3, v2"); p(f"v_and_b32 v{t+1}, 7, v2"); p(f"v_bfe_u32 v{t+2}, v2, 4, 2")
    p(f"v_lshlrev_b32 v{t+3}, 1, v{t+2}"); p(f"v_xor_b32 v{t+3}, v{t+3}, v{t+1}"); p(f"v_lshlrev_b32 v{t+3}, 4, v{t+3}")
    p(f"v_lshrrev_b32 v{t+4}, 2, v{t}"); p(f"v_lshlrev_b32 v{t+4}, 3, v{t+4}")
    p(f"v_and_b32 v{t+5}, 3, v{t}"); p(f"v_add_u32 v{t+4}, v{t+4}, v{t+5}")
    p(f"s_lshr_b32 s{sT+2}, s{sW}, 1"); p(f"s_lshl_b32 s{sT+2}, s{sT+2}, 5")
    p(f"s_and_b32 s{sT+3}, s{sW}, 1"); p(f"s_lshl_b32 s{sT+3}, s{sT+3}, 2"); p(f"s_add_u32 s{sT+2}, s{sT+2}, s{sT+3}")
    p(f"v_add_u32 v{t+4}, s{sT+2}, v{t+4}")
    p(f"v_mul_u32_u24 v{t+4}, 12288, v{t+4}"); p(f"v_add_u32 v{vWQ}, v{t+4}, v{t+3}")
    p(f"s_lshl_b32 s{sT+2}, s{sW}, 3"); p(f"v_add_u32 v{t+4}, s{sT+2}, v{t}")
    p(f"v_mul_u32_u24 v{t+5}, 384, v{t+4}"); p(f"v_add_u32 v{vDV}, v{t+5}, v{t+3}")
    p(f"v_bfe_u32 v{t+6}, v{t+4}, 1, 3"); p(f"v_xor_b32 v{t+6}, v{t+6}, v{t+1}")
    p(f"v_lshl_add_u32 v{vDK}, v{t+6}, 4, v{t+5}")
    p(f"s_and_b32 s{sT+3}, s{sW}, 1"); p(f"s_lshl_b32 s{sT+3}, s{sT+3}, 5")
    for j in range(3):
        p(f"v_add_u32 v{t+4}, {64*j}, v2")
        p(f"v_mul_u32_u24 v{t+5}, 171, v{t+4}"); p(f"v_lshrrev_b32 v{t+5}, 10, v{t+5}")
        p(f"v_mul_u32_u24 v{t+6}, 6, v{t+5}"); p(f"v_sub_u32 v{t+6}, v{t+4}, v{t+6}")
        p(f"v_bfe_u32 v{t+7}, v{t+5}, 2, 2"); p(f"v_lshlrev_b32 v{t+7}, 3, v{t+7}")
        p(f"v_lshrrev_b32 v{t+8}, 4, v{t+5}"); p(f"v_lshl_add_u32 v{t+7}, v{t+8}, 2, v{t+7}")
        p(f"v_and_b32 v{t+8}, 3, v{t+5}"); p(f"v_add3_u32 v{t+7}, v{t+7}, v{t+8}, s{sT+3}")
        p(f"v_mul_u32_u24 v{t+7}, 3072, v{t+7}"); p(f"v_lshl_add_u32 v{vGU+j}, v{t+6}, 4, v{t+7}")
    p(f"s_lshl_b32 s{sWQm}, s{sW}, 11"); p(f"s_mul_i32 s{sGUm}, s{sW}, 3072")
    ny = 0
    for sc, m in a_wloads(0):
        p.add(sc); p("s_nop 0"); p.add(m); ny += 1
    touch_setup(p)
    for it in range(1, OPT['td']):
        for sc, m in touch(it): p.add(sc); p.add(m); ny += 1
    p(f"v_lshrrev_b32 v{t}, 2, v2"); p(f"v_and_b32 v{t+1}, 3, v2"); p(f"v_bfe_u32 v{t+2}, v2, 3, 2")
    p(f"v_lshlrev_b32 v{t+3}, 7, v{t}")
    p(f"v_lshlrev_b32 v{t+4}, 1, v{t+2}"); p(f"v_xor_b32 v{t+4}, v{t+4}, v{t+1}")
    p(f"v_lshl_add_u32 v{vAQ}, v{t+4}, 4, v{t+3}"); p(f"v_xor_b32 v{vAQ+1}, 64, v{vAQ}")
    p(f"v_mul_u32_u24 v{t+4}, 96, v{t}"); p(f"v_lshl_add_u32 v{vAQ+2}, v{t+1}, 3, v{t+4}")
    for s in (1, 2):
        for j in range(3): p(f"v_add_u32 v{vAQ+3*s+j}, {s*A_STAGE}, v{vAQ+j}")
    p(f"v_lshl_add_u32 v{t+4}, v{t+2}, 5, v{t+3}"); p(f"v_lshl_add_u32 v{t+4}, v{t+1}, 3, v{t+4}")
    p(f"v_add_u32 v{vV}, {V_RING}, v{t+4}")
    for u in range(1, 4): p(f"v_xor_b32 v{vV+u}, {32*u}, v{vV}")
    p(f"v_lshlrev_b32 v{vP4}, 3, v{t+1}")
    p(f"v_and_b32 v{t}, 15, v2"); p(f"v_lshrrev_b32 v{t+1}, 4, v2"); p(f"v_bfe_u32 v{t+2}, v2, 1, 3")
    p(f"v_xor_b32 v{t+1}, v{t+1}, v{t+2}"); p(f"v_lshlrev_b32 v{t}, 7, v{t}"); p(f"v_lshl_add_u32 v{t}, v{t+1}, 4, v{t}")
    p(f"v_add_u32 v{vK0}, {K_RING}, v{t}"); p(f"v_xor_b32 v{vK0+1}, 64, v{vK0}")
    p(f"v_and_b32 v{vP8}, 7, v2"); p(f"v_lshlrev_b32 v{vP8}, 3, v{vP8}")
    p(f"v_mov_b32 v{t}, 0x10000000"); p("v_cmp_eq_u32 vcc, 0, v0"); p("s_nop 1"); p(f"v_cndmask_b32 v{vSIG}, v{t}, v0, vcc")
    p(f"s_lshl_b32 s{sT+1}, s{sI}, 2"); p(f"s_add_u32 s{sT+1}, s{sT+1}, s{sW}")
    p(f"s_mul_i32 s{sT+2}, s{sT+1}, 81920"); srd(p, 20, kWS, 81920, f"s{sT+2}")
    p(f"s_mul_i32 s{sT+2}, s{sT+1}, {240*4096}"); p(f"s_add_u32 s{sT+2}, s{sT+2}, {WS_OF}"); srd(p, 24, kWS, 240*4096, f"s{sT+2}")
    p(f"s_lshl_b32 s{sT+4}, s{sT+1}, 5"); p(f"s_add_u32 s{sT+4}, s{sT+4}, {FL_LN}")
    p(f"s_lshl_b32 s{sT+2}, s{sW}, 10")
    p(f"s_add_u32 s{sKb}, s{sT+2}, {K_RING}"); p(f"s_add_u32 s{sVb}, s{sT+2}, {V_RING}")
    p(f"s_mov_b32 s{sPass}, 0")
    p("s_waitcnt lgkmcnt(0)")
    p(f"s_add_u32 s{sNON}, s{sNON}, 0x7f4a7c15"); p(f"s_addc_u32 s{sNON+1}, s{sNON+1}, 0x9e3779b9")
    p(f"v_mov_b32 v{vNON}, s{sNON}"); p(f"v_mov_b32 v{vNON+1}, s{sNON+1}")
    stamp(p, 1)
    head = p.items
    ln, pk = side_work(p, ny)
    p = Prog()
    stamp(p, 2)
    poll(p, "A_pl", vP4, sT+4)
    stamp(p, 3)
    for it in range(2):
        for sc, m in a_xloads(it): p.add(sc); p.add(m)
    p(f"s_mul_i32 s{sT+2}, s{sH}, 786432")
    srd(p, 4, kK, 786432, f"s{sT+2}"); srd(p, 8, kV, 786432, f"s{sT+2}")
    p("s_barrier")
    LA = 4
    for f in range(LA): p.add(a_read(0, f))
    p.wait(vm=('A', 0), lgkm=('af', 1))
    stamp(p, 4)
    for it in range(10):
        st = it % 3; M = []
        for ks in range(2):
            for nt in range(18):
                rs = (it*36 + ks*18+nt) % 8
                for qt in range(4):
                    d = vr(QACC + (nt*4+qt)*4) if nt < 12 else ar(((nt-12)*4+qt)*4)
                    c = "0" if (it == 0 and ks == 0) else d
                    M.append(Ins(f"{MF} {d}, {ar(RING+4*rs)}, {ar(XB+32*st+(ks*4+qt)*4)}, {c}"))
        G = Gaps(M)
        BG = 4*(36-LA)
        for f in range(LA, 36):
            r = a_read(it, f); g = 4*(f-LA) - (2 if f >= 30 else 0)
            g = G.mem_from(g, r[0]); G.mem_from(g+1, r[1])
        if it < 9:
            G.sc(BG-1, Wait(vm=('A', it+1), lgkm='all')); G.sc(BG, Ins("s_barrier"))
            g = BG+1
            for f in range(LA):
                r = a_read(it+1, f)
                g = max(g, 4*(36+f-8)+4)
                g = G.mem_from(g, r[0]); g = G.mem_from(g+1, r[1]) + 1
            G.sc(143, Wait(lgkm=('af', (it+1)*36+1)))
        for f in range(2, 36, 2):
            if 4*f-1 < BG-1 or it == 9: G.sc(4*f-1, Wait(lgkm=('af', it*36+f+1)))
        L = []
        if it+2 < 10: L = touch(it+OPT['td']) + a_wloads(it+2) + a_xloads(it+2)
        elif it == 8:
            for tl in range(4):
                for b, (mi, d) in enumerate(kv_dma('K', tl, tl, sKo)):
                    L.append((([Ins(f"s_mov_b32 s{sKo}, {tl*SLOT}")] if b == 0 else []) + [mi], d))
        else:
            for tl in range(3):
                for b, (mi, d) in enumerate(kv_dma('V', tl, tl, sVo)):
                    d.meta['slot'] = [d.meta['slot'], ('A', 1), ('A', 2)]
                    L.append((([Ins(f"s_mov_b32 s{sVo}, {tl*SLOT}")] if b == 0 else []) + [mi], d))
        g = 2
        for sc, m in L:
            while G.N[g] or not G.sc_free(g-1) or (len(sc) > 1 and not G.sc_free(g-2)): g += 1
            for k, s_ in enumerate(reversed(sc)): G.sc(g-1-k, s_)
            G.mem(g, m); g += 4
        assert g < BG
        p.add(G.items())
    stamp(p, 5)
    c_setup(p)
    p(f"s_mov_b32 s{sT+4}, {f32(-LOG2E)}")
    p(f"s_mul_i32 s{sT+2}, s{sH}, 3")
    for tt in range(3):
        p(f"s_add_u32 s{sT+3}, s{sT+2}, {tt}"); p(f"s_and_b32 s{sT}, s{sT+3}, 1"); p(f"s_lshl_b32 s{sT}, s{sT}, 3")
        p(f"s_lshr_b32 s{sT+3}, s{sT+3}, 1"); p(f"s_add_u32 s{sT+3}, s{sT+3}, 192"); p(f"s_lshl_b32 s{sT+3}, s{sT+3}, 12")
        p(f"s_add_u32 s{sT}, s{sT}, s{sT+3}")
        for qt in range(4):
            b = vT + 16*(qt & 1)
            for r in range(4): p(f"v_accvgpr_read_b32 v{b+r}, a{(tt*4+qt)*4+r}")
            for r in range(4): p(f"v_mul_f32 v{b+8+r}, s{sT+4}, v{b+r}")
            for r in range(4): p(f"v_exp_f32 v{b+8+r}, v{b+8+r}")
            for r in range(4): p(f"v_accvgpr_read_b32 v{b+4+r}, a{48+(tt*4+qt)*4+r}")
            for r in range(4): p(f"v_add_f32 v{b+8+r}, 1.0, v{b+8+r}")
            for r in range(4): p(f"v_rcp_f32 v{b+8+r}, v{b+8+r}")
            for r in range(0, 4, 2): p(f"v_pk_mul_f32 {vr(b+r,2)}, {vr(b+r,2)}, {vr(b+4+r,2)}")
            for r in range(0, 4, 2): p(f"v_pk_mul_f32 {vr(b+r,2)}, {vr(b+r,2)}, {vr(b+8+r,2)}")
            p(f"v_cvt_pk_bf16_f32 v{b+12}, v{b}, v{b+1}"); p(f"v_cvt_pk_bf16_f32 v{b+13}, v{b+2}, v{b+3}")
            p(f"buffer_store_dwordx2 {vr(b+12,2)}, v{vL16}, s[24:27], s{sT} offen offset:{qt*1024}{SC1}", tag=('H', 0))
    p(f"s_mov_b32 s{sT+4}, {f32(QSCALE)}"); p(f"s_mov_b32 s{sT+5}, s{sT+4}")
    for ks in range(6):
        for qt in range(4):
            d = QF + (ks*4+qt)*4
            for e in range(2):
                s = QACC + ((2*ks+e)*4+qt)*4
                p(f"v_pk_mul_f32 {vr(s,2)}, {vr(s,2)}, s[{sT+4}:{sT+5}]")
                p(f"v_pk_mul_f32 {vr(s+2,2)}, {vr(s+2,2)}, s[{sT+4}:{sT+5}]")
                p(f"v_cvt_pk_bf16_f32 v{d+2*e}, v{s}, v{s+1}"); p(f"v_cvt_pk_bf16_f32 v{d+2*e+1}, v{s+2}, v{s+3}")
    for qt in range(4): p(f"v_mov_b32 v{MXI+qt}, 0xff800000")
    pack_setup(p)
    p('s_barrier')
    pack_issue(p)
    pa = p.items

    a = Prog(); BARG = OPT['barg']
    a("K_attn:")
    a(f"s_mov_b32 s{sKo}, {4*SLOT}"); a(f"s_mov_b32 s{sVo}, {3*SLOT}")
    a.wait(vm=[('K', 0), ('K', 1), ('V', 0)]); a("s_barrier")
    stamp(a, 6)
    for f in range(4): a.add(kfrag_read(f, f, 0))
    G = Gaps(qk_mfmas(czero=True))
    a.wait(lgkm=('kf', 0))
    for f in range(4, 12): G.mem(4*(f-4), kfrag_read(f, f % 8, 0)[0])
    for f in range(1, 12): G.sc(4*f-1, Wait(lgkm=('kf', f)))
    a.add(G.items())
    a("s_barrier")
    for g, m in sorted(PLAN['mem'].items()):
        if g > BARG and not m[2]:
            if m[0] == 'k': a.add(kfrag_read(m[1], m[1] % 8, 1))
            elif m[0] == 'dma':
                kind = 'K' if m[1] < 3 else 'V'; tile = 4 if kind == 'K' else 3; so = sKo if kind == 'K' else sVo
                mi, d = kv_dma(kind, tile, tile % 4, so)[m[1] % 3]
                a.add(mi); a("s_nop 0"); a.add(d)
                if m[1] % 3 == 2: a(f"s_add_u32 s{so}, s{so}, {SLOT}")
    for qt in range(4):
        s0 = SR + qt*4; s1 = SR + 16 + qt*4; m = vT + qt
        a(f"v_max3_f32 v{m}, v{s0}, v{s0+1}, v{MXI+qt}")
        a(f"v_max3_f32 v{m}, v{s0+2}, v{s0+3}, v{m}")
        a(f"v_max3_f32 v{m}, v{s1}, v{s1+1}, v{m}")
        a(f"v_max3_f32 v{m}, v{s1+2}, v{s1+3}, v{m}")
    xlane4(a, "v_max_f32", [vT+q for q in range(4)], vT+4)
    for qt in range(4):
        for r in range(4): a(f"v_sub_f32 v{MR+4*qt+r}, 0, v{vT+qt}")
        a(f"v_mov_b32 v{LR+qt}, 0")
        for kt in range(2):
            for r in range(4):
                s = SR + (kt*4+qt)*4 + r
                a(f"v_sub_f32 v{s}, v{s}, v{vT+qt}")
    prev = None
    for (c, t_, kt, qt), g in sorted(zip(softmax_items(0), PLAN['vpos']), key=lambda x: x[1]):
        if g < 96: a(t_)
    a.wait(lgkm=[('kf', 12), ('kf', 13)])
    a("s_nop 1")
    prd = pack_reads(); pst = pack_stores()
    for i in range(4):
        G = attn_step(i, 0, first=(i == 0))
        if i == 1: G.S[BARG-1][-1].vm.append(('pk', 0)); fill(G, prd, BARG+2, 94, 1)
        if i == 2: fill(G, prd, 2, BARG-3, 1); assert not prd; fill(G, pst, BARG+2, 94, 2)
        if i == 3: fill(G, pst, 2, 94, 2); assert not pst
        a.add(G.items())
    a(f"s_mov_b32 s{sCnt}, 14")
    a(".p2align 6"); a("K_loop:")
    a.loop_begin("K_loop", 14)
    for i in range(4, 8):
        G = attn_step(i, 4)
        if i == 6:
            G.S[BARG-1][-1].vm.append(('H', 0)); G.mem_from(BARG+1, signal(sFH))
        if i == 7:
            g = 60
            while not G.sc_free(g): g += 1
            G.sc(g, Ins(f"s_sub_u32 s{sCnt}, s{sCnt}, 1"))
            G.sc(95, Ins(f"s_cmp_lg_u32 s{sCnt}, 0"))
        a.add(G.items())
    a("s_cbranch_scc1 K_loop")
    a.loop_end()
    early = flat_loads(range(3)) if OPT['early'] else []
    for i in range(60, 64):
        G = attn_step(i, 0, last=(i == 63))
        if i == (60 if OPT['early'] else 62):
            g = 18
            for m in hpoll_loads(): g = G.mem_from(g, m) + 2
        if OPT['early'] and i >= 61:
            fill(G, early, 2 if i < 63 else 49, 94, 3)
        a.add(G.items())
        if OPT['early'] and i == 60:
            a.wait(vm=('hp', 0)); hpoll(a, "C_ph"); a.add(c_fcursors())
    assert not early, len(early)
    if not OPT['early']: a("s_waitcnt vmcnt(0)")
    stamp(a, 7)
    xlane4(a, "v_add_f32", [LR+q for q in range(4)], vT)
    a(f"s_mov_b32 s{sT}, 0x5d800000")
    a(f"v_cmp_nle_f32 s[{sT+2}:{sT+3}], v{LR}, s{sT}")
    for qt in range(1, 4):
        a(f"v_cmp_nle_f32 vcc, v{LR+qt}, s{sT}"); a(f"s_or_b64 s[{sT+2}:{sT+3}], s[{sT+2}:{sT+3}], vcc")
    a(f"s_or_b32 s{sT+2}, s{sT+2}, s{sT+3}")
    a(f"v_mov_b32 v{vT}, s{sT+2}"); a(f"s_lshl_b32 s{sT}, s{sW}, 2"); a(f"s_add_u32 s{sT}, s{sT}, {VOTE}"); a(f"v_mov_b32 v{vT+1}, s{sT}")
    a(f"ds_write_b32 v{vT+1}, v{vT}"); a(f"v_mov_b32 v{vT+1}, {VOTE}")
    a("s_waitcnt lgkmcnt(0)"); a("s_barrier")
    a(f"ds_read_b128 {vr(vT+4)}, v{vT+1}"); a("s_waitcnt lgkmcnt(0)")
    a(f"v_or_b32 v{vT+4}, v{vT+4}, v{vT+5}"); a(f"v_or3_b32 v{vT+4}, v{vT+4}, v{vT+6}, v{vT+7}"); a("s_nop 0")
    a(f"v_readfirstlane_b32 s{sT}, v{vT+4}")
    a(f"s_cmp_eq_u32 s{sT}, 0"); a("s_cbranch_scc1 K_epi")
    a(f"s_cmp_eq_u32 s{sPass}, 0"); a("s_cbranch_scc1 K_fb")

    e = Prog()
    e("K_epi:")
    phase_c(e)
    if OPT['stamp']: e("s_waitcnt vmcnt(0)")
    stamp(e, 16); stamp_out(e)
    e("K_end:")
    e("s_endpgm")

    fb = Prog()
    fb("K_fb:")
    fb(f"s_mov_b32 s{sPass}, 1"); fb("s_mov_b32 s69, 0x10000000"); fb(f"s_mov_b32 s{sKo}, 0"); fb(f"s_mov_b32 s{sCnt}, 64")
    fb("K_fbl:")
    fb.loop_begin("K_fbl", 2)
    for mi, d in kv_dma('K', 1000, 0, sKo, 4):
        fb.add(mi); fb("s_nop 0"); fb.add(d)
    fb(f"s_add_u32 s{sKo}, s{sKo}, {SLOT}")
    fb("s_waitcnt vmcnt(0)"); fb("s_barrier")
    Mq = qk_mfmas(czero=True)
    for f in range(12):
        fb.add(kfrag_read(f, f % 8, 1000, 4)); fb("s_waitcnt lgkmcnt(0)"); fb.add(Mq[4*f:4*f+4])
    fb("s_nop 7")
    for qt in range(4):
        for kt in range(2):
            s0 = SR + (kt*4+qt)*4
            fb(f"v_max3_f32 v{MXI+qt}, v{s0}, v{s0+1}, v{MXI+qt}")
            fb(f"v_max3_f32 v{MXI+qt}, v{s0+2}, v{s0+3}, v{MXI+qt}")
    fb("s_barrier")
    fb(f"s_sub_u32 s{sCnt}, s{sCnt}, 1"); fb(f"s_cmp_lg_u32 s{sCnt}, 0"); fb("s_cbranch_scc1 K_fbl")
    fb.loop_end()
    for kind, cnt, so in (('K', 4, sKo), ('V', 3, sVo)):
        for tl in range(cnt):
            fb(f"s_mov_b32 s{so}, {tl*SLOT}")
            for mi, d in kv_dma(kind, tl, tl, so):
                fb.add(mi); fb("s_nop 0"); fb.add(d)
    fb("s_waitcnt vmcnt(0)")
    fb("s_branch K_attn")

    out = Prog(); out.items += head + ln + pk + pa + a.items + e.items + fb.items
    res = Prog(); res.items += skip_retry(head + ln + pa + a.items + e.items); res.resolve()
    chk1 = Prog(); chk1.items += skip_retry(head + ln + pa + a.items + fb.items + a.items + e.items)
    chk2 = Prog(); chk2.items += head + pk + pa[:400]
    return out, [chk1, chk2]

def skip_retry(items):
    out = []; skipping = None
    for k, x in enumerate(items):
        if isinstance(x, Ins):
            if x.text.startswith("s_branch") and x.text.endswith("_chk"):
                skipping = x.text.split()[1] + ":"
            elif skipping and x.text == skipping: skipping = None
            elif skipping: continue
        out.append(x)
    return out

HDR = open('recurrent_scan__mha_block_cached__swiglu_ffn__prompt.s.ref').read().split('; Override launch')[0]
def main():
    out = [HDR.rstrip(), "; @launch grid=(256,1,1) block=(256,1,1) lds=163840", '.amdgcn_target "amdgcn-amd-amdhsa--gfx950"', ".text"]
    prog, chks = kernel()
    ok = all([c.check("k") for c in chks])
    out += [f".globl {NAME}", ".p2align 8", f".type {NAME},@function", f"{NAME}:"] + prog.emit()
    out += ['.section .rodata,"a"', ".p2align 6", f".amdhsa_kernel {NAME}", "  .amdhsa_next_free_vgpr 512", "  .amdhsa_next_free_sgpr 102",
            "  .amdhsa_accum_offset 256", "  .amdhsa_group_segment_fixed_size 0", "  .amdhsa_kernarg_size 96",
            "  .amdhsa_user_sgpr_count 2", "  .amdhsa_user_sgpr_kernarg_segment_ptr 1", "  .amdhsa_system_sgpr_workgroup_id_x 1", ".end_amdhsa_kernel"]
    print("\n".join(out))
    if not ok: sys.stderr.write("CHECK FAILED\n"); sys.exit(1)
main()
```

```python
import sys, struct
from asmlib import *

OPT = dict(stamp=0, look=5, barg=80, slp=2, fpub=0, warm=1, sigst=1, early=1, td=4, pair=1, pf0=0, pfi=0, cst=24, fv=12, pubst=8, pubn=2, fsig=18, ctouch=2, ct0=0, g0=27, span=84)
for a in sys.argv[1:]:
    k, v = a.split('='); OPT[k] = int(v, 0)
NAME = "recurrent_scan__mha_block_cached__swiglu_ffn__prompt_kernel"

WS_XN = 0x0;        SZ_XN = 2048 * 640 * 2
WS_WP = 0x400000;   SZ_WP = 7680 * 640 * 2
WS_OF = 0x1000000;  SZ_OF = 2048 * 7680 * 2
XBW = 2560; WS_XB = 0x3000000;  SZ_XB = 64*4*3*2*4*XBW
WS_FL = 0x5000000;  SZ_FL = 32768
FL_LN = 256; FL_H = 2048; FL_O = 4096; FL_X = 8192; FL_F = 16384
def f32(x): return "0x%08x" % struct.unpack('<I', struct.pack('<f', x))[0]
MF = "v_mfma_f32_16x16x32_bf16"
SC1 = " sc1"
def vr(b, n=4): return f"v[{b}:{b+n-1}]"
def ar(b, n=4): return f"a[{b}:{b+n-1}]"
LOG2E = 1.4426950408889634
QSCALE = LOG2E / (192 ** 0.5)

sW = 28; sH = 29; sKb = 30; sVb = 31; sKo = 32; sVo = 33; sCnt = 34; sPass = 35; sWQm = 36; sGUm = 37; sI = 38; cC = 39; sT = 40
cWo = 50; cBo = 51; cM = 52; cXO = 53; cXB = 54; cTile = 55; sFL = 56; sNON = 66; cW1 = 68; sFO = 46; sFH = 47; sFX = 48
kX = 72; kK = 74; kV = 76; kWQ = 78; kWO = 80; kWG = 84; kWU = 86; kWD = 88; kOUT = 90; kWS = 94
vL1K = 1; vLANE = 2; vL16 = 3; vK0 = 4; vV = 6; vDK = 10; vDV = 11
vWQ = 12; vGU = 13; vAQ = 16
cvA = 12; cvB = 15; cvH = 20; vL8 = 22
vSIG = 25; vNON = 26; vP4 = 60; vP8 = 61; vSTAMP = 62; vCT = 63
vT = 28; vPOLL = 36
QACC = 64; QF = 64; SR = 160; PR = 192; MR = 224; LR = 240; MXI = 244
XB = 96; RING = 192
A_STAGE = 36864
K_RING = 114688; V_RING = 65536; SLOT = 12288
VOTE = 163840 - 16

def srd(p, d, lo, size, add=None):
    if add is None: p(f"s_mov_b32 s{d}, s{lo}"); p(f"s_mov_b32 s{d+1}, s{lo+1}")
    else: p(f"s_add_u32 s{d}, s{lo}, {add}"); p(f"s_addc_u32 s{d+1}, s{lo+1}, 0")
    if size is not None: p(f"s_mov_b32 s{d+2}, {size}")
    p(f"s_mov_b32 s{d+3}, 0x20000")

def xlane(p, op, a, t):
    p(f"v_mov_b32 v{t}, v{a}"); p("s_nop 1")
    p(f"v_permlane32_swap_b32 v{a}, v{t}"); p("s_nop 1")
    p(f"{op} v{a}, v{a}, v{t}")
    p(f"v_mov_b32 v{t}, v{a}"); p("s_nop 1")
    p(f"v_permlane16_swap_b32 v{a}, v{t}"); p("s_nop 1")
    p(f"{op} v{a}, v{a}, v{t}")
def xlane4(p, op, regs, t):
    for sw in ("v_permlane32_swap_b32", "v_permlane16_swap_b32"):
        for i, a in enumerate(regs): p(f"v_mov_b32 v{t+i}, v{a}")
        p("s_nop 0")
        for i, a in enumerate(regs): p(f"{sw} v{a}, v{t+i}")
        for i, a in enumerate(regs): p(f"{op} v{a}, v{a}, v{t+i}")

NST = [0]
def stamp(p, idx):
    if OPT['stamp']:
        p("s_memtime s[64:65]" if OPT.get("clk") else "s_memrealtime s[64:65]"); p("s_waitcnt lgkmcnt(0)")
        p(f"v_writelane_b32 v{vSTAMP}, s64, {idx}")
def stamp_out(p):
    if not OPT['stamp']: return
    if OPT['stamp'] == 2:
        p(f"s_cmp_lg_u32 s2, {OPT.get('dwg', 1)}"); p("s_cbranch_scc1 K_so")
        p(f"s_cmp_lg_u32 s{sW}, 0"); p("s_cbranch_scc1 K_so")
        p("s_mov_b32 s4, s92"); p("s_mov_b32 s5, s93"); p("s_mov_b32 s6, 128"); p("s_mov_b32 s7, 0x20000")
        p(f"v_readlane_b32 s64, v{vSTAMP}, 0"); p(f"v_lshlrev_b32 v4, 2, v{vLANE}"); p("v_subrev_u32 v4, 4, v4"); p("s_nop 1")
        p(f"v_subrev_u32 v5, s64, v{vSTAMP}")
        p(f"buffer_store_dword v5, v4, s[4:7], 0 offen"); p("s_waitcnt vmcnt(0)")
        p("K_so:")
        return
    p("s_cmp_ge_u32 s2, 64"); p("s_cbranch_scc1 K_so")
    p(f"s_cmp_lg_u32 s{sW}, 0"); p("s_cbranch_scc1 K_so")
    p(f"s_add_u32 s4, s{kWS}, {0xF000000}"); p(f"s_addc_u32 s5, s{kWS+1}, 0"); p("s_mov_b32 s6, 8192"); p("s_mov_b32 s7, 0x20000")
    p("s_lshl_b32 s64, s2, 7"); p(f"v_lshlrev_b32 v4, 2, v{vLANE}"); p("s_mov_b64 exec, 0xffffffff")
    p(f"buffer_store_dword v{vSTAMP}, v4, s[4:7], s64 offen"); p("s_waitcnt vmcnt(0)")
    p("K_so:")

def signal(soff): return Ins(f"buffer_store_dwordx2 {vr(vNON,2)}, v{vSIG}, s[{sFL}:{sFL+3}], s{soff} offen{SC1}")
def poll_load(voff, soff): return Ins(f"buffer_load_dwordx2 {vr(vPOLL,2)}, v{voff}, s[{sFL}:{sFL+3}], s{soff} offen{SC1}", tag=('pl', 0))
def poll(p, lab, voff, soff, pre=False):
    p(f"s_mov_b32 s{sT+2}, 0")
    if pre: p(f"s_branch {lab}_chk")
    p(f"{lab}:")
    p.add(poll_load(voff, soff)); p("s_waitcnt vmcnt(0)")
    p(f"{lab}_chk:")
    p(f"v_cmp_ne_u64 vcc, {vr(vNON,2)}, {vr(vPOLL,2)}"); p("s_nop 4")
    p(f"s_cbranch_vccz {lab}_ok")
    p(f"s_sleep {OPT['slp']}")
    p(f"s_add_u32 s{sT+2}, s{sT+2}, 1"); p(f"s_cmp_lt_u32 s{sT+2}, 0x40000"); p(f"s_cbranch_scc1 {lab}")
    p(f"{lab}_ok:")
def hpoll_loads():
    return [Ins(f"buffer_load_dwordx4 {vr(vPOLL+4*j)}, v{vL16}, s[{sFL}:{sFL+3}], 0 offen offset:{FL_H+1024*j}{SC1}", tag=('hp', 0)) for j in range(2)]
def hpoll(p, lab):
    p(f"s_mov_b32 s{sT+2}, 0"); p(f"s_branch {lab}_chk")
    p(f"{lab}:")
    p.add(hpoll_loads()); p("s_waitcnt vmcnt(0)")
    p(f"{lab}_chk:")
    p(f"v_cmp_ne_u64 s[{sT}:{sT+1}], {vr(vNON,2)}, {vr(vPOLL,2)}")
    for j in range(1, 4):
        p(f"v_cmp_ne_u64 vcc, {vr(vNON,2)}, {vr(vPOLL+2*j,2)}"); p(f"s_or_b64 s[{sT}:{sT+1}], s[{sT}:{sT+1}], vcc")
    p(f"s_cbranch_scc0 {lab}_ok")
    p(f"s_sleep 8")
    p(f"s_add_u32 s{sT+2}, s{sT+2}, 1"); p(f"s_cmp_lt_u32 s{sT+2}, 0x40000"); p(f"s_cbranch_scc1 {lab}")
    p(f"{lab}_ok:")

def kv_dma(kind, tile, slot, soff, stride=0):
    out = []
    for blk in range(3):
        base = sKb if kind == 'K' else sVb
        m = Ins(f"s_add_u32 m0, s{base}, {slot*SLOT + blk*4096 - blk*128}")
        d = Ins(f"buffer_load_dwordx4 v{vDK if kind=='K' else vDV}, s[{4 if kind=='K' else 8}:{7 if kind=='K' else 11}], s{soff} offen offset:{blk*128} lds",
                tag=(kind, tile, stride), slot=(kind, slot), gen=(tile, stride))
        out.append((m, d))
    return out
def kfrag_read(f, rs, tile, stride=0):
    kt, ks = divmod(f, 6); slot = tile % 4
    return [Ins(f"ds_read_b128 {ar(RING+4*rs)}, v{vK0 + (ks&1)} offset:{slot*SLOT + (ks>>1)*4096 + kt*2048}",
                tag=('kf', tile*12+f, stride*12), slot=('K', slot), gen=(tile, stride))]
def vfrag_read(dt, rs, tile, stride=0):
    slot = tile % 4
    return [Ins(f"ds_read_b64_tr_b16 {ar(RING+4*rs+2*rd,2)}, v{vV + (dt&3)} offset:{slot*SLOT + (dt>>2)*4096 + rd*2048}",
                tag=('vf', tile*12+dt, stride*12), slot=('V', slot), gen=(tile, stride)) for rd in range(2)]
def qk_mfmas(czero=False, pair=None):
    M = []
    if pair is None: pair = OPT['pair']
    for kt in range(2):
        seq = [(2*k2+e, qt) for k2 in range(3) for qt in range(4) for e in range(2)] if pair else [(ks, qt) for ks in range(6) for qt in range(4)]
        for ks, qt in seq:
            f = kt*6+ks
            s = SR + (kt*4+qt)*4
            c = vr(s) if ks else ("0" if czero else vr(MR+4*qt))
            M.append(Ins(f"{MF} {vr(s)}, {ar(RING+4*(f%8))}, {vr(QF+(ks*4+qt)*4)}, {c}"))
    return M
def pv_mfmas(pb, czero=False):
    M = []
    for dt in range(12):
        for qt in range(4):
            o = (dt*4+qt)*4
            M.append(Ins(f"{MF} {ar(o)}, {ar(RING+4*((12+dt)%8))}, {vr(PR+16*pb+4*qt)}, {'0' if czero else ar(o)}"))
    return M
def softmax_items(pb):
    it = []
    seq = [(kt, qt, r) for kt in range(2) for qt in range(4) for r in range(4)]
    def reg(e): return SR + (e[0]*4+e[1])*4 + e[2]
    def post(e):
        o = [(1, f"v_add_f32 v{LR+e[1]}, v{LR+e[1]}, v{reg(e)}", e[0], e[1])]
        if e[2] & 1: o.append((1, f"v_cvt_pk_bf16_f32 v{PR+16*pb+4*e[1]+2*e[0]+(e[2]>>1)}, v{reg(e)-1}, v{reg(e)}", e[0], e[1]))
        return o
    for i, e in enumerate(seq):
        it.append((2, f"v_exp_f32 v{reg(e)}, v{reg(e)}", e[0], e[1]))
        if i >= 2: it += post(seq[i-2])
    it += post(seq[-2]) + post(seq[-1])
    return it
def plan_step():
    LOOK = OPT['look']; BARG = OPT['barg']; n = 96
    mem = {}
    for dt in range(12):
        g = 4*(12+dt-LOOK)
        mem[g] = ('v', dt, 0); mem[g+1] = ('v', dt, 1)
    assert 4*(23-LOOK)+1 < BARG-4
    g_next = BARG+1
    for f in range(12):
        g = max(96 + 4*(f-LOOK), g_next)
        if f + 16 < 24: g = max(g, 4*(f+16)+4)
        while (g % n) in mem: g += 1
        mem[g % n] = ('k', f, g >= n)
        g_next = g+2
    g = BARG+4
    for i in range(6):
        while (g % n) in mem or ((g-1) % n) in (BARG, BARG-1): g += 1
        mem[g % n] = ('dma', i, g >= n)
        g += 5
    cap = [2 - (1 if i in mem else 0) for i in range(n)]
    items = softmax_items(0)
    tot = sum(x[0] for x in items); g0 = OPT['g0']; span = OPT['span']
    pos = [None]*len(items); acc = 0; g = g0
    pend = list(range(len(items)))
    while pend:
        g = max(g, g0 + int(acc*span/tot))
        placed = False
        for j in range(min(2, len(pend))):
            c, t, kt, qt = items[pend[j]]
            if j > 0 and not (c == 1 and items[pend[0]][0] == 2): continue
            if c <= cap[g % n] and g >= ((24*kt + 17 + 2*qt + 7) if OPT['pair'] else (24*kt + 20 + qt + 7)):
                pos[pend[j]] = g; cap[g % n] -= c; acc += c; pend.pop(j); placed = True
                assert g < 96 + 24*kt + qt - 1, (g, t)
                break
        if not placed: g += 1
    return dict(mem=mem, vpos=pos)
PLAN = plan_step()

def attn_step(i, stride, first=False, last=False):
    BARG = OPT['barg']
    M = ([None]*48 if last else qk_mfmas()) + pv_mfmas(i % 2, czero=first)
    G = Gaps(M)
    for g, m in sorted(PLAN['mem'].items()):
        if m[0] == 'v':
            G.mem(g, vfrag_read(m[1], (12+m[1]) % 8, i, stride)[m[2]])
        elif m[0] == 'k':
            tile = i+1 if m[2] else i+2
            if tile > 63 and stride == 0: continue
            G.mem(g, kfrag_read(m[1], m[1] % 8, tile, stride)[0])
        else:
            ep = i if m[2] else i+1
            kind = 'K' if m[1] < 3 else 'V'
            tile = ep+4 if kind == 'K' else ep+3
            if stride == 0 and tile > 63: continue
            so = sKo if kind == 'K' else sVo
            mi, d = kv_dma(kind, tile, tile % 4, so, stride)[m[1] % 3]
            G.sc(g-1, mi); G.mem(g, d)
            if m[1] % 3 == 2: G.sc(g+1, Ins(f"s_add_u32 s{so}, s{so}, {SLOT}"))
    for f in range(0, 24, 2):
        g = 4*f - 1
        if f < 12:
            if f == 0:
                if not (stride == 0 and i+2 > 63): G.sc(95, Wait(lgkm=[('kf', (i+2)*12+0, stride*12), ('kf', (i+2)*12+1, stride*12)]))
            elif not last: G.sc(g, Wait(lgkm=[('kf', (i+1)*12+f+1, stride*12)]))
        elif g < BARG-1:
            G.sc(g, Wait(lgkm=[('vf', i*12+f-12+1, stride*12)]))
    need = []
    if not (stride == 0 and i+2 > 63): need.append(('K', i+2, stride))
    if not (stride == 0 and i+1 > 63): need.append(('V', i+1, stride))
    if need:
        G.sc(BARG-1, Wait(vm=need, lgkm='all')); G.sc(BARG, Ins("s_barrier"))
    else:
        G.sc(BARG-1, Wait(lgkm='all'))
    for (c, t, kt, qt), g in zip(softmax_items(i % 2), PLAN['vpos']):
        if g >= 96: G.valu(g-96, Ins(t), c)
    if not last:
        for (c, t, kt, qt), g in zip(softmax_items((i+1) % 2), PLAN['vpos']):
            if g < 96: G.valu(g, Ins(t), c)
    return G

C_STAGE = 20480; C_NS = 8; C_LA = 6; C_D = 6
cS = 0; cF = 80; cRING = 160
CB = [('a', 224), ('a', 240), ('v', 44), ('v', 160), ('v', 176), ('v', 192), ('v', 208), ('v', 224)]
def cb(n, o):
    c, b = CB[n % C_NS]
    return f"{c}[{b+o}:{b+o+3}]"
def c_wloads(n, stride=0):
    sl = n % C_NS; out = []
    for j in range(5):
        sc = [Ins(f"s_add_u32 m0, s{cM}, {sl*C_STAGE + (1024 if j == 4 else 0)}")] if j in (0, 4) else []
        out.append((sc, Ins(f"buffer_load_dwordx4 v{vL16 if j < 4 else vL1K}, s[12:15], s{cWo} offen offset:{min(j,3)*1024}{SC1} lds",
                            tag=('cw', n, stride), slot=('C', sl), gen=(n, stride), m0reuse=True)))
    return out, Ins(f"s_add_u32 s{cWo}, s{cWo}, 10240")
def cb2(n, o):
    c, b = CB[n % C_NS]
    return f"{c}[{b+o}:{b+o+1}]"
def c_bloads(n, stride=0):
    out = []
    for ks in range(2):
        for qs in range(2):
            if n < 6 and (2*n+ks) % 3 == 1:
                for hf in range(2):
                    sc = [Ins(f"s_add_u32 s{sT+5}, s{cBo}, {4096*ks}")] if (qs == 0 and hf == 0) else []
                    out.append((sc, Ins(f"buffer_load_dwordx2 {cb2(n,(ks*2+qs)*4+2*hf)}, v{cvH+qs}, s[16:19], s{sT+5} offen offset:{512*hf}{SC1}", tag=('cb', n, stride))))
            else:
                out.append(([], Ins(f"buffer_load_dwordx4 {cb(n,(ks*2+qs)*4)}, v{cvB+2*ks+qs}, s[16:19], s{cBo} offen{SC1}", tag=('cb', n, stride))))
    return out, Ins(f"s_add_u32 s{cBo}, s{cBo}, 8192")
def c_aread(n, f, stride=0):
    sl = n % C_NS; ks, t = ((f & 1, f >> 1) if OPT['pair'] else divmod(f, 10)); sh, tt = divmod(t, 5)
    return Ins(f"ds_read_b128 {ar(cRING+4*(f%10))}, v{cvA + sl//3} offset:{(sl%3)*C_STAGE + sh*10240 + ks*5120 + tt*1024}",
               tag=('caf', n*20+f, stride*20), slot=('C', sl), gen=(n, stride))
def c_stage(n, acc, stride=0, czero=False, wl=True, bl=True, nxt=True, extra=(), wtags=(), after=(), more=(), cap=54, force_bar=False):
    M = []
    seq = [(ks, t, qs) for t in range(10) for qs in range(2) for ks in range(2)] if OPT['pair'] else [(ks, t, qs) for ks in range(2) for t in range(10) for qs in range(2)]
    for ks, t, qs in seq:
        d = ar(acc + (t*2+qs)*4)
        M.append(Ins(f"{MF} {d}, {ar(cRING+4*((2*t+ks if OPT['pair'] else ks*10+t)%10))}, {cb(n,(ks*2+qs)*4)}, {'0' if (czero and ks==0) else d}"))
    G = Gaps(M)
    BG = 2*(20-C_LA) - 1
    for f in range(C_LA, 20): G.mem(2*(f-C_LA), c_aread(n, f, stride))
    if nxt:
        for f in range(C_LA): G.mem(2*(20+f-C_LA), c_aread(n+1, f, stride))
        G.sc(BG-1, Wait(vm=[('cw', n+1, stride), ('cb', n+1, stride)] + list(wtags), cap=cap)); G.sc(BG, Ins("s_barrier"))
    for f in range(2, 20, 2):
        G.sc(2*f-2 if 2*f-1 != BG else 2*f-3, Wait(lgkm=('caf', n*20+f+1, stride*20)))
    if nxt: G.sc(38, Wait(lgkm=('caf', (n+1)*20+1, stride*20)))
    L = list(more)
    if wl:
        l, po = c_wloads(n+C_D, stride); L += l; L.append(([po], None))
    if bl:
        l, po = c_bloads(n+C_D, stride); L += l; L.append(([po], None))
    for e in extra: G.sc(0, e)
    for m in after: G.mem(BG+2, m)
    nm = sum(1 for sc, m in L if m is not None)
    free = [g for g in range(1, 38, 2) if not G.N[g] and g != BG]
    slots = [free[min(len(free)-1, int((k+0.5)*len(free)/max(nm,1)))] for k in range(nm)] + [39]
    k = 0; lo = 0
    for sc, m in L:
        g = max(slots[k] - 1, lo); pos = []
        for s_ in reversed(sc):
            while g > lo and not G.sc_free(g): g -= 1
            pos.append((g, s_))
            if g > lo: g -= 1
        for g_, s_ in reversed(pos): G.sc(g_, s_)
        if pos: lo = max(lo, max(x[0] for x in pos))
        if m is not None:
            G.mem(slots[k], m); lo = min(slots[k] + 1, 39); k += 1
    return G
def c_cvt(p, acc, dst, tmp):
    for sg in range(1, 4):
        qs, sh = sg & 1, sg >> 1
        for tt in range(5):
            t = tmp + 4*(tt & 1)
            for r in range(4): p(f"v_accvgpr_read_b32 v{t+r}, a{acc+((sh*5+tt)*2+qs)*4+r}")
            d = dst + 12*(sg-1) + 2*tt
            p(f"v_cvt_pk_bf16_f32 v{d}, v{t}, v{t+1}"); p(f"v_cvt_pk_bf16_f32 v{d+1}, v{t+2}, v{t+3}")
def xb_ops(op, reg, soff, tag):
    return [Ins(f"buffer_{op}_dwordx4 {vr(reg)}, v{vL16}, s[20:23], s{soff} offen{SC1}", tag=tag),
            Ins(f"buffer_{op}_dwordx4 {vr(reg+4)}, v{vL16}, s[20:23], s{soff} offen offset:1024{SC1}", tag=tag),
            Ins(f"buffer_{op}_dwordx2 {vr(reg+8,2)}, v{vL8}, s[20:23], s{soff} offen offset:2048{SC1}", tag=tag)]
def c_pub(src, kind):
    out = []
    for sg in range(1, 4):
        sc = [f"s_xor_b32 s{sT}, s{cC}, {sg}", f"s_mul_i32 s{sT}, s{sT}, {3*2*4*XBW}", f"s_add_u32 s{sT}, s{sT}, s{cXB}", f"s_add_u32 s{sT}, s{sT}, {((sg-1)*2+kind)*4*XBW}"]
        for k, m in enumerate(xb_ops('store', src + 12*(sg-1), sT, ('pub', kind))):
            out.append(([Ins(x) for x in sc] if k == 0 else [], m))
    return out
def c_get(p, dst, kind):
    p(f"s_mul_i32 s{sT}, s{cC}, {3*2*4*XBW}"); p(f"s_add_u32 s{sT}, s{sT}, s{cXB}")
    if kind: p(f"s_add_u32 s{sT}, s{sT}, {4*XBW}")
    for sg in range(3):
        p.add(xb_ops('load', dst + 12*sg, sT, ('get', kind)))
        if sg < 2: p(f"s_add_u32 s{sT}, s{sT}, {2*4*XBW}")
def c_sum(p, R, src, tmp):
    for sg in range(3):
        for i in range(10):
            t = tmp + 2*(i & 1); q = src + 12*sg + i
            p(f"v_lshlrev_b32 v{t}, 16, v{q}"); p(f"v_and_b32 v{t+1}, 0xffff0000, v{q}")
            p(f"v_pk_add_f32 {vr(R+2*i,2)}, {vr(R+2*i,2)}, {vr(t,2)}")
def c_setup(p):
    p(f"s_lshr_b32 s{cC}, s{sH}, 3")
    p(f"v_mov_b32 v{cvA}, v{vL16}"); p(f"v_add_u32 v{cvA+1}, {3*C_STAGE}, v{vL16}"); p(f"v_add_u32 v{cvA+2}, {6*C_STAGE}, v{vL16}")
    p(f"s_and_b32 s{sT}, s{sW}, 1"); p(f"s_mul_i32 s{cW1}, s{sT}, 5120")
    p(f"s_lshl_b32 s{sT}, s{sT}, 1"); p(f"s_and_b32 s{sT+1}, s{cC}, 1"); p(f"s_add_u32 s{sT+4}, s{sT}, s{sT+1}")
    p(f"s_lshl_b32 s{sT}, s{sT+4}, 10"); p(f"v_add_u32 v{cvB}, s{sT}, v{vL16}"); p(f"v_xor_b32 v{cvB+1}, 1024, v{cvB}")
    p(f"v_add_u32 v{cvB+2}, 4096, v{cvB}"); p(f"v_add_u32 v{cvB+3}, 4096, v{cvB+1}")
    p(f"v_lshlrev_b32 v{vL8}, 3, v{vLANE}"); p(f"v_add_u32 v{cvH}, s{sT}, v{vL8}"); p(f"v_xor_b32 v{cvH+1}, 1024, v{cvH}")
    p(f"s_bfe_u32 s{sT}, s{sH}, 0x10002"); p(f"s_lshl_b32 s{sT}, s{sT}, 1"); p(f"s_lshr_b32 s{sT+1}, s{sW}, 1"); p(f"s_add_u32 s{sT}, s{sT}, s{sT+1}")
    p(f"s_lshl_b32 s{sT+2}, s{sI}, 2"); p(f"s_add_u32 s{sT+3}, s{sT}, s{sT+2}")
    p(f"s_mul_i32 s{sT}, s{sT+3}, {240*4096}"); p(f"s_add_u32 s{sT}, s{sT}, {WS_OF}")
    srd(p, 16, kWS, 240*4096, f"s{sT}")
    p(f"s_lshr_b32 s{sT}, s{cC}, 1"); p(f"s_xor_b32 s{sT}, s{sT}, s{sT+1}"); p(f"s_and_b32 s{sT+2}, s{sH}, 3"); p(f"s_lshl_b32 s{sT+5}, s{sT+2}, 1"); p(f"s_add_u32 s{sT}, s{sT}, s{sT+5}")
    p(f"s_mul_i32 s{sT}, s{sT}, {240*5120}"); p(f"s_add_u32 s{sT}, s{sT}, {WS_WP}")
    srd(p, 12, kWS, 240*5120, f"s{sT}")
    p(f"s_mul_i32 s{cM}, s{sW}, 5120")
    p(f"s_lshl_b32 s{sT+3}, s{sT+3}, 2"); p(f"s_add_u32 s{sT+3}, s{sT+3}, s{sT+4}"); p(f"s_mul_i32 s{cXO}, s{sT+3}, 20480")
    p(f"s_mul_i32 s{sT+2}, s{sT+2}, 320"); p(f"s_add_u32 s{cXO}, s{cXO}, s{sT+2}")
    p(f"s_lshr_b32 s{sT}, s{cC}, 1"); p(f"s_mul_i32 s{sT}, s{sT}, 160"); p(f"s_add_u32 s{cXO}, s{cXO}, s{sT}")
    p(f"s_lshl_b32 s{cTile}, s{sI}, 3"); p(f"s_and_b32 s{sT}, s{sH}, 7"); p(f"s_add_u32 s{cTile}, s{cTile}, s{sT}")
    p(f"s_mul_i32 s{cXB}, s{cTile}, {4*3*2*4*XBW}"); p(f"s_mul_i32 s{sT}, s{sW}, {XBW}"); p(f"s_add_u32 s{cXB}, s{cXB}, s{sT}")
    srd(p, 20, kWS, SZ_XB, WS_XB)
    p(f"s_lshl_b32 s{sFO}, s{sI}, 2"); p(f"s_add_u32 s{sFO}, s{sFO}, s{cC}"); p(f"s_lshl_b32 s{sFO}, s{sFO}, 7"); p(f"s_add_u32 s{sFO}, s{sFO}, {FL_O}")
    p(f"s_lshl_b32 s{sFH}, s{sI}, 5"); p(f"s_add_u32 s{sFH}, s{sFH}, s{sH}"); p(f"s_lshl_b32 s{sFH}, s{sFH}, 3"); p(f"s_add_u32 s{sFH}, s{sFH}, {FL_H}")
    p(f"s_lshl_b32 s{sFX}, s{cTile}, 7"); p(f"s_add_u32 s{sFX}, s{sFX}, {FL_X}")
def c_fcursors():
    return [Ins(x) for x in (f"s_mul_i32 s{cWo}, s{cC}, 12", f"s_add_u32 s{cWo}, s{cWo}, 192", f"s_lshl_b32 s{cBo}, s{cWo}, 12",
                             f"s_mul_i32 s{cWo}, s{cWo}, 5120", f"s_add_u32 s{cWo}, s{cWo}, s{cW1}")]
def flat_loads(ns):
    pf = []
    for n in ns:
        for l, po in (c_wloads(n), c_bloads(n)):
            for sc, m in l: pf.append([list(sc), m, []])
            pf[-1][2].append(po)
    return pf

def phase_c(p):
    NE = 3
    pf = flat_loads(range(NE, C_D))
    p.wait(vm=[('cw', 1), ('cb', 1)])
    for qt in range(4): p(f"v_rcp_f32 v{4+2*qt}, v{LR+qt}")
    srd(p, 4, kX, SZ_XN); srd(p, 8, kOUT, SZ_XN)
    for qt in range(4): p(f"v_mov_b32 v{4+2*qt+1}, v{4+2*qt}")
    def emit_pf(k):
        for _ in range(k):
            if pf:
                sc, m, po = pf.pop(0); p.add(sc)
                if sc: p("s_nop 0")
                p.add(m); p.add(po)
    emit_pf(OPT['pf0'])
    n = 0; stores = []
    for j in range(6):
        for qt in range(4):
            b = 28 + 8*(n % 2); d = 64 + 4*n; n += 1
            emit_pf(OPT['pfi'])
            for ee in range(2):
                for r in range(4): p(f"v_accvgpr_read_b32 v{b+4*ee+r}, a{((2*j+ee)*4+qt)*4+r}")
            for h in range(4): p(f"v_pk_mul_f32 {vr(b+2*h,2)}, {vr(b+2*h,2)}, {vr(4+2*qt,2)}")
            for h in range(4): p(f"v_cvt_pk_bf16_f32 v{d+h}, v{b+2*h}, v{b+2*h+1}")
            sc = []
            if qt == 0: sc = [Ins(f"s_mul_i32 s{sT+3}, s{sH}, {6*4096}")] if j == 0 else [Ins(f"s_add_u32 s{sT+3}, s{sT+3}, 4096")]
            stores.append((sc, Ins(f"buffer_store_dwordx4 {vr(d)}, v{vL16}, s[24:27], s{sT+3} offen offset:{qt*1024}{SC1}", tag=('O', 0))))
            if n <= OPT['cst']:
                sc, m = stores.pop(0); p.add(sc); p.add(m)
    stamp(p, 8)
    p(f"s_and_b32 s{sT+4}, s{sH}, 7"); p(f"s_lshl_b32 s{sT+4}, s{sT+4}, 3"); p(f"s_add_u32 s{sT+4}, s{sT+4}, s{sFO}")
    p("s_barrier")
    for f in range(C_LA): p.add(c_aread(0, f))
    p.wait(lgkm=('caf', 1))
    Q = [(sc, m) for sc, m in stores]
    for sc, m, po in pf:
        Q.append((sc, m))
        if po: Q.append((po, None))
    sw = [Ins(f"s_mul_i32 s{cWo}, s{cC}, {48*5120}"), Ins(f"s_add_u32 s14, s{cWo}, {48*5120}"), Ins(f"s_add_u32 s{cWo}, s{cWo}, s{cW1}")]
    SG = OPT['sigst']; wn = 6; switched = False
    for n in range(6):
        mo = []; cnt = 0
        while Q and cnt < OPT['fv']:
            x = Q.pop(0); mo.append(x); cnt += (x[1] is not None)
        while Q and Q[0][1] is None: mo.append(Q.pop(0))
        while not Q and wn <= n + 6 and cnt + 5 <= OPT['fv'] + 3:
            if not switched: mo.append((sw, None)); switched = True
            l, po = c_wloads(wn); mo += l; mo.append(([po], None)); cnt += 5; wn += 1
        sig = (n == SG)
        G = c_stage(n, cF, czero=(n == 0), wl=False, bl=False, nxt=(n < 5), wtags=[('O', 0)] if sig else (), after=[signal(sT+4)] if sig else (), more=mo, cap=63-OPT['fv']-4)
        p.add(G.items())
        if sig: stamp(p, 9)
    assert not Q
    while wn < 12:
        if not switched: p.add(sw); switched = True
        l, po = c_wloads(wn)
        for sc, m in l:
            p.add(sc)
            if sc: p("s_nop 0")
            p.add(m)
        p.add(po); wn += 1
    stamp(p, 10)
    FP = 64; R = 100; F = 120; GP = 64; T = 140
    p("s_nop 4")
    c_cvt(p, cF, FP, 28)
    for tt in range(5):
        for r in range(4): p(f"v_accvgpr_read_b32 v{F+tt*4+r}, a{cF+(tt*2)*4+r}")
    p(f"v_and_b32 v4, 15, v{vLANE}"); p(f"v_lshrrev_b32 v5, 4, v{vLANE}")
    p("v_mul_u32_u24 v4, 1280, v4"); p("v_lshl_add_u32 v4, v5, 3, v4")
    p(f"s_mul_i32 s{cBo}, s{cC}, {48*4096}"); p(f"s_add_u32 s18, s{cBo}, {48*4096}")
    p(f"s_lshl_b32 s{sT+4}, s{cC}, 3"); p(f"s_add_u32 s{sT+4}, s{sT+4}, s{sFX}")
    p(f"s_add_u32 s{sT+5}, s{sT+4}, {FL_F-FL_X}"); p(f"s_add_u32 s{sT+3}, s{sFX}, {FL_F-FL_X}")
    poll(p, "C_po", vP8, sFO)
    stamp(p, 11)
    for n in range(6, 6+C_D):
        l, po = c_bloads(n)
        for sc, m in l: p.add(sc); p.add(m)
        p.add(po)
    p("s_barrier")
    for f in range(C_LA): p.add(c_aread(6, f))
    pub = c_pub(FP, 1)
    p.wait(vm=('cb', 6), lgkm=('caf', 6*20+1))
    PS = OPT['pubst']
    for n in range(6, 30):
        mo = []
        if n >= PS and pub: mo = pub[:OPT['pubn']]; pub = pub[OPT['pubn']:]
        sig = (n == OPT['fsig'])
        if n == 27: mo = [([], poll_load(vP4, sT+3))]
        G = c_stage(n, cS, czero=(n == 6), wl=(n+C_D < 30), bl=(n+C_D < 30), nxt=(n < 29), more=mo, cap=50,
                    wtags=[('pub', 1)] if sig else (), after=[signal(sT+5)] if sig else ())
        p.add(G.items())
    assert not pub
    stamp(p, 12)
    p("s_waitcnt vmcnt(0)")
    poll(p, "C_pf", vP4, sT+3, pre=True)
    c_get(p, 160, 1)
    for t in range(5): p(f"buffer_load_dwordx2 {vr(6+2*t,2)}, v4, s[4:7], s{cXO} offen offset:{32*t}", tag=('get', 1))
    c_cvt(p, cS, FP, 28)
    for sc, m in c_pub(FP, 0): p.add(sc); p.add(m)
    for tt in range(5):
        for r in range(4): p(f"v_accvgpr_read_b32 v{R+tt*4+r}, a{cS+(tt*2)*4+r}")
    def rnd2(a, b, t):
        p(f"v_cvt_pk_bf16_f32 v{t}, v{a}, v{b}"); p(f"v_lshlrev_b32 v{a}, 16, v{t}"); p(f"v_and_b32 v{b}, 0xffff0000, v{t}")
    def fside():
        c_sum(p, F, 160, 28)
        p(f"s_mov_b32 s{sT}, {f32(-LOG2E)}")
        for i in range(20): p(f"v_mul_f32 v{T+i}, s{sT}, v{F+i}")
        for i in range(20): p(f"v_exp_f32 v{T+i}, v{T+i}")
        for i in range(20): p(f"v_add_f32 v{T+i}, 1.0, v{T+i}")
        for i in range(20): p(f"v_rcp_f32 v{T+i}, v{T+i}")
        for i in range(20): p(f"v_mul_f32 v{F+i}, v{F+i}, v{T+i}")
        for i in range(10):
            p(f"v_lshlrev_b32 v{T+2*i}, 16, v{6+i}"); p(f"v_and_b32 v{T+2*i+1}, 0xffff0000, v{6+i}")
    p.wait(vm=('get', 1))
    fside()
    p("s_waitcnt vmcnt(0)"); p("s_barrier")
    p.add(signal(sT+4))
    stamp(p, 13)
    p(f"s_cmp_eq_u32 s2, 0"); p(f"s_cselect_b32 s{sT+1}, 0, 0x10000000")
    p.add(signal(sT+1))
    poll(p, "C_px", vP4, sFX)
    stamp(p, 14)
    c_get(p, 160, 0)
    p("s_waitcnt vmcnt(0)")
    stamp(p, 15)
    c_sum(p, R, 160, 28)
    for i in range(0, 20, 2): p(f"v_pk_fma_f32 {vr(R+i,2)}, {vr(R+i,2)}, {vr(F+i,2)}, {vr(T+i,2)}")
    for i in range(10): p(f"v_cvt_pk_bf16_f32 v{F+i}, v{R+2*i}, v{R+2*i+1}")
    for t in range(5): p(f"buffer_store_dwordx2 {vr(F+2*t,2)}, v4, s[8:11], s{cXO} offen offset:{32*t}")

def a_wloads(it):
    st = it % 3; out = []; sl = [('A', st)]
    for j in range(2):
        for blk in range(3):
            sc = [Ins(f"s_add_u32 m0, s{sWQm}, {st*A_STAGE + blk*8192 + j*1024 - blk*128}")]
            if blk == 0: sc.insert(0, Ins(f"s_mov_b32 s{sT}, {(it*64 + j*16)*12288}"))
            out.append((sc, Ins(f"buffer_load_dwordx4 v{vWQ}, s[12:15], s{sT} offen offset:{blk*128} lds", tag=('A', it), slot=sl, gen=(it, 0))))
    for j in range(3):
        sc = [Ins(f"s_add_u32 m0, s{sGUm}, {st*A_STAGE + 24576 + j*1024}")]
        if j == 0: sc.insert(0, Ins(f"s_mov_b32 s{sT}, {it*64*3072}"))
        out.append((sc, Ins(f"buffer_load_dwordx4 v{vGU+j}, s[16:19], s{sT} offen lds", tag=('A', it), slot=sl, gen=(it, 0))))
    return out
vTA = 44; vTB = 45; vTD = 46
def touch_setup(p):
    t = vT
    p(f"s_lshl_b32 s{sT}, s{sI}, 3"); p(f"s_lshl_b32 s{sT+1}, s{sW}, 1"); p(f"s_add_u32 s{sT+1}, s{sT+1}, s{sT}")
    p(f"v_and_b32 v{t}, 1, v{vLANE}"); p(f"v_lshrrev_b32 v{t+1}, 1, v{vLANE}")
    p(f"v_add_u32 v{t+2}, s{sT+1}, v{t}"); p(f"v_mul_u32_u24 v{t+2}, 12288, v{t+2}"); p(f"v_lshl_add_u32 v{t+2}, v{t+1}, 7, v{t+2}")
    p(f"v_mov_b32 v{t+3}, 0x10000000"); p(f"v_cmp_gt_u32 vcc, 6, v{vLANE}"); p("s_nop 1"); p(f"v_cndmask_b32 v{vTA}, v{t+3}, v{t+2}, vcc")
    p(f"s_and_b32 s{sT+1}, s{sW}, 1"); p(f"s_lshl_b32 s{sT+1}, s{sT+1}, 2"); p(f"s_add_u32 s{sT+1}, s{sT+1}, s{sT}")
    p(f"v_add_u32 v{t+2}, s{sT+1}, v{t+1}"); p(f"v_mul_u32_u24 v{t+2}, 3072, v{t+2}"); p(f"v_mul_u32_u24 v{t}, 92, v{t}"); p(f"v_add_u32 v{t+2}, v{t+2}, v{t}")
    p(f"v_cmp_gt_u32 vcc, 8, v{vLANE}"); p("s_nop 1"); p(f"v_cndmask_b32 v{vTB}, v{t+3}, v{t+2}, vcc")
def touch(it):
    if not OPT['warm'] or it > 9: return []
    d = vTD + 2*(it % 4)
    return [([Ins(f"s_mov_b32 s{sT}, {it*64*12288}")], Ins(f"buffer_load_dword v{d}, v{vTA}, s[12:15], s{sT} offen")),
            ([Ins(f"s_mov_b32 s{sT}, {it*64*3072}")], Ins(f"buffer_load_dword v{d+1}, v{vTB}, s[16:19], s{sT} offen"))]
def a_xloads(it):
    st = it % 3; out = []
    for ks in range(2):
        for qt in range(4):
            sc = [Ins(f"s_mov_b32 s{sT+1}, {(it*2+ks)*4096}")] if qt == 0 else []
            out.append((sc, Ins(f"buffer_load_dwordx4 {ar(XB+32*st+(ks*4+qt)*4)}, v{vL16}, s[20:23], s{sT+1} offen offset:{qt*1024}{SC1}", tag=('A', it))))
    return out
def a_read(it, f):
    st = it % 3; ks, nt = ((f & 1, f >> 1) if OPT['pair'] else divmod(f, 18)); rs = (it*36+f) % 8; o = []
    for rd in range(2):
        if nt < 12:
            j = nt >> 1; e = nt & 1
            a = vAQ + 3*st + (j & 1); off = (j >> 1)*8192 + ks*4096 + rd*2048 + 8*e
        else:
            mtx, tt = divmod(nt-12, 3)
            a = vAQ + 3*st + 2; off = 24576 + mtx*6144 + ks*3072 + rd*1536 + tt*32
        o.append(Ins(f"ds_read_b64_tr_b16 {ar(RING+4*rs+2*rd,2)}, v{a} offset:{off}", tag=('af', it*36+f), slot=('A', st), gen=(it, 0)))
    return o

SCR = 81920
def side_issue(p):
    p(f"s_and_b32 s{sT}, s{sH}, 1"); p(f"s_cmp_eq_u32 s{sT}, 1"); p("s_cbranch_scc1 S_o0")
    srd(p, 4, kX, SZ_XN)
    p(f"v_and_b32 v64, 15, v{vLANE}"); p(f"v_lshrrev_b32 v65, 4, v{vLANE}")
    p("v_mul_u32_u24 v66, 1280, v64"); p("v_lshl_add_u32 v66, v65, 4, v66")
    p(f"s_lshl_b32 s{sT+5}, s{sI}, 4"); p(f"s_lshr_b32 s{sT}, s{sH}, 1"); p(f"s_add_u32 s{sT+5}, s{sT+5}, s{sT}")
    p(f"s_mul_i32 s{sT}, s{sT+5}, 20480"); p(f"s_mul_i32 s{sT+1}, s{sW}, 320"); p(f"s_add_u32 s{sT}, s{sT}, s{sT+1}")
    for j in range(5): p(f"buffer_load_dwordx4 {vr(80+4*j)}, v66, s[4:7], s{sT} offen offset:{64*j}")
    wsrds(p)
    p("s_branch S_c0")
    p("S_o0:")
    wsrds(p)
    if OPT['ctouch']: p(f"buffer_load_dword v200, v{vCT}, s[96:99], 0 offen")
    p("S_c0:")

def wsrds(p):
    p(f"s_mul_i32 s{sT+2}, s{sH}, 384")
    srd(p, 12, kWQ, None, f"s{sT+2}"); p(f"s_sub_u32 s14, {640*12288}, s{sT+2}")
    p(f"s_cmp_lt_u32 s{sW}, 2"); p(f"s_cselect_b32 s16, s{kWG}, s{kWU}"); p(f"s_cselect_b32 s17, s{kWG+1}, s{kWU+1}")
    p(f"s_mul_i32 s{sT+2}, s{sH}, 96")
    srd(p, 16, 16, None, f"s{sT+2}"); p(f"s_sub_u32 s18, {640*3072}, s{sT+2}")

def pack_issue(p):
    p(f"s_lshl_b32 s{sT+3}, s{sI}, 5"); p(f"s_add_u32 s{sT+3}, s{sT+3}, s{sH}")
    p(f"s_cmp_lt_u32 s{sT+3}, 192")
    p(f"s_cselect_b32 s60, s{kWO}, s{kWD}"); p(f"s_cselect_b32 s61, s{kWO+1}, s{kWD+1}")
    p(f"s_mov_b32 s{sT}, {6144*1280}"); p(f"s_cselect_b32 s62, s{sT}, {1536*1280}"); p("s_mov_b32 s63, 0x20000")
    p(f"s_cselect_b32 s{sT}, 0, 192"); p(f"s_sub_u32 s{sT}, s{sT+3}, s{sT}"); p(f"s_mul_i32 s{sT}, s{sT}, 40960")
    p(f"s_mul_i32 s{sT+1}, s{sW}, 10240"); p(f"s_add_u32 s{sT}, s{sT}, s{sT+1}")
    for j in range(3):
        p(f"s_add_u32 m0, s{sT+1}, {4096*j}"); p("s_nop 0")
        for k in range(4 if j < 2 else 2): p(f"buffer_load_dwordx4 v{vL16}, s[60:63], s{sT} offen offset:{1024*k} lds", m0reuse=True, tag=('pk', 0), slot=[('A', 0), ('A', 1)], gen=(99, 0))
        p(f"s_add_u32 s{sT}, s{sT}, 4096")
    srd(p, 60, kWS, SZ_WP, WS_WP)
    p(f"s_mul_i32 s69, s{sW}, 480"); p(f"s_add_u32 s69, s69, s{sT+3}"); p(f"s_mul_i32 s69, s69, 5120")
    p(f"s_cmp_lt_u32 s{sT+3}, 240"); p(f"s_cselect_b32 s69, s69, 0x10000000")
vPK = 19
def pack_setup(p):
    p(f"v_lshrrev_b32 v{vPK}, 2, v{vLANE}"); p(f"v_mul_u32_u24 v{vPK}, 1280, v{vPK}")
    p(f"v_and_b32 v{vT+1}, 3, v{vLANE}"); p(f"v_lshl_add_u32 v{vPK}, v{vT+1}, 3, v{vPK}")
    p(f"s_mul_i32 s{sT}, s{sW}, 320"); p(f"v_add_u32 v{vPK}, s{sT}, v{vPK}")
def pkreg(t, o=0, n=4): return vr(28+4*t+o, n) if t < 8 else ar(224+4*(t-8)+o, n)
def pack_reads():
    return [[[], Ins(f"ds_read_b64_tr_b16 {pkreg(t,2*rd,2)}, v{vPK} offset:{32*t + rd*16*1280}", slot=('A', 0)), []] for t in range(10) for rd in range(2)]
def pack_stores():
    return [[[Ins(f"s_add_u32 s69, s69, {240*5120}")] if t == 5 else [],
             Ins(f"buffer_store_dwordx4 {pkreg(t)}, v{vL16 if t%5 < 4 else vL1K}, s[60:63], s69 offen offset:{min(t%5,3)*1024}{SC1}", tag=('H', 0)), []] for t in range(10)]
def fill(G, lst, g0, g1, step):
    BARG = OPT['barg']; g = g0
    while lst and g < g1:
        sc, m, po = lst[0]
        if G.cap[g] >= 1 and not (BARG-2 <= g <= BARG+1):
            lst.pop(0)
            for s_ in sc: G.sc(g-1, s_)
            G.N[g].append(m); G.cap[g] -= 1
            for s_ in po: G.sc(g+1, s_)
            g += step
        else: g += 1

def side_work(p, nyoung):
    p(f"s_and_b32 s{sT}, s{sH}, 1"); p(f"s_cmp_eq_u32 s{sT}, 1"); p("s_cbranch_scc1 S_pk1")
    ln = Prog(); q = ln
    srd(q, 4, kWS, SZ_XN)
    q(f"v_lshlrev_b32 v67, 4, v64"); q(f"v_add_u32 v67, {SCR}, v67")
    q(f"s_lshl_b32 s{sT}, s{sW}, 2"); q(f"v_add_u32 v68, s{sT}, v67")
    q(f"s_waitcnt vmcnt({nyoung})")
    X = 80; U = 104
    for i in range(20):
        q(f"v_lshlrev_b32 v{U+2*i}, 16, v{X+i}"); q(f"v_and_b32 v{U+2*i+1}, 0xffff0000, v{X+i}")
    q(f"v_add_f32 v69, v{U}, v{U+1}"); q(f"v_add_f32 v70, v{U+2}, v{U+3}")
    for i in range(4, 40, 2):
        q(f"v_add_f32 v69, v69, v{U+i}"); q(f"v_add_f32 v70, v70, v{U+i+1}")
    q("v_add_f32 v69, v69, v70")
    xlane(q, "v_add_f32", 69, 70)
    q("ds_write_b32 v68, v69"); q("s_waitcnt lgkmcnt(0)"); q("s_barrier")
    q("ds_read_b128 v[72:75], v67"); q("s_waitcnt lgkmcnt(0)")
    q("v_add_f32 v72, v72, v73"); q("v_add_f32 v74, v74, v75"); q("v_add_f32 v72, v72, v74")
    q(f"v_mul_f32 v71, {f32(1/640)}, v72")
    q("v_mov_b32 v69, 0"); q("v_mov_b32 v70, 0")
    for i in range(0, 40, 2):
        q(f"v_sub_f32 v72, v{U+i}, v71"); q(f"v_sub_f32 v73, v{U+i+1}, v71")
        q("v_fmac_f32 v69, v72, v72"); q("v_fmac_f32 v70, v73, v73")
    q("v_add_f32 v69, v69, v70")
    xlane(q, "v_add_f32", 69, 70)
    q("ds_write_b32 v68, v69 offset:256"); q("s_waitcnt lgkmcnt(0)"); q("s_barrier")
    q("ds_read_b128 v[72:75], v67 offset:256"); q("s_waitcnt lgkmcnt(0)")
    q("v_add_f32 v72, v72, v73"); q("v_add_f32 v74, v74, v75"); q("v_add_f32 v72, v72, v74")
    q(f"v_mul_f32 v72, {f32(1/640)}, v72")
    q("v_cvt_pk_bf16_f32 v73, v71, v72")
    q("v_lshlrev_b32 v71, 16, v73"); q("v_and_b32 v72, 0xffff0000, v73")
    q(f"v_add_f32 v72, {f32(1e-5)}, v72")
    q("v_cvt_pk_bf16_f32 v72, v72, v72"); q("v_lshlrev_b32 v72, 16, v72")
    q("v_sqrt_f32 v72, v72"); q("s_nop 0")
    q("v_cvt_pk_bf16_f32 v72, v72, v72"); q("v_lshlrev_b32 v72, 16, v72")
    q("v_rcp_f32 v72, v72")
    q(f"s_lshr_b32 s{sT}, s{sT+5}, 2"); q(f"s_mul_i32 s{sT}, s{sT}, 81920")
    q(f"s_and_b32 s{sT+1}, s{sT+5}, 3"); q(f"s_lshl_b32 s{sT+1}, s{sT+1}, 10"); q(f"s_add_u32 s{sT}, s{sT}, s{sT+1}")
    q(f"s_mul_i32 s{sT+1}, s{sW}, 20480"); q(f"s_add_u32 s{sT}, s{sT}, s{sT+1}")
    for i in range(20):
        q(f"v_sub_f32 v73, v{U+2*i}, v71"); q(f"v_sub_f32 v74, v{U+2*i+1}, v71")
        q("v_cvt_pk_bf16_f32 v73, v73, v74")
        q("v_and_b32 v74, 0xffff0000, v73"); q("v_lshlrev_b32 v73, 16, v73")
        q("v_mul_f32 v73, v73, v72"); q("v_mul_f32 v74, v74, v72")
        q(f"v_cvt_pk_bf16_f32 v{X+i}, v73, v74")
        if i % 4 == 3:
            q(f"buffer_store_dwordx4 {vr(X+i-3)}, v{vL16}, s[4:7], s{sT} offen{SC1}"); q(f"s_add_u32 s{sT}, s{sT}, 4096")
    q(f"s_lshl_b32 s{sT+1}, s{sT+5}, 3"); q(f"s_add_u32 s{sT+1}, s{sT+1}, {FL_LN}")
    q("s_waitcnt vmcnt(0)"); q("s_barrier")
    q.add(signal(sT+1))
    pk = Prog(); q = pk
    q("S_pk1:")
    for it in range(2, OPT['td']):
        for sc, m in touch(it): q.add(sc); q.add(m)
    for sc, m in a_wloads(1):
        q.add(sc); q("s_nop 0"); q.add(m)
    q("S_c1:")
    return ln.items, pk.items

def kernel():
    p = Prog()
    p("s_cmp_ge_u32 s2, 256"); p("s_cbranch_scc1 K_end")
    p(f"s_load_dwordx16 s[72:87], s[0:1], 0"); p(f"s_load_dwordx8 s[88:95], s[0:1], 64")
    p("s_getpc_b64 s[96:97]"); p("K_pc:"); p("s_mov_b32 s98, K_codeend-K_pc"); p("s_mov_b32 s99, 0x20000")
    if OPT['ct0']:
        p(f"v_lshlrev_b32 v{vCT}, {OPT['ct0']+4}, v0"); p(f"buffer_load_dword v201, v{vCT}, s[96:99], 0 offen")
    p(f"v_lshrrev_b32 v1, 6, v0"); p(f"v_and_b32 v{vLANE}, 63, v0")
    p(f"v_readfirstlane_b32 s{sW}, v1")
    p(f"s_and_b32 s{sH}, s2, 7"); p(f"s_lshl_b32 s{sH}, s{sH}, 2"); p(f"s_bfe_u32 s{sT}, s2, 0x20003"); p(f"s_add_u32 s{sH}, s{sH}, s{sT}")
    p(f"s_lshr_b32 s{sI}, s2, 5")
    p(f"v_lshlrev_b32 v{vL16}, 4, v{vLANE}"); p(f"v_add_u32 v{vL1K}, 1024, v{vL16}")
    if OPT['stamp']: p(f"v_mov_b32 v{vSTAMP}, 0")
    p(f"s_lshr_b32 s{sT}, s2, 4"); p(f"s_lshl_b32 s{sT}, s{sT}, 2"); p(f"s_add_u32 s{sT}, s{sT}, s{sW}"); p(f"s_and_b32 s{sT}, s{sT}, 15"); p(f"s_lshl_b32 s{sT}, s{sT}, 13")
    p(f"v_lshlrev_b32 v{vCT}, 7, v{vLANE}"); p(f"v_add_u32 v{vCT}, s{sT}, v{vCT}")
    stamp(p, 0)
    p("s_waitcnt lgkmcnt(0)")
    side_issue(p)
    srd(p, sFL, kWS, SZ_FL, WS_FL)
    p(f"s_load_dwordx2 s[{sNON}:{sNON+1}], s[{sFL}:{sFL+1}], 0")
    t = vT
    p(f"v_lshrrev_b32 v{t}, 3, v2"); p(f"v_and_b32 v{t+1}, 7, v2"); p(f"v_bfe_u32 v{t+2}, v2, 4, 2")
    p(f"v_lshlrev_b32 v{t+3}, 1, v{t+2}"); p(f"v_xor_b32 v{t+3}, v{t+3}, v{t+1}"); p(f"v_lshlrev_b32 v{t+3}, 4, v{t+3}")
    p(f"v_lshrrev_b32 v{t+4}, 2, v{t}"); p(f"v_lshlrev_b32 v{t+4}, 3, v{t+4}")
    p(f"v_and_b32 v{t+5}, 3, v{t}"); p(f"v_add_u32 v{t+4}, v{t+4}, v{t+5}")
    p(f"s_lshr_b32 s{sT+2}, s{sW}, 1"); p(f"s_lshl_b32 s{sT+2}, s{sT+2}, 5")
    p(f"s_and_b32 s{sT+3}, s{sW}, 1"); p(f"s_lshl_b32 s{sT+3}, s{sT+3}, 2"); p(f"s_add_u32 s{sT+2}, s{sT+2}, s{sT+3}")
    p(f"v_add_u32 v{t+4}, s{sT+2}, v{t+4}")
    p(f"v_mul_u32_u24 v{t+4}, 12288, v{t+4}"); p(f"v_add_u32 v{vWQ}, v{t+4}, v{t+3}")
    p(f"s_lshl_b32 s{sT+2}, s{sW}, 3"); p(f"v_add_u32 v{t+4}, s{sT+2}, v{t}")
    p(f"v_mul_u32_u24 v{t+5}, 384, v{t+4}"); p(f"v_add_u32 v{vDV}, v{t+5}, v{t+3}")
    p(f"v_bfe_u32 v{t+6}, v{t+4}, 1, 3"); p(f"v_xor_b32 v{t+6}, v{t+6}, v{t+1}")
    p(f"v_lshl_add_u32 v{vDK}, v{t+6}, 4, v{t+5}")
    p(f"s_and_b32 s{sT+3}, s{sW}, 1"); p(f"s_lshl_b32 s{sT+3}, s{sT+3}, 5")
    p(f"s_and_b32 s{sT+4}, s{sH}, 1"); p(f"s_lshl_b32 s{sT+4}, s{sT+4}, 1")
    for j in range(3):
        p(f"v_add_u32 v{t+4}, {64*j}, v2")
        p(f"v_mul_u32_u24 v{t+5}, 171, v{t+4}"); p(f"v_lshrrev_b32 v{t+5}, 10, v{t+5}")
        p(f"v_mul_u32_u24 v{t+6}, 6, v{t+5}"); p(f"v_sub_u32 v{t+6}, v{t+4}, v{t+6}")
        p(f"v_add_u32 v{t+6}, s{sT+4}, v{t+6}"); p(f"v_subrev_u32 v{t+7}, 6, v{t+6}"); p(f"v_min_u32 v{t+6}, v{t+6}, v{t+7}")
        p(f"v_bfe_u32 v{t+7}, v{t+5}, 2, 2"); p(f"v_lshlrev_b32 v{t+7}, 3, v{t+7}")
        p(f"v_lshrrev_b32 v{t+8}, 4, v{t+5}"); p(f"v_lshl_add_u32 v{t+7}, v{t+8}, 2, v{t+7}")
        p(f"v_and_b32 v{t+8}, 3, v{t+5}"); p(f"v_add3_u32 v{t+7}, v{t+7}, v{t+8}, s{sT+3}")
        p(f"v_mul_u32_u24 v{t+7}, 3072, v{t+7}"); p(f"v_lshl_add_u32 v{vGU+j}, v{t+6}, 4, v{t+7}")
    p(f"s_lshl_b32 s{sWQm}, s{sW}, 11"); p(f"s_mul_i32 s{sGUm}, s{sW}, 3072")
    ny = 0
    for sc, m in a_wloads(0):
        p.add(sc); p("s_nop 0"); p.add(m); ny += 1
    touch_setup(p)
    p(f"v_lshrrev_b32 v{t}, 2, v2"); p(f"v_and_b32 v{t+1}, 3, v2"); p(f"v_bfe_u32 v{t+2}, v2, 3, 2")
    p(f"v_lshlrev_b32 v{t+3}, 7, v{t}")
    p(f"v_lshlrev_b32 v{t+4}, 1, v{t+2}"); p(f"v_xor_b32 v{t+4}, v{t+4}, v{t+1}")
    p(f"v_lshl_add_u32 v{vAQ}, v{t+4}, 4, v{t+3}"); p(f"v_xor_b32 v{vAQ+1}, 64, v{vAQ}")
    p(f"v_mul_u32_u24 v{t+4}, 96, v{t}"); p(f"v_lshl_add_u32 v{vAQ+2}, v{t+1}, 3, v{t+4}")
    for s in (1, 2):
        for j in range(3): p(f"v_add_u32 v{vAQ+3*s+j}, {s*A_STAGE}, v{vAQ+j}")
    p(f"v_lshl_add_u32 v{t+4}, v{t+2}, 5, v{t+3}"); p(f"v_lshl_add_u32 v{t+4}, v{t+1}, 3, v{t+4}")
    p(f"v_add_u32 v{vV}, {V_RING}, v{t+4}")
    for u in range(1, 4): p(f"v_xor_b32 v{vV+u}, {32*u}, v{vV}")
    p(f"v_lshlrev_b32 v{vP4}, 3, v{t+1}")
    p(f"v_and_b32 v{t}, 15, v2"); p(f"v_lshrrev_b32 v{t+1}, 4, v2"); p(f"v_bfe_u32 v{t+2}, v2, 1, 3")
    p(f"v_xor_b32 v{t+1}, v{t+1}, v{t+2}"); p(f"v_lshlrev_b32 v{t}, 7, v{t}"); p(f"v_lshl_add_u32 v{t}, v{t+1}, 4, v{t}")
    p(f"v_add_u32 v{vK0}, {K_RING}, v{t}"); p(f"v_xor_b32 v{vK0+1}, 64, v{vK0}")
    p(f"v_and_b32 v{vP8}, 7, v2"); p(f"v_lshlrev_b32 v{vP8}, 3, v{vP8}")
    p(f"v_mov_b32 v{t}, 0x10000000"); p("v_cmp_eq_u32 vcc, 0, v0"); p("s_nop 1"); p(f"v_cndmask_b32 v{vSIG}, v{t}, v0, vcc")
    p(f"s_lshl_b32 s{sT+1}, s{sI}, 2"); p(f"s_add_u32 s{sT+1}, s{sT+1}, s{sW}")
    p(f"s_mul_i32 s{sT+2}, s{sT+1}, 81920"); srd(p, 20, kWS, 81920, f"s{sT+2}")
    p(f"s_mul_i32 s{sT+2}, s{sT+1}, {240*4096}"); p(f"s_add_u32 s{sT+2}, s{sT+2}, {WS_OF}"); srd(p, 24, kWS, 240*4096, f"s{sT+2}")
    p(f"s_lshl_b32 s{sT+4}, s{sT+1}, 5"); p(f"s_add_u32 s{sT+4}, s{sT+4}, {FL_LN}")
    p(f"s_lshl_b32 s{sT+2}, s{sW}, 10")
    p(f"s_add_u32 s{sKb}, s{sT+2}, {K_RING}"); p(f"s_add_u32 s{sVb}, s{sT+2}, {V_RING}")
    p(f"s_mov_b32 s{sPass}, 0")
    p("s_waitcnt lgkmcnt(0)")
    p(f"s_add_u32 s{sNON}, s{sNON}, 0x7f4a7c15"); p(f"s_addc_u32 s{sNON+1}, s{sNON+1}, 0x9e3779b9")
    p(f"v_mov_b32 v{vNON}, s{sNON}"); p(f"v_mov_b32 v{vNON+1}, s{sNON+1}")
    stamp(p, 1)
    head = p.items
    ln, pk = side_work(p, ny)
    p = Prog()
    stamp(p, 2)
    poll(p, "A_pl", vP4, sT+4)
    stamp(p, 3)
    for it in range(2):
        for sc, m in a_xloads(it): p.add(sc); p.add(m)
    p(f"s_mul_i32 s{sT+2}, s{sH}, 786432")
    srd(p, 4, kK, 786432, f"s{sT+2}"); srd(p, 8, kV, 786432, f"s{sT+2}")
    p("s_barrier")
    LA = 4
    for f in range(LA): p.add(a_read(0, f))
    p.wait(vm=('A', 0), lgkm=('af', 1))
    stamp(p, 4)
    for it in range(10):
        st = it % 3; M = []
        seq = [(ks, nt, qt) for nt in range(18) for qt in range(4) for ks in range(2)] if OPT['pair'] else [(ks, nt, qt) for ks in range(2) for nt in range(18) for qt in range(4)]
        for ks, nt, qt in seq:
            rs = (it*36 + (2*nt+ks if OPT['pair'] else ks*18+nt)) % 8
            d = vr(QACC + (nt*4+qt)*4) if nt < 12 else ar(((nt-12)*4+qt)*4)
            c = "0" if (it == 0 and ks == 0) else d
            M.append(Ins(f"{MF} {d}, {ar(RING+4*rs)}, {ar(XB+32*st+(ks*4+qt)*4)}, {c}"))
        G = Gaps(M)
        BG = 4*(36-LA)
        for f in range(LA, 36):
            r = a_read(it, f); g = 4*(f-LA) - (2 if f >= 30 else 0)
            g = G.mem_from(g, r[0]); G.mem_from(g+1, r[1])
        if it < 9:
            G.sc(BG-1, Wait(vm=('A', it+1), lgkm='all')); G.sc(BG, Ins("s_barrier"))
            g = BG+1
            for f in range(LA):
                r = a_read(it+1, f)
                g = max(g, 4*((36+f-8)|1)+4)
                g = G.mem_from(g, r[0]); g = G.mem_from(g+1, r[1]) + 1
            G.sc(143, Wait(lgkm=('af', (it+1)*36+1)))
        for f in range(2, 36, 2):
            if 4*f-1 < BG-1 or it == 9: G.sc(4*f-1, Wait(lgkm=('af', it*36+f+1)))
        L = []
        if it+2 < 10: L = touch(it+OPT['td']) + a_wloads(it+2) + a_xloads(it+2)
        elif it == 8:
            for tl in range(4):
                for b, (mi, d) in enumerate(kv_dma('K', tl, tl, sKo)):
                    L.append((([Ins(f"s_mov_b32 s{sKo}, {tl*SLOT}")] if b == 0 else []) + [mi], d))
        else:
            for tl in range(3):
                for b, (mi, d) in enumerate(kv_dma('V', tl, tl, sVo)):
                    d.meta['slot'] = [d.meta['slot'], ('A', 1), ('A', 2)]
                    L.append((([Ins(f"s_mov_b32 s{sVo}, {tl*SLOT}")] if b == 0 else []) + [mi], d))
        g = 2
        for sc, m in L:
            while G.N[g] or not G.sc_free(g-1) or (len(sc) > 1 and not G.sc_free(g-2)): g += 1
            for k, s_ in enumerate(reversed(sc)): G.sc(g-1-k, s_)
            G.mem(g, m); g += 4
        assert g < BG
        p.add(G.items())
    stamp(p, 5)
    c_setup(p)
    p(f"s_mov_b32 s{sT+4}, {f32(-LOG2E)}")
    p(f"s_lshr_b32 s{sT+2}, s{sH}, 1"); p(f"s_mul_i32 s{sT+2}, s{sT+2}, 3"); p(f"s_add_u32 s{sT+2}, s{sT+2}, 192"); p(f"s_lshl_b32 s{sT+2}, s{sT+2}, 12")
    p(f"s_and_b32 s{sT+3}, s{sH}, 1"); p(f"s_lshl_b32 s{sT}, s{sT+3}, 13"); p(f"s_add_u32 s{sT}, s{sT}, s{sT+2}")
    p(f"s_lshl_b32 s{sT+1}, s{sT+3}, 9"); p(f"s_add_u32 s{sT+1}, s{sT+1}, s{sT+2}"); p(f"s_add_u32 s{sT+1}, s{sT+1}, 4096")
    for qt in range(4):
        o = 52 if qt & 1 else 44
        for tt in range(3):
            b = vT
            for r in range(4): p(f"v_accvgpr_read_b32 v{b+r}, a{(tt*4+qt)*4+r}")
            for r in range(4): p(f"v_mul_f32 v{b+8+r}, s{sT+4}, v{b+r}")
            for r in range(4): p(f"v_exp_f32 v{b+8+r}, v{b+8+r}")
            for r in range(4): p(f"v_accvgpr_read_b32 v{b+4+r}, a{48+(tt*4+qt)*4+r}")
            for r in range(4): p(f"v_add_f32 v{b+8+r}, 1.0, v{b+8+r}")
            for r in range(4): p(f"v_rcp_f32 v{b+8+r}, v{b+8+r}")
            for r in range(0, 4, 2): p(f"v_pk_mul_f32 {vr(b+r,2)}, {vr(b+r,2)}, {vr(b+4+r,2)}")
            for r in range(0, 4, 2): p(f"v_pk_mul_f32 {vr(b+r,2)}, {vr(b+r,2)}, {vr(b+8+r,2)}")
            p(f"v_cvt_pk_bf16_f32 v{o+2*tt}, v{b}, v{b+1}"); p(f"v_cvt_pk_bf16_f32 v{o+2*tt+1}, v{b+2}, v{b+3}")
        p(f"buffer_store_dwordx4 {vr(o)}, v{vL16}, s[24:27], s{sT} offen offset:{qt*1024}{SC1}", tag=('H', 0))
        p(f"buffer_store_dwordx2 {vr(o+4,2)}, v{vL8}, s[24:27], s{sT+1} offen offset:{qt*1024}{SC1}", tag=('H', 0))
    p(f"s_mov_b32 s{sT+4}, {f32(QSCALE)}"); p(f"s_mov_b32 s{sT+5}, s{sT+4}")
    for ks in range(6):
        for qt in range(4):
            d = QF + (ks*4+qt)*4
            for e in range(2):
                s = QACC + ((2*ks+e)*4+qt)*4
                p(f"v_pk_mul_f32 {vr(s,2)}, {vr(s,2)}, s[{sT+4}:{sT+5}]")
                p(f"v_pk_mul_f32 {vr(s+2,2)}, {vr(s+2,2)}, s[{sT+4}:{sT+5}]")
                p(f"v_cvt_pk_bf16_f32 v{d+2*e}, v{s}, v{s+1}"); p(f"v_cvt_pk_bf16_f32 v{d+2*e+1}, v{s+2}, v{s+3}")
    for qt in range(4): p(f"v_mov_b32 v{MXI+qt}, 0xff800000")
    pack_setup(p)
    p('s_barrier')
    pack_issue(p)
    pa = p.items

    a = Prog(); BARG = OPT['barg']
    a("K_attn:")
    a(f"s_mov_b32 s{sKo}, {4*SLOT}"); a(f"s_mov_b32 s{sVo}, {3*SLOT}")
    a.wait(vm=[('K', 0), ('K', 1), ('V', 0)]); a("s_barrier")
    stamp(a, 6)
    for f in range(4): a.add(kfrag_read(f, f, 0))
    G = Gaps(qk_mfmas(czero=True))
    a.wait(lgkm=('kf', 1))
    for f in range(4, 12): G.mem(4*(f-4), kfrag_read(f, f % 8, 0)[0])
    for f in range(2, 12, 2): G.sc(4*f-1, Wait(lgkm=('kf', f+1)))
    a.add(G.items())
    a("s_barrier")
    for g, m in sorted(PLAN['mem'].items()):
        if g > BARG and not m[2]:
            if m[0] == 'k': a.add(kfrag_read(m[1], m[1] % 8, 1))
            elif m[0] == 'dma':
                kind = 'K' if m[1] < 3 else 'V'; tile = 4 if kind == 'K' else 3; so = sKo if kind == 'K' else sVo
                mi, d = kv_dma(kind, tile, tile % 4, so)[m[1] % 3]
                a.add(mi); a("s_nop 0"); a.add(d)
                if m[1] % 3 == 2: a(f"s_add_u32 s{so}, s{so}, {SLOT}")
    for qt in range(4):
        s0 = SR + qt*4; s1 = SR + 16 + qt*4; m = vT + qt
        a(f"v_max3_f32 v{m}, v{s0}, v{s0+1}, v{MXI+qt}")
        a(f"v_max3_f32 v{m}, v{s0+2}, v{s0+3}, v{m}")
        a(f"v_max3_f32 v{m}, v{s1}, v{s1+1}, v{m}")
        a(f"v_max3_f32 v{m}, v{s1+2}, v{s1+3}, v{m}")
    xlane4(a, "v_max_f32", [vT+q for q in range(4)], vT+4)
    for qt in range(4):
        for r in range(4): a(f"v_sub_f32 v{MR+4*qt+r}, 0, v{vT+qt}")
        a(f"v_mov_b32 v{LR+qt}, 0")
        for kt in range(2):
            for r in range(4):
                s = SR + (kt*4+qt)*4 + r
                a(f"v_sub_f32 v{s}, v{s}, v{vT+qt}")
    prev = None
    for (c, t_, kt, qt), g in sorted(zip(softmax_items(0), PLAN['vpos']), key=lambda x: x[1]):
        if g < 96: a(t_)
    a.wait(lgkm=[('kf', 12), ('kf', 13)])
    a("s_nop 1")
    prd = pack_reads(); pst = pack_stores()
    for i in range(4):
        G = attn_step(i, 0, first=(i == 0))
        if i == 1: G.S[BARG-1][-1].vm.append(('pk', 0)); fill(G, prd, BARG+2, 94, 1)
        if i == 2: fill(G, prd, 2, BARG-3, 1); assert not prd; fill(G, pst, BARG+2, 94, 2)
        if i == 3: fill(G, pst, 2, 94, 2); assert not pst
        a.add(G.items())
    a(f"s_mov_b32 s{sCnt}, 14")
    a(".p2align 6"); a("K_loop:")
    a.loop_begin("K_loop", 14)
    for i in range(4, 8):
        G = attn_step(i, 4)
        if i == 5 and OPT['ctouch'] > 1: G.mem_from(BARG+1, Ins(f"buffer_load_dword v23, v{vCT}, s[96:99], 0 offen"))
        if i == 6:
            G.S[BARG-1][-1].vm.append(('H', 0)); G.mem_from(BARG+1, signal(sFH))
        if i == 7:
            g = 60
            while not G.sc_free(g): g += 1
            G.sc(g, Ins(f"s_sub_u32 s{sCnt}, s{sCnt}, 1"))
            G.sc(95, Ins(f"s_cmp_lg_u32 s{sCnt}, 0"))
        a.add(G.items())
    a("s_cbranch_scc1 K_loop")
    a.loop_end()
    early = flat_loads(range(3)) if OPT['early'] else []
    for i in range(60, 64):
        G = attn_step(i, 0, last=(i == 63))
        if i == (60 if OPT['early'] else 62):
            g = 18
            for m in hpoll_loads(): g = G.mem_from(g, m) + 2
        if OPT['early'] and i >= 61:
            fill(G, early, 2 if i < 63 else 49, 94, 3)
        a.add(G.items())
        if OPT['early'] and i == 60:
            a.wait(vm=('hp', 0)); hpoll(a, "C_ph"); a.add(c_fcursors())
    assert not early, len(early)
    if not OPT['early']: a("s_waitcnt vmcnt(0)")
    stamp(a, 7)
    xlane4(a, "v_add_f32", [LR+q for q in range(4)], vT)
    a(f"s_mov_b32 s{sT}, 0x5d800000")
    a(f"v_cmp_nle_f32 s[{sT+2}:{sT+3}], v{LR}, s{sT}")
    for qt in range(1, 4):
        a(f"v_cmp_nle_f32 vcc, v{LR+qt}, s{sT}"); a(f"s_or_b64 s[{sT+2}:{sT+3}], s[{sT+2}:{sT+3}], vcc")
    a(f"s_or_b32 s{sT+2}, s{sT+2}, s{sT+3}")
    a(f"v_mov_b32 v{vT}, s{sT+2}"); a(f"s_lshl_b32 s{sT}, s{sW}, 2"); a(f"s_add_u32 s{sT}, s{sT}, {VOTE}"); a(f"v_mov_b32 v{vT+1}, s{sT}")
    a(f"ds_write_b32 v{vT+1}, v{vT}"); a(f"v_mov_b32 v{vT+1}, {VOTE}")
    a("s_waitcnt lgkmcnt(0)"); a("s_barrier")
    a(f"ds_read_b128 {vr(vT+4)}, v{vT+1}"); a("s_waitcnt lgkmcnt(0)")
    a(f"v_or_b32 v{vT+4}, v{vT+4}, v{vT+5}"); a(f"v_or3_b32 v{vT+4}, v{vT+4}, v{vT+6}, v{vT+7}"); a("s_nop 0")
    a(f"v_readfirstlane_b32 s{sT}, v{vT+4}")
    a(f"s_cmp_eq_u32 s{sT}, 0"); a("s_cbranch_scc1 K_epi")
    a(f"s_cmp_eq_u32 s{sPass}, 0"); a("s_cbranch_scc1 K_fb")

    e = Prog()
    e("K_epi:")
    phase_c(e)
    if OPT['stamp']: e("s_waitcnt vmcnt(0)")
    stamp(e, 16); stamp_out(e)
    e("K_end:")
    e("s_endpgm")

    fb = Prog()
    fb("K_fb:")
    fb(f"s_mov_b32 s{sPass}, 1"); fb("s_mov_b32 s69, 0x10000000"); fb(f"s_mov_b32 s{sKo}, 0"); fb(f"s_mov_b32 s{sCnt}, 64")
    fb("K_fbl:")
    fb.loop_begin("K_fbl", 2)
    for mi, d in kv_dma('K', 1000, 0, sKo, 4):
        fb.add(mi); fb("s_nop 0"); fb.add(d)
    fb(f"s_add_u32 s{sKo}, s{sKo}, {SLOT}")
    fb("s_waitcnt vmcnt(0)"); fb("s_barrier")
    Mq = qk_mfmas(czero=True, pair=0)
    for f in range(12):
        fb.add(kfrag_read(f, f % 8, 1000, 4)); fb("s_waitcnt lgkmcnt(0)"); fb.add(Mq[4*f:4*f+4])
    fb("s_nop 7")
    for qt in range(4):
        for kt in range(2):
            s0 = SR + (kt*4+qt)*4
            fb(f"v_max3_f32 v{MXI+qt}, v{s0}, v{s0+1}, v{MXI+qt}")
            fb(f"v_max3_f32 v{MXI+qt}, v{s0+2}, v{s0+3}, v{MXI+qt}")
    fb("s_barrier")
    fb(f"s_sub_u32 s{sCnt}, s{sCnt}, 1"); fb(f"s_cmp_lg_u32 s{sCnt}, 0"); fb("s_cbranch_scc1 K_fbl")
    fb.loop_end()
    for kind, cnt, so in (('K', 4, sKo), ('V', 3, sVo)):
        for tl in range(cnt):
            fb(f"s_mov_b32 s{so}, {tl*SLOT}")
            for mi, d in kv_dma(kind, tl, tl, so):
                fb.add(mi); fb("s_nop 0"); fb.add(d)
    fb("s_waitcnt vmcnt(0)")
    fb("s_branch K_attn")
    fb("K_codeend:")

    out = Prog(); out.items += head + ln + pk + pa + a.items + e.items + fb.items
    res = Prog(); res.items += skip_retry(head + ln + pk + pa + a.items + e.items); res.resolve()
    chk1 = Prog(); chk1.items += skip_retry(head + ln + pk + pa + a.items + fb.items + a.items + e.items)
    chk2 = Prog(); chk2.items += head + pk + pa[:400]
    return out, [chk1, chk2]

def skip_retry(items):
    out = []; skipping = None
    for k, x in enumerate(items):
        if isinstance(x, Ins):
            if x.text.startswith("s_branch") and x.text.endswith("_chk"):
                skipping = x.text.split()[1] + ":"
            elif skipping and x.text == skipping: skipping = None
            elif skipping: continue
        out.append(x)
    return out

HDR = open('recurrent_scan__mha_block_cached__swiglu_ffn__prompt.s.ref').read().split('; Override launch')[0]
def main():
    out = [HDR.rstrip(), "; @launch grid=(256,1,1) block=(256,1,1) lds=163840", '.amdgcn_target "amdgcn-amd-amdhsa--gfx950"', ".text"]
    prog, chks = kernel()
    ok = all([c.check("k") for c in chks])
    out += [f".globl {NAME}", ".p2align 8", f".type {NAME},@function", f"{NAME}:"] + prog.emit()
    out += ['.section .rodata,"a"', ".p2align 6", f".amdhsa_kernel {NAME}", "  .amdhsa_next_free_vgpr 512", "  .amdhsa_next_free_sgpr 102",
            "  .amdhsa_accum_offset 256", "  .amdhsa_group_segment_fixed_size 0", "  .amdhsa_kernarg_size 96",
            "  .amdhsa_user_sgpr_count 2", "  .amdhsa_user_sgpr_kernarg_segment_ptr 1", "  .amdhsa_system_sgpr_workgroup_id_x 1", ".end_amdhsa_kernel"]
    print("\n".join(out))
    if not ok: sys.stderr.write("CHECK FAILED\n"); sys.exit(1)
main()
```

```python
import re, sys

REG_RE = re.compile(r'\b([vas])(?:\[(\d+):(\d+)\]|(\d+))')

def regs_of(tok):
    out = []
    for m in REG_RE.finditer(tok):
        c = m.group(1)
        if m.group(2) is not None:
            out += [(c, i) for i in range(int(m.group(2)), int(m.group(3)) + 1)]
        else:
            out.append((c, int(m.group(4))))
    t = tok.strip()
    if t == 'vcc': out += [('s', 'vcc')]
    if t == 'm0': out += [('s', 'm0')]
    if t == 'exec': out += [('s', 'exec')]
    return out

TRANS = ('v_exp_f32', 'v_log_f32', 'v_rcp_f32', 'v_rsq_f32', 'v_sqrt_f32', 'v_sin_f32', 'v_cos_f32')

class Ins:
    __slots__ = ('text', 'op', 'kind', 'rd', 'wr', 'meta', 'mA', 'mB', 'mC')
    def __init__(self, text, **meta):
        self.text = text; self.meta = meta
        t = text.split(';')[0].strip()
        parts = t.split(None, 1)
        self.op = parts[0] if parts else ''
        ops = [x.strip() for x in parts[1].split(',')] if len(parts) > 1 else []
        op = self.op
        self.rd = []; self.wr = []; self.mA = self.mB = self.mC = ()
        k = 'other'
        if op.endswith(':') or op.startswith('.') or op == '':
            k = 'label'
        elif op.startswith('v_mfma'):
            k = 'mfma'
            self.wr = regs_of(ops[0]); self.mA = regs_of(ops[1]); self.mB = regs_of(ops[2]); self.mC = regs_of(ops[3])
            self.rd = list(self.mA) + list(self.mB) + list(self.mC)
        elif op.startswith('ds_read') or op.startswith('ds_bpermute') or op.startswith('ds_swizzle'):
            k = 'ds'; self.wr = regs_of(ops[0]); self.rd = sum((regs_of(x) for x in ops[1:]), [])
        elif op.startswith('ds_'):
            k = 'ds'; self.rd = sum((regs_of(x) for x in ops), [])
        elif op.startswith('buffer_load') or op.startswith('global_load'):
            k = 'vm'
            if re.search(r'\blds\b', t) or '_lds_' in op:
                self.rd = sum((regs_of(x) for x in ops), []) + [('s', 'm0')]
                self.meta['dma'] = True
            else:
                self.wr = regs_of(ops[0]); self.rd = sum((regs_of(x) for x in ops[1:]), [])
        elif op.startswith('buffer_store') or op.startswith('global_store') or op.startswith('buffer_atomic') or op.startswith('global_atomic'):
            k = 'vm'; self.rd = sum((regs_of(x) for x in ops), [])
            if 'atomic' in op and re.search(r'\bsc0\b', t): self.wr = regs_of(ops[0])
            self.meta['store'] = True
            if op.startswith('buffer'): self.meta['sdata'] = regs_of(ops[0])
            else: self.meta['sdata'] = regs_of(ops[1])
        elif op.startswith('buffer_wbl2') or op.startswith('buffer_inv'):
            k = 'vm'
        elif op.startswith('s_load') or op.startswith('s_memtime') or op.startswith('s_memrealtime'):
            k = 'smem'; self.wr = regs_of(ops[0]); self.rd = sum((regs_of(x) for x in ops[1:]), [])
        elif op == 's_waitcnt': k = 'wait'
        elif op == 's_barrier': k = 'barrier'
        elif op == 's_nop': k = 'nop'
        elif op.startswith('s_cbranch') or op == 's_branch' or op == 's_endpgm' or op == 's_setprio' or op == 's_sleep':
            k = 'salu'
            if 'vcc' in op: self.rd = [('s', 'vcc')]
        elif op.startswith('s_cmp') or op.startswith('s_bitcmp'):
            k = 'salu'; self.rd = sum((regs_of(x) for x in ops), [])
        elif op.startswith('s_'):
            k = 'salu'; self.wr = regs_of(ops[0]); self.rd = sum((regs_of(x) for x in ops[1:]), [])
            if 'saveexec' in op: self.wr += [('s', 'exec')]
        elif op.startswith('v_'):
            k = 'valu'
            if op.startswith('v_permlane') and 'swap' in op:
                self.wr = regs_of(ops[0]) + regs_of(ops[1]); self.rd = list(self.wr)
            elif op.startswith('v_cmp'):
                self.wr = regs_of(ops[0]); self.rd = sum((regs_of(x) for x in ops[1:]), [])
            elif op.startswith('v_add_co') or op.startswith('v_addc_co') or op.startswith('v_sub_co'):
                self.wr = regs_of(ops[0]) + regs_of(ops[1]); self.rd = sum((regs_of(x) for x in ops[2:]), [])
            elif op == 'v_nop': pass
            else:
                self.wr = regs_of(ops[0]); self.rd = sum((regs_of(x) for x in ops[1:]), [])
                if op.startswith('v_fmac') or op.startswith('v_dot2c') or op.startswith('v_writelane'): self.rd += self.wr
        self.kind = k
    def states(self):
        if self.kind == 'label': return 0
        if self.kind == 'nop': return int(self.text.split()[1], 0) + 1
        return 1

class Wait:
    def __init__(self, vm=None, lgkm=None, cap=63):
        self.cap = cap; self.vm = vm; self.lgkm = lgkm; self.vmv = None; self.lgv = None
    @property
    def text(self):
        s = []
        if self.vm is not None: s.append(f"vmcnt({self.vmv})")
        if self.lgkm is not None: s.append(f"lgkmcnt({self.lgv})")
        return "s_waitcnt " + " ".join(s)

class Loop:
    def __init__(self, label, trips, body, mid=None): self.label = label; self.trips = trips; self.body = body; self.mid = mid

class Prog:
    def __init__(self): self.items = []; self.stack = [self.items]
    def __call__(self, text, **meta):
        for ln in text.split('\n'):
            if ln.strip(): self.stack[-1].append(Ins(ln.strip(), **meta))
    def add(self, x):
        if isinstance(x, str): self(x)
        elif isinstance(x, (list, tuple)):
            for y in x: self.add(y)
        else: self.stack[-1].append(x)
    def wait(self, vm=None, lgkm=None): self.stack[-1].append(Wait(vm, lgkm))
    def loop_begin(self, label, trips):
        lp = Loop(label, trips, []); self.stack[-1].append(lp); self.stack.append(lp.body)
    def loop_end(self): self.stack.pop()

    def expand(self, items=None, maxtrips=3):
        out = []
        for x in (self.items if items is None else items):
            if isinstance(x, Loop):
                for it in range(x.trips):
                    out += [(y, it) for (y, _) in self.expand(x.body)]
                    if x.mid and x.mid[0] == it: out += [(y, 0) for y in x.mid[1]]
            else: out.append((x, 0))
        return out

    def resolve(self):
        tr = self.expand()
        vmq = []; lgq = []
        def dyn(tag, it):
            if tag is None: return None
            name, idx, stride = (tuple(tag) + (0,))[:3]
            return (name, idx + it * stride)
        for x, it in tr:
            if isinstance(x, Wait):
                for cls, q, mx in (('vm', vmq, 63), ('lgkm', lgq, 9)):
                    tg = getattr(x, cls)
                    if tg is None: continue
                    if tg == 'all': n = 0
                    else:
                        tags = [dyn(t, it) for t in (tg if isinstance(tg, list) else [tg])]
                        last = max((i for i, t in enumerate(q) if t in tags), default=-1)
                        n = len(q) - 1 - last
                    n = min(n, mx, x.cap)
                    attr = 'vmv' if cls == 'vm' else 'lgv'
                    cur = getattr(x, attr)
                    setattr(x, attr, n if cur is None else min(cur, n))
            elif x.kind == 'vm': vmq.append(dyn(x.meta.get('tag'), it))
            elif x.kind == 'ds': lgq.append(dyn(x.meta.get('tag'), it))
            elif x.kind == 'smem': lgq.append(None); lgq.append(None)

    def emit(self, items=None):
        out = []
        for x in (self.items if items is None else items):
            if isinstance(x, Loop):
                out += self.emit(x.body)
                if x.mid: out += self.emit(x.mid[1])
            else: out.append(x.text)
        return out

    def check(self, name=''):
        tr = self.expand()
        errs = []
        def err(i, msg):
            x = tr[i][0]
            errs.append(f"[{name}] #{i} it{tr[i][1]} '{x.text}': {msg}")
        vmq = []; lgq = []
        pend = {}
        slot_dma = {}
        slot_rd = {}
        hist = []
        pos = 0
        lastw = {}
        lastmC = {}
        laststore = {}
        m0used = [True, None]
        def dsl(m, it):
            s = m.get('slot')
            if s is None: return None
            return s
        for i, (x, it) in enumerate(tr):
            if isinstance(x, Wait) or x.kind == 'wait':
                t = x.text
                m = re.search(r'vmcnt\((\d+)\)', t)
                if m:
                    n = int(m.group(1))
                    while len(vmq) > n:
                        e = vmq.pop(0); e['done'] = True
                        for r in e['wr']:
                            if pend.get(r) is e: del pend[r]
                m = re.search(r'lgkmcnt\((\d+)\)', t)
                if m:
                    n = int(m.group(1))
                    if n > 0 and any(e.get('smem') for e in lgq): err(i, 'counted lgkm with smem outstanding')
                    while len(lgq) > n:
                        e = lgq.pop(0); e['done'] = True
                        for r in e['wr']:
                            if pend.get(r) is e: del pend[r]
                pos += 1
                continue
            if x.kind == 'label': continue
            if x.kind == 'barrier':
                for s, l in slot_dma.items():
                    for e in l:
                        if e.get('done'): e['bar'] = True
                for s, l in slot_rd.items():
                    for e in l:
                        if e.get('done'): e['bar'] = True
                pos += 1; continue
            for r in x.rd + x.wr:
                if r in pend and not (x.meta.get('junk') and pend[r]['ins'].meta.get('junk') and r in x.wr): err(i, f"touches pending load reg {r} ('{pend[r]['ins'].text}')")
            def need(reg, cls, n, why):
                p = lastw.get((reg, cls))
                if p is not None and pos - p - 1 < n: err(i, f"hazard {why} on {reg}: {pos-p-1} < {n}")
            if x.kind == 'mfma':
                for r in x.rd: need(r, 'valu', 2, 'valu->mfma')
                for r in list(x.mA) + list(x.mB): need(r, 'mfma', 8, 'mfma D->mfma AB')
                for r in x.mC:
                    p = lastw.get((r, 'mfma'))
                    if p is not None and lastw.get((r, 'mfmaD')) != tuple(x.mC) and pos - p - 1 < 6: err(i, f"mfma D->C partial overlap {r}")
                need(('s', 'exec'), 'valu', 4, 'exec->mfma')
            if x.kind in ('valu', 'vm', 'ds'):
                for r in x.rd: need(r, 'mfma', 8, 'mfma D->read')
                for r in x.wr: need(r, 'mfma', 8, 'mfma D->write')
            if x.kind == 'valu':
                for r in x.wr:
                    p = lastmC.get(r)
                    if p is not None and pos - p - 1 < 3: err(i, f"WAR mfma C {r}")
                    p = laststore.get(r)
                    if p is not None and pos - p - 1 < 2: err(i, f"WAR store data {r}")
                if not x.op.startswith(TRANS):
                    for r in x.rd: need(r, 'trans', 1, 'trans->valu')
                if x.op.startswith('v_permlane'):
                    for r in x.rd: need(r, 'valu', 2, 'valu->permlane')
                if x.op.startswith('v_readfirstlane') or x.op.startswith('v_readlane'):
                    for r in x.rd: need(r, 'valu', 1, 'valu->readlane')
                if 'dpp' in x.text or 'row_' in x.text or 'quad_perm' in x.text:
                    for r in x.rd: need(r, 'valu', 2, 'valu->dpp')
                for r in x.rd:
                    if r[0] == 's': need(r, 'valu', 2, 'valu sgpr->valu')
                if x.op.startswith('v_cndmask') and 'vcc' in x.text: need(('s', 'vcc'), 'valu', 2, 'vcc->cndmask')
            if x.kind in ('vm', 'ds'):
                for r in x.rd: need(r, 'trans', 1, 'trans->mem')
                for r in x.wr:
                    p = laststore.get(r)
                    if p is not None and pos - p - 1 < 1: err(i, f"WAR store data {r}")
            if x.kind == 'vm':
                for r in x.rd:
                    if r[0] == 's': need(r, 'valu', 5, 'valu sgpr->vmem')
                if x.meta.get('dma'):
                    need(('s', 'm0'), 'salu', 1, 'm0->dma')
                    if m0used[0] and not x.meta.get('m0reuse'): err(i, 'DMA reuses an M0 value already consumed')
                    if x.meta.get('m0w') is not None and x.meta['m0w'] is not m0used[1]: err(i, 'DMA runs under a foreign M0')
                    m0used[0] = True
            if x.kind == 'salu' and x.op.startswith('s_cbranch') and 'vcc' in x.op:
                need(('s', 'vcc'), 'valu', 5, 'vcc->cbranch (conservative)')
            sl = x.meta.get('slot')
            if sl is not None:
                sls = sl if isinstance(sl, list) else [sl]
                isw = x.meta.get('dma') or (x.kind == 'ds' and not x.wr)
                priv = x.meta.get('priv')
                for s in sls:
                    if isw:
                        for e in slot_rd.get(s, []):
                            if not (e.get('bar') or (priv and e.get('done'))): err(i, f"LDS WAR on slot {s}: read '{e['ins'].text}' not fenced")
                        slot_rd[s] = []
                        if x.meta.get('gen') is not None:
                            pass
                    else:
                        for e in slot_dma.get(s, []):
                            if not (e.get('bar') or (priv and e.get('done'))): err(i, f"LDS RAW on slot {s}: write '{e['ins'].text}' not fenced")
                        g = x.meta.get('gen')
                        if g is not None:
                            gd = g[0] + it * g[1]
                            gens = set(e.get('gen') for e in slot_dma.get(s, []))
                            if gens != {gd}: err(i, f"LDS generation mismatch slot {s}: want {gd} have {gens}")
            e = None
            if x.kind == 'vm':
                e = dict(wr=list(x.wr), ins=x); vmq.append(e)
                if len(vmq) > 63: err(i, 'vmcnt overflow (>63 outstanding)')
                if x.meta.get('store') and len(x.meta['sdata']) >= 3:
                    for r in x.meta['sdata']: laststore[r] = pos
            elif x.kind == 'ds':
                e = dict(wr=list(x.wr), ins=x); lgq.append(e)
            elif x.kind == 'smem':
                e = dict(wr=list(x.wr), ins=x, smem=True); lgq.append(e)
            if e is not None:
                for r in x.wr: pend[r] = e
                if sl is not None:
                    for s in sls:
                        if isw:
                            g = x.meta.get('gen'); gd = None if g is None else g[0] + it * g[1]
                            e['gen'] = gd
                            old = [o for o in slot_dma.get(s, []) if o.get('gen') == gd]
                            slot_dma[s] = old + [e]
                        else: slot_rd.setdefault(s, []).append(e)
            if x.kind == 'mfma':
                for r in x.wr: lastw[(r, 'mfma')] = pos; lastw[(r, 'mfmaD')] = tuple(x.wr); lastw.pop((r, 'valu'), None)
                for r in x.mC: lastmC[r] = pos
            elif x.kind == 'valu':
                for r in x.wr:
                    lastw[(r, 'valu')] = pos; lastw.pop((r, 'mfma'), None)
                    if x.op.startswith(TRANS): lastw[(r, 'trans')] = pos
                    else: lastw.pop((r, 'trans'), None)
            elif x.kind == 'salu':
                if ('s', 'm0') in x.wr:
                    if not m0used[0]: err(i, 'M0 overwritten before use')
                    m0used[0] = False; m0used[1] = x
                for r in x.wr: lastw[(r, 'salu')] = pos; lastw.pop((r, 'valu'), None)
            pos += x.states()
        seen = set(); n = 0
        for e in errs:
            key = e.split("'")[1] + e.split(':')[-1]
            if key in seen: continue
            seen.add(key); sys.stderr.write(e + '\n'); n += 1
            if n > 40: break
        return len(errs) == 0

class Gaps:
    def __init__(self, mf):
        self.M = mf; n = len(mf); self.n = n
        self.S = [[] for _ in range(n)]; self.N = [[] for _ in range(n)]; self.V = [[] for _ in range(n)]
        self.cap = [2] * n
    def mem(self, g, ins):
        g %= self.n
        assert not self.N[g], f"gap {g} already has mem {self.N[g][0].text}"
        assert self.cap[g] >= 1
        self.N[g].append(ins); self.cap[g] -= 1
    def mem_from(self, g, ins):
        while self.N[g % self.n] or self.cap[g % self.n] < 1: g += 1
        self.mem(g, ins); return g
    def sc(self, g, ins): self.S[g % self.n].append(ins)
    def sc_free(self, g):
        return not self.S[g % self.n]
    def valu(self, g, ins, cost=1):
        g %= self.n
        assert self.cap[g] >= cost
        self.V[g].append(ins); self.cap[g] -= cost
    def items(self, lo=0, hi=None):
        out = []
        for i in range(lo, self.n if hi is None else hi):
            if self.M[i] is not None: out.append(self.M[i])
            out += self.S[i] + self.N[i] + self.V[i]
        return out
```

```python
import sys, struct
from asmlib import *

OPT = dict(stamp=0, look=5, barg=80, slp=2, fpub=0, warm=1, sigst=1, early=1, td=4, pair=1, pf0=0, pfi=0, cst=24, fv=12, pubst=8, pubn=2, fsig=18, ctouch=2, ct0=0, g0=27, span=88, dcap=0, bcap=1, lcap=1, dstep=7, noex=0, lnfirst=0, chain=6, nb=3, kg=3, vg=1, strict=0, pk0=1, bs=24, bl=28, lookg=20, vsp=4, phs=24, phl=40, lnsh=7, lslp=8, e0=60, esp=4)
for a in sys.argv[1:]:
    k, v = a.split('='); OPT[k] = int(v, 0)
NAME = "recurrent_scan__mha_block_cached__swiglu_ffn__prompt_kernel"

WS_XN = 0x0;        SZ_XN = 2048 * 640 * 2
WS_WP = 0x400000;   SZ_WP = 7680 * 640 * 2
WS_OF = 0x1000000;  SZ_OF = 2048 * 7680 * 2
XBW = 2560; WS_XB = 0x3000000;  SZ_XB = 64*4*3*2*4*XBW
WS_FL = 0x5000000;  SZ_FL = 32768
FL_LN = 24576; FL_H = 2048; FL_O = 4096; FL_X = 8192; FL_F = 16384
def f32(x): return "0x%08x" % struct.unpack('<I', struct.pack('<f', x))[0]
MF = "v_mfma_f32_16x16x32_bf16"
SC1 = " sc1"
def vr(b, n=4): return f"v[{b}:{b+n-1}]"
def ar(b, n=4): return f"a[{b}:{b+n-1}]"
LOG2E = 1.4426950408889634
QSCALE = LOG2E / (192 ** 0.5)

sW = 28; sH = 29; sKb = 30; sVb = 31; sKo = 32; sVo = 33; sCnt = 34; sPass = 35; sWQm = 36; sGUm = 37; sI = 38; cC = 39; sT = 40
cWo = 50; cBo = 51; cM = 52; cXO = 53; cXB = 54; cTile = 55; sFL = 56; sNON = 66; cW1 = 68; sFO = 46; sFH = 47; sFX = 48
kX = 72; kK = 74; kV = 76; kWQ = 78; kWO = 80; kWG = 84; kWU = 86; kWD = 88; kOUT = 90; kWS = 94
vL1K = 1; vLANE = 2; vL16 = 3; vK0 = 4; vV = 6; vDK = 10; vDV = 11
vWQ = 12; vGU = 13; vAQ = 16
cvA = 12; cvB = 15; cvH = 20; vL8 = 22
vSIG = 25; vNON = 26; vP4 = 60; vP8 = 61; vSTAMP = 62; vCT = 63
vT = 28; vPOLL = 248; vX = 248; vDV2 = 23
QACC = 64; QF = 64; SR = 160; PR = 192; MR = 224; LR = 240; MXI = 244
XB = 96; RING = 192
A_STAGE = 36864
K_RING = 114688; V_RING = 65536; SLOT = 12288
VOTE = 114688 + 4096

def srd(p, d, lo, size, add=None):
    if add is None: p(f"s_mov_b32 s{d}, s{lo}"); p(f"s_mov_b32 s{d+1}, s{lo+1}")
    else: p(f"s_add_u32 s{d}, s{lo}, {add}"); p(f"s_addc_u32 s{d+1}, s{lo+1}, 0")
    if size is not None: p(f"s_mov_b32 s{d+2}, {size}")
    p(f"s_mov_b32 s{d+3}, 0x20000")

def xlane(p, op, a, t):
    p(f"v_mov_b32 v{t}, v{a}"); p("s_nop 1")
    p(f"v_permlane32_swap_b32 v{a}, v{t}"); p("s_nop 1")
    p(f"{op} v{a}, v{a}, v{t}")
    p(f"v_mov_b32 v{t}, v{a}"); p("s_nop 1")
    p(f"v_permlane16_swap_b32 v{a}, v{t}"); p("s_nop 1")
    p(f"{op} v{a}, v{a}, v{t}")
def xlane4(p, op, regs, t):
    for sw in ("v_permlane32_swap_b32", "v_permlane16_swap_b32"):
        for i, a in enumerate(regs): p(f"v_mov_b32 v{t+i}, v{a}")
        p("s_nop 0")
        for i, a in enumerate(regs): p(f"{sw} v{a}, v{t+i}")
        for i, a in enumerate(regs): p(f"{op} v{a}, v{a}, v{t+i}")

NST = [0]
def stamp(p, idx, alt=False):
    if OPT.get('lst') == 2 and not alt and idx not in (0,): return
    if OPT['stamp']:
        p("s_memtime s[64:65]" if OPT.get("clk") else "s_memrealtime s[64:65]"); p("s_waitcnt lgkmcnt(0)")
        p(f"v_writelane_b32 v{vSTAMP}, s64, {idx}")
def stamp_out(p):
    if not OPT['stamp']: return
    if OPT['stamp'] == 2:
        p(f"s_cmp_lg_u32 s2, {OPT.get('dwg', 1)}"); p("s_cbranch_scc1 K_so")
        p(f"s_cmp_lg_u32 s{sW}, 0"); p("s_cbranch_scc1 K_so")
        p("s_mov_b32 s4, s92"); p("s_mov_b32 s5, s93"); p("s_mov_b32 s6, 128"); p("s_mov_b32 s7, 0x20000")
        p(f"v_readlane_b32 s64, v{vSTAMP}, 0"); p(f"v_lshlrev_b32 v4, 2, v{vLANE}"); p("v_subrev_u32 v4, 4, v4"); p("s_nop 1")
        p(f"v_subrev_u32 v5, s64, v{vSTAMP}")
        p(f"buffer_store_dword v5, v4, s[4:7], 0 offen"); p("s_waitcnt vmcnt(0)")
        p("K_so:")
        return
    p("s_cmp_ge_u32 s2, 64"); p("s_cbranch_scc1 K_so")
    p(f"s_cmp_lg_u32 s{sW}, 0"); p("s_cbranch_scc1 K_so")
    p(f"s_add_u32 s4, s{kWS}, {0xF000000}"); p(f"s_addc_u32 s5, s{kWS+1}, 0"); p("s_mov_b32 s6, 8192"); p("s_mov_b32 s7, 0x20000")
    p("s_lshl_b32 s64, s2, 7"); p(f"v_lshlrev_b32 v4, 2, v{vLANE}"); p("s_mov_b64 exec, 0xffffffff")
    p(f"buffer_store_dword v{vSTAMP}, v4, s[4:7], s64 offen"); p("s_waitcnt vmcnt(0)")
    p("K_so:")

def signal(soff): return Ins(f"buffer_store_dwordx2 {vr(vNON,2)}, v{vSIG}, s[{sFL}:{sFL+3}], s{soff} offen{SC1}")
def poll_load(voff, soff): return Ins(f"buffer_load_dwordx2 {vr(vPOLL,2)}, v{voff}, s[{sFL}:{sFL+3}], s{soff} offen{SC1}", tag=('pl', 0))
def poll(p, lab, voff, soff, pre=False, slp=None):
    p(f"s_mov_b32 s{sT+2}, 0")
    if pre: p(f"s_branch {lab}_chk")
    p(f"{lab}:")
    p.add(poll_load(voff, soff)); p("s_waitcnt vmcnt(0)")
    p(f"{lab}_chk:")
    p(f"v_cmp_ne_u64 vcc, {vr(vNON,2)}, {vr(vPOLL,2)}"); p("s_nop 4")
    p(f"s_cbranch_vccz {lab}_ok")
    p(f"s_sleep {OPT['slp'] if slp is None else slp}")
    p(f"s_add_u32 s{sT+2}, s{sT+2}, 1"); p(f"s_cmp_lt_u32 s{sT+2}, 0x40000"); p(f"s_cbranch_scc1 {lab}")
    p(f"{lab}_ok:")
def hpoll_loads(so="0", tag=('hp', 99)):
    return [Ins(f"buffer_load_dwordx4 {vr(vPOLL+4*j)}, v{vL16}, s[{sFL}:{sFL+3}], {so} offen offset:{FL_H+1024*j}{SC1}", tag=tag) for j in range(2)]
def hpoll(p, lab):
    p(f"s_mov_b32 s{sT+2}, 0"); p(f"s_branch {lab}_chk")
    p(f"{lab}:")
    p.add(hpoll_loads()); p("s_waitcnt vmcnt(0)")
    p(f"{lab}_chk:")
    p(f"v_cmp_ne_u64 s[{sT}:{sT+1}], {vr(vNON,2)}, {vr(vPOLL,2)}")
    for j in range(1, 4):
        p(f"v_cmp_ne_u64 vcc, {vr(vNON,2)}, {vr(vPOLL+2*j,2)}"); p(f"s_or_b64 s[{sT}:{sT+1}], s[{sT}:{sT+1}], vcc")
    p(f"s_cbranch_scc0 {lab}_ok")
    p(f"s_sleep 8")
    p(f"s_add_u32 s{sT+2}, s{sT+2}, 1"); p(f"s_cmp_lt_u32 s{sT+2}, 0x40000"); p(f"s_cbranch_scc1 {lab}")
    p(f"{lab}_ok:")

PB = [192, 208, 28, 44]
NR = 16
def slen(i): return 112 if i & 1 else 80
def fbase(i): return 4 if i == 64 else (20 if i & 1 else 0)
def k_dma(tile, soff, stride=0):
    slot = tile % 4
    return [(Ins(f"s_add_u32 m0, s{sKb}, {slot*SLOT + blk*4096 - blk*128}"),
             Ins(f"buffer_load_dwordx4 v{vDK}, s[4:7], s{soff} offen offset:{blk*128} lds", tag=('K', tile, stride), slot=('K', slot), gen=(tile, stride))) for blk in range(3)]
def u_dma(e, soff, stride=0):
    j = (e-1) >> 1; ps = j & 1; blks = (0, 1) if e & 1 else (2,)
    return [(Ins(f"s_add_u32 m0, s{sVb}, {ps*24576 + blk*8192 + hf*4096 - blk*128}"),
             Ins(f"buffer_load_dwordx4 v{vDV2 if hf else vDV}, s[8:11], s{soff} offen offset:{blk*128} lds", tag=('U', e, stride), slot=('U', e % 4), gen=(e, stride)))
            for blk in blks for hf in range(2)]
def kfrag_read(f, tile, stride=0):
    kt, ks = divmod(f, 6); slot = tile % 4; rs = (fbase(tile-1) + f) % NR
    return Ins(f"ds_read_b128 {ar(RING+4*rs)}, v{vK0 + (ks&1)} offset:{slot*SLOT + (ks>>1)*4096 + kt*2048}",
               tag=('kf', tile*12+f, stride*12), slot=('K', slot), gen=(tile, stride))
def vfrag_read(f, rd, e, stride=0):
    j = (e-1) >> 1; ps = j & 1; dt = (0 if e & 1 else 8) + (f >> 1); hf = f & 1; rs = (fbase(e) + 12 + f) % NR
    return Ins(f"ds_read_b64_tr_b16 {ar(RING+4*rs+2*rd,2)}, v{vV + (dt&3)} offset:{ps*24576 + (dt>>2)*8192 + hf*4096 + rd*2048}",
               tag=('vf', e*16+f, stride*16), slot=('U', e % 4), gen=(e, stride))
def qk_seq():
    ch = OPT['chain']; seq = []
    for kt in range(2):
        for k0 in range(0, 6, ch):
            for qt in range(4):
                r = list(range(k0, k0+ch))
                if qt & 1: r.reverse()
                seq += [(kt, ks, qt) for ks in r]
    return seq
def qk_mfmas(step, czero=False):
    M = []; seen = set()
    for kt, ks, qt in qk_seq():
        s = SR + (kt*4+qt)*4
        c = vr(s) if (kt, qt) in seen else ("0" if czero else vr(MR+4*qt)); seen.add((kt, qt))
        M.append(Ins(f"{MF} {vr(s)}, {ar(RING+4*((fbase(step)+kt*6+ks)%NR))}, {vr(QF+(ks*4+qt)*4)}, {c}"))
    return M
def pv_mfmas(e, czero=False):
    M = []; j = (e-1) >> 1; d0, nd = (0, 8) if e & 1 else (8, 4)
    for dl in range(nd):
        for qt in range(4):
            o = ((d0+dl)*4+qt)*4
            for k, hf in enumerate((0, 1) if qt % 2 == 0 else (1, 0)):
                M.append(Ins(f"{MF} {ar(o)}, {ar(RING+4*((fbase(e)+12+2*dl+hf)%NR))}, {vr(PB[(2*j+hf)%4]+4*qt)}, {'0' if (czero and k == 0) else ar(o)}"))
    return M
def softmax_items(t):
    pb = PB[t % 4]; it = []
    seq = [(kt, qt, r) for kt in range(2) for qt in range(4) for r in range(4)]
    def reg(e): return SR + (e[0]*4+e[1])*4 + e[2]
    def post(e):
        o = [(1, f"v_add_f32 v{LR+e[1]}, v{LR+e[1]}, v{reg(e)}", e[0], e[1])]
        if e[2] & 1: o.append((1, f"v_cvt_pk_bf16_f32 v{pb+4*e[1]+2*e[0]+(e[2]>>1)}, v{reg(e)-1}, v{reg(e)}", e[0], e[1]))
        return o
    for i, e in enumerate(seq):
        it.append((2, f"v_exp_f32 v{reg(e)}, v{reg(e)}", e[0], e[1]))
        if i >= 2: it += post(seq[i-2])
    it += post(seq[-2]) + post(seq[-1])
    return it
def plan_macro():
    N = 192; st0 = [0, 80]; bar = [80 - OPT['bs'], 192 - OPT['bl']]
    qs = qk_seq()
    kfirst = {}; klast = {}; sfirst = {}; slast = {}
    for g, (kt, ks, qt) in enumerate(qs):
        kfirst.setdefault(kt*6+ks, g); klast[kt*6+ks] = g; sfirst.setdefault((kt, qt), g); slast[(kt, qt)] = g
    fr = []
    for par in range(2):
        for f in range(12): fr.append((par, 'k', f, st0[par]+kfirst[f], st0[par]+klast[f]))
        for f in range(16 if par else 8): fr.append((par, 'v', f, st0[par]+48+8*(f >> 1), st0[par]+48+8*(f >> 1)+7))
    mem = {}; pos = {}
    g = bar[1] - N
    for ph, (par, kind, f, first, last) in enumerate(fr):
        prev = fr[(ph - NR) % 48]; pl = prev[4] - (N if ph < NR else 0)
        lo = pl + 1
        if kind == 'k': lo = max(lo, (bar[1]-N if par == 0 else bar[0]) + 1)
        tgt = first - OPT['lookg']
        if kind == 'v':
            nleft = (16 if par else 8) - f
            tgt = min(tgt, bar[par] - 7 - OPT['vsp']*nleft)
        for rd in range(1 if kind == 'k' else 2):
            g = max(g+1, lo, tgt)
            while (g % N) in mem or (g % N) in bar: g += 1
            mem[g % N] = (kind, par, f, rd, g < st0[par]); pos[(par, kind, f)] = g
            assert g <= first - 6, (par, kind, f, g, first)
            if kind == 'v': assert g < bar[par] - 5, (par, f, g)
            if kind == 'k': g += 1
    for ep in range(2):
        n = 7 if ep == 0 else 5
        g = (bar[1] - N if ep == 0 else bar[0]) + 3
        for k in range(n):
            while (g % N) in mem or ((g-1) % N) in bar or (g % N) in bar or ((g+1) % N) in bar or (g % N) in (0, 80): g += 1
            mem[g % N] = ('dma', ep, k, 0, g < st0[ep]); g += OPT['dstep']
        assert g - OPT['dstep'] < bar[ep] - 2
    cap = [2 - (1 if i in mem else 0) for i in range(N)]
    for g_, m_ in mem.items():
        if m_[0] == 'dma' and OPT['dcap'] <= 0: cap[g_] = 0
        if m_[0] == 'dma' and OPT['dcap'] == -1: cap[(g_+1) % N] = min(cap[(g_+1) % N], 1)
    if OPT['bcap'] == 0:
        for b_ in bar: cap[b_] = 0
    vpos = []
    items = softmax_items(0); tot = sum(x[0] for x in items)
    phi = [OPT['phs'], 80 + OPT['phl']]; span = [phi[1]-phi[0]-2, phi[0]+N-phi[1]-2]
    g = phi[0]
    for par in range(2):
        p_ = [None]*len(items); acc = 0; pend = list(range(len(items))); n = slen(par)
        while pend:
            g = max(g, phi[par] + int(acc*span[par]/tot)); placed = False
            for j in range(min(2, len(pend))):
                c, t, kt, qt = items[pend[j]]
                if j > 0 and not (c == 1 and items[pend[0]][0] == 2): continue
                if c <= cap[g % N] and g >= st0[par] + slast[(kt, qt)] + 7:
                    p_[pend[j]] = g - st0[par]; cap[g % N] -= c; acc += c; pend.pop(j); placed = True
                    assert g - st0[par] < n + sfirst[(kt, qt)] - 1, (par, g, t)
                    if par == 0: assert g < 80 + 46
                    break
            if not placed: g += 1
        vpos.append(p_)
    return dict(mem=mem, vpos=vpos, bar=bar, kfirst=kfirst, pos=pos)
PLAN = plan_macro()

def attn_step(i, stride, qk=True, pv=True, czero=False):
    par = i & 1; n = slen(i); s0 = 80*par; BARG = PLAN['bar'][par] - s0
    ex = lambda t, mx: stride != 0 or t <= mx
    M = (qk_mfmas(i) if qk else [None]*48) + (pv_mfmas(i, czero) if pv else [None]*(n-48))
    G = Gaps(M); G.barg = BARG
    for gg, m in sorted(PLAN['mem'].items()):
        g = gg - s0
        if not 0 <= g < n: continue
        kind, mp, f, rd, early = m
        step = i+1 if early else i
        if kind == 'v':
            if step >= 1 and ex(step, 63): G.mem(g, vfrag_read(f, rd, step, stride))
        elif kind == 'k':
            if ex(step+1, 63): G.mem(g, kfrag_read(f, step+1, stride))
        else:
            if f < 3:
                if not ex(step+4, 63): continue
                mi, d = k_dma(step+4, sKo, stride)[f]; post = f"s_add_u32 s{sKo}, s{sKo}, {SLOT}" if f == 2 else None
            else:
                if not ex(step+3, 64): continue
                l = u_dma(step+3, sVo, stride); mi, d = l[f-3]; post = f"s_add_u32 s{sVo}, s{sVo}, {2*SLOT}" if (f-3 == len(l)-1 and (step+3) % 2 == 0) else None
            G.sc(g-1, mi); G.mem(g, d)
            if post: G.sc(g+1, Ins(post))
    kf = PLAN['kfirst']
    KG = OPT['kg']
    for f0 in range(0, 12, KG):
        fs = range(f0, f0+KG); g = min(kf[f] for f in fs) - 1
        if g < 0:
            if ex(i+2, 63): G.sc(n-1, Wait(lgkm=[('kf', (i+2)*12+f, stride*12) for f in fs]))
        elif qk: G.sc(g, Wait(lgkm=[('kf', (i+1)*12+f, stride*12) for f in fs]))
    if pv:
        VG = OPT['vg']
        for dl in range(0, 8 if par else 4, VG):
            g = 48 + 8*dl - 1
            if g < BARG-1: G.sc(g, Wait(lgkm=[('vf', i*16+2*(dl+VG)-1, stride*16)]))
    need = []
    if ex(i+2, 63): need.append(('K', i+2, stride))
    if ex(i+1, 64): need.append(('U', i+1, stride))
    if need: G.sc(BARG-1, Wait(vm=need, lgkm='all')); G.sc(BARG, Ins("s_barrier"))
    else: G.sc(BARG-1, Wait(lgkm='all'))
    if ex(i, 63):
        pn = slen(i-1)
        for (c, t, kt, qt), g in zip(softmax_items(i), PLAN['vpos'][1-par]):
            if g >= pn: G.valu(g-pn, Ins(t), c)
    if qk:
        for (c, t, kt, qt), g in zip(softmax_items(i+1), PLAN['vpos'][par]):
            if g < n: G.valu(g, Ins(t), c)
    return G

C_STAGE = 20480; C_NS = 8; C_LA = 6; C_D = 6
cS = 0; cF = 80; cRING = 160
CB = [('v', 224), ('v', 192), ('v', 208), ('v', 160), ('v', 176), ('v', 44), ('a', 224), ('a', 240)]
CA = [0, 1, 2, 3, 6, 7, 4, 5]
def cb(n, o):
    c, b = CB[n % C_NS]
    return f"{c}[{b+o}:{b+o+3}]"
def c_wloads(n, stride=0):
    sl = n % C_NS; out = []
    for j in range(5):
        if j in (0, 4): w = Ins(f"s_add_u32 m0, s{cM}, {CA[sl]*C_STAGE + (1024 if j == 4 else 0)}")
        out.append(([w] if j in (0, 4) else [], Ins(f"buffer_load_dwordx4 v{vL16 if j < 4 else vL1K}, s[12:15], s{cWo} offen offset:{min(j,3)*1024}{SC1} lds",
                            tag=('cw', n, stride), slot=('C', sl), gen=(n, stride), m0reuse=True, m0w=w)))
    return out, Ins(f"s_add_u32 s{cWo}, s{cWo}, 10240")
def cb2(n, o):
    c, b = CB[n % C_NS]
    return f"{c}[{b+o}:{b+o+1}]"
def c_bloads(n, stride=0):
    out = []
    for ks in range(2):
        for qs in range(2):
            if n < 6 and (2*n+ks) % 3 == 1:
                for hf in range(2):
                    sc = [Ins(f"s_add_u32 s{sT+5}, s{cBo}, {4096*ks}")] if (qs == 0 and hf == 0) else []
                    out.append((sc, Ins(f"buffer_load_dwordx2 {cb2(n,(ks*2+qs)*4+2*hf)}, v{cvH+qs}, s[16:19], s{sT+5} offen offset:{512*hf}{SC1}", tag=('cb', n, stride))))
            else:
                out.append(([], Ins(f"buffer_load_dwordx4 {cb(n,(ks*2+qs)*4)}, v{cvB+2*ks+qs}, s[16:19], s{cBo} offen{SC1}", tag=('cb', n, stride))))
    return out, Ins(f"s_add_u32 s{cBo}, s{cBo}, 8192")
def c_aread(n, f, stride=0):
    sl = n % C_NS; ks, t = ((f & 1, f >> 1) if OPT['pair'] else divmod(f, 10)); sh, tt = divmod(t, 5)
    return Ins(f"ds_read_b128 {ar(cRING+4*(f%10))}, v{cvA + CA[sl]//3} offset:{(CA[sl]%3)*C_STAGE + sh*10240 + ks*5120 + tt*1024}",
               tag=('caf', n*20+f, stride*20), slot=('C', sl), gen=(n, stride))
def c_stage(n, acc, stride=0, czero=False, wl=True, bl=True, nxt=True, extra=(), wtags=(), after=(), more=(), cap=54, force_bar=False):
    M = []
    seq = [(ks, t, qs) for t in range(10) for qs in range(2) for ks in range(2)] if OPT['pair'] else [(ks, t, qs) for ks in range(2) for t in range(10) for qs in range(2)]
    for ks, t, qs in seq:
        d = ar(acc + (t*2+qs)*4)
        M.append(Ins(f"{MF} {d}, {ar(cRING+4*((2*t+ks if OPT['pair'] else ks*10+t)%10))}, {cb(n,(ks*2+qs)*4)}, {'0' if (czero and ks==0) else d}"))
    G = Gaps(M)
    BG = 2*(20-C_LA) - 1
    for f in range(C_LA, 20): G.mem(2*(f-C_LA), c_aread(n, f, stride))
    if nxt:
        for f in range(C_LA): G.mem(2*(20+f-C_LA), c_aread(n+1, f, stride))
        G.sc(BG-1, Wait(vm=[('cw', n+1, stride), ('cb', n+1, stride)] + list(wtags), cap=cap)); G.sc(BG, Ins("s_barrier"))
    for f in range(2, 20, 2):
        G.sc(2*f-2 if 2*f-1 != BG else 2*f-3, Wait(lgkm=('caf', n*20+f+1, stride*20)))
    if nxt: G.sc(38, Wait(lgkm=('caf', (n+1)*20+1, stride*20)))
    L = list(more)
    if wl:
        l, po = c_wloads(n+C_D, stride); L += l; L.append(([po], None))
    if bl:
        l, po = c_bloads(n+C_D, stride); L += l; L.append(([po], None))
    for e in extra: G.sc(0, e)
    for m in after: G.mem(BG+2, m)
    nm = sum(1 for sc, m in L if m is not None)
    free = [g for g in range(1, 38, 2) if not G.N[g] and g != BG]
    slots = [free[min(len(free)-1, int((k+0.5)*len(free)/max(nm,1)))] for k in range(nm)] + [39]
    k = 0; lo = 0
    for sc, m in L:
        g = max(slots[k] - 1, lo); pos = []
        for s_ in reversed(sc):
            while g > lo and not G.sc_free(g): g -= 1
            pos.append((g, s_))
            if g > lo: g -= 1
        for g_, s_ in reversed(pos): G.sc(g_, s_)
        if pos: lo = max(lo, max(x[0] for x in pos))
        if m is not None:
            G.mem(slots[k], m); lo = min(slots[k] + 1, 39); k += 1
    return G
def c_cvt(p, acc, dst, tmp):
    for sg in range(1, 4):
        qs, sh = sg & 1, sg >> 1
        for tt in range(5):
            t = tmp + 4*(tt & 1)
            for r in range(4): p(f"v_accvgpr_read_b32 v{t+r}, a{acc+((sh*5+tt)*2+qs)*4+r}")
            d = dst + 12*(sg-1) + 2*tt
            p(f"v_cvt_pk_bf16_f32 v{d}, v{t}, v{t+1}"); p(f"v_cvt_pk_bf16_f32 v{d+1}, v{t+2}, v{t+3}")
def xb_ops(op, reg, soff, tag):
    return [Ins(f"buffer_{op}_dwordx4 {vr(reg)}, v{vL16}, s[20:23], s{soff} offen{SC1}", tag=tag),
            Ins(f"buffer_{op}_dwordx4 {vr(reg+4)}, v{vL16}, s[20:23], s{soff} offen offset:1024{SC1}", tag=tag),
            Ins(f"buffer_{op}_dwordx2 {vr(reg+8,2)}, v{vL8}, s[20:23], s{soff} offen offset:2048{SC1}", tag=tag)]
def c_pub(src, kind):
    out = []
    for sg in range(1, 4):
        sc = [f"s_xor_b32 s{sT}, s{cC}, {sg}", f"s_mul_i32 s{sT}, s{sT}, {3*2*4*XBW}", f"s_add_u32 s{sT}, s{sT}, s{cXB}", f"s_add_u32 s{sT}, s{sT}, {((sg-1)*2+kind)*4*XBW}"]
        for k, m in enumerate(xb_ops('store', src + 12*(sg-1), sT, ('pub', kind))):
            out.append(([Ins(x) for x in sc] if k == 0 else [], m))
    return out
def c_get(p, dst, kind):
    p(f"s_mul_i32 s{sT}, s{cC}, {3*2*4*XBW}"); p(f"s_add_u32 s{sT}, s{sT}, s{cXB}")
    if kind: p(f"s_add_u32 s{sT}, s{sT}, {4*XBW}")
    for sg in range(3):
        p.add(xb_ops('load', dst + 12*sg, sT, ('get', kind)))
        if sg < 2: p(f"s_add_u32 s{sT}, s{sT}, {2*4*XBW}")
def c_sum(p, R, src, tmp):
    for sg in range(3):
        for i in range(10):
            t = tmp + 2*(i & 1); q = src + 12*sg + i
            p(f"v_lshlrev_b32 v{t}, 16, v{q}"); p(f"v_and_b32 v{t+1}, 0xffff0000, v{q}")
            p(f"v_pk_add_f32 {vr(R+2*i,2)}, {vr(R+2*i,2)}, {vr(t,2)}")
def c_setup(p):
    p(f"s_lshr_b32 s{cC}, s{sH}, 3")
    p(f"v_mov_b32 v{cvA}, v{vL16}"); p(f"v_add_u32 v{cvA+1}, {3*C_STAGE}, v{vL16}"); p(f"v_add_u32 v{cvA+2}, {6*C_STAGE}, v{vL16}")
    p(f"s_and_b32 s{sT}, s{sW}, 1"); p(f"s_mul_i32 s{cW1}, s{sT}, 5120")
    p(f"s_lshl_b32 s{sT}, s{sT}, 1"); p(f"s_and_b32 s{sT+1}, s{cC}, 1"); p(f"s_add_u32 s{sT+4}, s{sT}, s{sT+1}")
    p(f"s_lshl_b32 s{sT}, s{sT+4}, 10"); p(f"v_add_u32 v{cvB}, s{sT}, v{vL16}"); p(f"v_xor_b32 v{cvB+1}, 1024, v{cvB}")
    p(f"v_add_u32 v{cvB+2}, 4096, v{cvB}"); p(f"v_add_u32 v{cvB+3}, 4096, v{cvB+1}")
    p(f"v_lshlrev_b32 v{vL8}, 3, v{vLANE}"); p(f"v_add_u32 v{cvH}, s{sT}, v{vL8}"); p(f"v_xor_b32 v{cvH+1}, 1024, v{cvH}")
    p(f"s_bfe_u32 s{sT}, s{sH}, 0x10002"); p(f"s_lshl_b32 s{sT}, s{sT}, 1"); p(f"s_lshr_b32 s{sT+1}, s{sW}, 1"); p(f"s_add_u32 s{sT}, s{sT}, s{sT+1}")
    p(f"s_lshl_b32 s{sT+2}, s{sI}, 2"); p(f"s_add_u32 s{sT+3}, s{sT}, s{sT+2}")
    p(f"s_mul_i32 s{sT}, s{sT+3}, {240*4096}"); p(f"s_add_u32 s{sT}, s{sT}, {WS_OF}")
    srd(p, 16, kWS, 240*4096, f"s{sT}")
    p(f"s_lshr_b32 s{sT}, s{cC}, 1"); p(f"s_xor_b32 s{sT}, s{sT}, s{sT+1}"); p(f"s_and_b32 s{sT+2}, s{sH}, 3"); p(f"s_lshl_b32 s{sT+5}, s{sT+2}, 1"); p(f"s_add_u32 s{sT}, s{sT}, s{sT+5}")
    p(f"s_mul_i32 s{sT}, s{sT}, {240*5120}"); p(f"s_add_u32 s{sT}, s{sT}, {WS_WP}")
    srd(p, 12, kWS, 240*5120, f"s{sT}")
    p(f"s_mul_i32 s{cM}, s{sW}, 5120")
    p(f"s_lshl_b32 s{sT+3}, s{sT+3}, 2"); p(f"s_add_u32 s{sT+3}, s{sT+3}, s{sT+4}"); p(f"s_mul_i32 s{cXO}, s{sT+3}, 20480")
    p(f"s_mul_i32 s{sT+2}, s{sT+2}, 320"); p(f"s_add_u32 s{cXO}, s{cXO}, s{sT+2}")
    p(f"s_lshr_b32 s{sT}, s{cC}, 1"); p(f"s_mul_i32 s{sT}, s{sT}, 160"); p(f"s_add_u32 s{cXO}, s{cXO}, s{sT}")
    p(f"s_lshl_b32 s{cTile}, s{sI}, 3"); p(f"s_and_b32 s{sT}, s{sH}, 7"); p(f"s_add_u32 s{cTile}, s{cTile}, s{sT}")
    p(f"s_mul_i32 s{cXB}, s{cTile}, {4*3*2*4*XBW}"); p(f"s_mul_i32 s{sT}, s{sW}, {XBW}"); p(f"s_add_u32 s{cXB}, s{cXB}, s{sT}")
    srd(p, 20, kWS, SZ_XB, WS_XB)
    p(f"s_lshl_b32 s{sFO}, s{sI}, 2"); p(f"s_add_u32 s{sFO}, s{sFO}, s{cC}"); p(f"s_lshl_b32 s{sFO}, s{sFO}, 7"); p(f"s_add_u32 s{sFO}, s{sFO}, {FL_O}")
    p(f"s_lshl_b32 s{sFH}, s{sI}, 5"); p(f"s_add_u32 s{sFH}, s{sFH}, s{sH}"); p(f"s_lshl_b32 s{sFH}, s{sFH}, 3"); p(f"s_add_u32 s{sFH}, s{sFH}, {FL_H}")
    p(f"s_lshl_b32 s{sFX}, s{cTile}, 7"); p(f"s_add_u32 s{sFX}, s{sFX}, {FL_X}")
def c_fcursors():
    return [Ins(x) for x in (f"s_mul_i32 s{cWo}, s{cC}, 12", f"s_add_u32 s{cWo}, s{cWo}, 192", f"s_lshl_b32 s{cBo}, s{cWo}, 12",
                             f"s_mul_i32 s{cWo}, s{cWo}, 5120", f"s_add_u32 s{cWo}, s{cWo}, s{cW1}")]
def flat_loads(ns):
    pf = []
    for n in ns:
        for l, po in (c_wloads(n), c_bloads(n)):
            for sc, m in l: pf.append([list(sc), m, []])
            pf[-1][2].append(po)
    return pf

def phase_c(p):
    p.wait(vm=('cw', 3))
    pf = []
    for n in range(OPT['nb'], C_D):
        l, po = c_bloads(n)
        for sc, m in l: pf.append([list(sc), m, []])
        pf[-1][2].append(po)
    for qt in range(4): p(f"v_rcp_f32 v{4+2*qt}, v{LR+qt}")
    srd(p, 4, kX, SZ_XN); srd(p, 8, kOUT, SZ_XN)
    for qt in range(4): p(f"v_mov_b32 v{4+2*qt+1}, v{4+2*qt}")
    def emit_pf(k):
        for _ in range(k):
            if pf:
                sc, m, po = pf.pop(0); p.add(sc)
                if sc: p("s_nop 0")
                p.add(m); p.add(po)
    emit_pf(OPT['pf0'])
    n = 0; stores = []
    for j in range(6):
        for qt in range(4):
            b = 28 + 8*(n % 2); d = 64 + 4*n; n += 1
            emit_pf(OPT['pfi'])
            for ee in range(2):
                for r in range(4): p(f"v_accvgpr_read_b32 v{b+4*ee+r}, a{((2*j+ee)*4+qt)*4+r}")
            for h in range(4): p(f"v_pk_mul_f32 {vr(b+2*h,2)}, {vr(b+2*h,2)}, {vr(4+2*qt,2)}")
            for h in range(4): p(f"v_cvt_pk_bf16_f32 v{d+h}, v{b+2*h}, v{b+2*h+1}")
            sc = []
            if qt == 0: sc = [Ins(f"s_mul_i32 s{sT+3}, s{sH}, {6*4096}")] if j == 0 else [Ins(f"s_add_u32 s{sT+3}, s{sT+3}, 4096")]
            stores.append((sc, Ins(f"buffer_store_dwordx4 {vr(d)}, v{vL16}, s[24:27], s{sT+3} offen offset:{qt*1024}{SC1}", tag=('O', 0))))
            if n <= OPT['cst']:
                sc, m = stores.pop(0); p.add(sc); p.add(m)
    stamp(p, 8)
    p(f"s_and_b32 s{sT+4}, s{sH}, 7"); p(f"s_lshl_b32 s{sT+4}, s{sT+4}, 3"); p(f"s_add_u32 s{sT+4}, s{sT+4}, s{sFO}")
    p.wait(vm=[('cw', 0), ('cb', 0)]); p("s_barrier")
    for f in range(C_LA): p.add(c_aread(0, f))
    p.wait(lgkm=('caf', 1))
    Q = [(sc, m) for sc, m in stores]
    for sc, m, po in pf:
        Q.append((sc, m))
        if po: Q.append((po, None))
    sw = [Ins(f"s_mul_i32 s{cWo}, s{cC}, {48*5120}"), Ins(f"s_add_u32 s14, s{cWo}, {48*5120}"), Ins(f"s_add_u32 s{cWo}, s{cWo}, s{cW1}")]
    SG = OPT['sigst']; wn = 6; switched = False
    for n in range(6):
        mo = []; cnt = 0
        while Q and cnt < OPT['fv']:
            x = Q.pop(0); mo.append(x); cnt += (x[1] is not None)
        while Q and Q[0][1] is None: mo.append(Q.pop(0))
        while not Q and wn <= n + 6 and cnt + 5 <= OPT['fv'] + 3:
            if not switched: mo.append((sw, None)); switched = True
            l, po = c_wloads(wn); mo += l; mo.append(([po], None)); cnt += 5; wn += 1
        sig = (n == SG)
        G = c_stage(n, cF, czero=(n == 0), wl=False, bl=False, nxt=(n < 5), wtags=[('O', 0)] if sig else (), after=[signal(sT+4)] if sig else (), more=mo, cap=63-OPT['fv']-4)
        p.add(G.items())
        if sig: stamp(p, 9)
    assert not Q
    while wn < 12:
        if not switched: p.add(sw); switched = True
        l, po = c_wloads(wn)
        for sc, m in l:
            p.add(sc)
            if sc: p("s_nop 0")
            p.add(m)
        p.add(po); wn += 1
    stamp(p, 10)
    FP = 64; R = 100; F = 120; GP = 64; T = 140
    p("s_nop 4")
    c_cvt(p, cF, FP, 28)
    for tt in range(5):
        for r in range(4): p(f"v_accvgpr_read_b32 v{F+tt*4+r}, a{cF+(tt*2)*4+r}")
    p(f"v_and_b32 v4, 15, v{vLANE}"); p(f"v_lshrrev_b32 v5, 4, v{vLANE}")
    p("v_mul_u32_u24 v4, 1280, v4"); p("v_lshl_add_u32 v4, v5, 3, v4")
    p(f"s_mul_i32 s{cBo}, s{cC}, {48*4096}"); p(f"s_add_u32 s18, s{cBo}, {48*4096}")
    p(f"s_lshl_b32 s{sT+4}, s{cC}, 3"); p(f"s_add_u32 s{sT+4}, s{sT+4}, s{sFX}")
    p(f"s_add_u32 s{sT+5}, s{sT+4}, {FL_F-FL_X}"); p(f"s_add_u32 s{sT+3}, s{sFX}, {FL_F-FL_X}")
    poll(p, "C_po", vP8, sFO)
    stamp(p, 11)
    for n in range(6, 6+C_D):
        l, po = c_bloads(n)
        for sc, m in l: p.add(sc); p.add(m)
        p.add(po)
    p("s_barrier")
    for f in range(C_LA): p.add(c_aread(6, f))
    pub = c_pub(FP, 1)
    p.wait(vm=('cb', 6), lgkm=('caf', 6*20+1))
    PS = OPT['pubst']
    for n in range(6, 30):
        mo = []
        if n >= PS and pub: mo = pub[:OPT['pubn']]; pub = pub[OPT['pubn']:]
        sig = (n == OPT['fsig'])
        if n == 27: mo = [([], poll_load(vP4, sT+3))]
        G = c_stage(n, cS, czero=(n == 6), wl=(n+C_D < 30), bl=(n+C_D < 30), nxt=(n < 29), more=mo, cap=50,
                    wtags=[('pub', 1)] if sig else (), after=[signal(sT+5)] if sig else ())
        p.add(G.items())
    assert not pub
    stamp(p, 12)
    p("s_waitcnt vmcnt(0)")
    poll(p, "C_pf", vP4, sT+3, pre=True)
    c_get(p, 160, 1)
    for t in range(5): p(f"buffer_load_dwordx2 {vr(6+2*t,2)}, v4, s[4:7], s{cXO} offen offset:{32*t}", tag=('get', 1))
    c_cvt(p, cS, FP, 28)
    for sc, m in c_pub(FP, 0): p.add(sc); p.add(m)
    for tt in range(5):
        for r in range(4): p(f"v_accvgpr_read_b32 v{R+tt*4+r}, a{cS+(tt*2)*4+r}")
    def rnd2(a, b, t):
        p(f"v_cvt_pk_bf16_f32 v{t}, v{a}, v{b}"); p(f"v_lshlrev_b32 v{a}, 16, v{t}"); p(f"v_and_b32 v{b}, 0xffff0000, v{t}")
    def fside():
        c_sum(p, F, 160, 28)
        p(f"s_mov_b32 s{sT}, {f32(-LOG2E)}")
        for i in range(20): p(f"v_mul_f32 v{T+i}, s{sT}, v{F+i}")
        for i in range(20): p(f"v_exp_f32 v{T+i}, v{T+i}")
        for i in range(20): p(f"v_add_f32 v{T+i}, 1.0, v{T+i}")
        for i in range(20): p(f"v_rcp_f32 v{T+i}, v{T+i}")
        for i in range(20): p(f"v_mul_f32 v{F+i}, v{F+i}, v{T+i}")
        for i in range(10):
            p(f"v_lshlrev_b32 v{T+2*i}, 16, v{6+i}"); p(f"v_and_b32 v{T+2*i+1}, 0xffff0000, v{6+i}")
    p.wait(vm=('get', 1))
    fside()
    p("s_waitcnt vmcnt(0)"); p("s_barrier")
    p.add(signal(sT+4))
    stamp(p, 13)
    p(f"s_cmp_eq_u32 s2, 0"); p(f"s_cselect_b32 s{sT+1}, 0, 0x10000000")
    p.add(signal(sT+1))
    poll(p, "C_px", vP4, sFX)
    stamp(p, 14)
    c_get(p, 160, 0)
    p("s_waitcnt vmcnt(0)")
    stamp(p, 15)
    c_sum(p, R, 160, 28)
    for i in range(0, 20, 2): p(f"v_pk_fma_f32 {vr(R+i,2)}, {vr(R+i,2)}, {vr(F+i,2)}, {vr(T+i,2)}")
    for i in range(10): p(f"v_cvt_pk_bf16_f32 v{F+i}, v{R+2*i}, v{R+2*i+1}")
    for t in range(5): p(f"buffer_store_dwordx2 {vr(F+2*t,2)}, v4, s[8:11], s{cXO} offen offset:{32*t}")

def a_wloads(it):
    st = it % 3; out = []; sl = [('A', st)]
    for j in range(2):
        for blk in range(3):
            sc = [Ins(f"s_add_u32 m0, s{sWQm}, {st*A_STAGE + blk*8192 + j*1024 - blk*128}")]
            if blk == 0: sc.insert(0, Ins(f"s_mov_b32 s{sT}, {(it*64 + j*16)*12288}"))
            out.append((sc, Ins(f"buffer_load_dwordx4 v{vWQ}, s[12:15], s{sT} offen offset:{blk*128} lds", tag=('A', it), slot=sl, gen=(it, 0))))
    for j in range(3):
        sc = [Ins(f"s_add_u32 m0, s{sGUm}, {st*A_STAGE + 24576 + j*1024}")]
        if j == 0: sc.insert(0, Ins(f"s_mov_b32 s{sT}, {it*64*3072}"))
        out.append((sc, Ins(f"buffer_load_dwordx4 v{vGU+j}, s[16:19], s{sT} offen lds", tag=('A', it), slot=sl, gen=(it, 0))))
    return out
vTA = 44; vTB = 45; vTD = 46
def touch_setup(p):
    t = vT
    p(f"s_lshl_b32 s{sT}, s{sI}, 3"); p(f"s_lshl_b32 s{sT+1}, s{sW}, 1"); p(f"s_add_u32 s{sT+1}, s{sT+1}, s{sT}")
    p(f"v_and_b32 v{t}, 1, v{vLANE}"); p(f"v_lshrrev_b32 v{t+1}, 1, v{vLANE}")
    p(f"v_add_u32 v{t+2}, s{sT+1}, v{t}"); p(f"v_mul_u32_u24 v{t+2}, 12288, v{t+2}"); p(f"v_lshl_add_u32 v{t+2}, v{t+1}, 7, v{t+2}")
    p(f"v_mov_b32 v{t+3}, 0x10000000"); p(f"v_cmp_gt_u32 vcc, 6, v{vLANE}"); p("s_nop 1"); p(f"v_cndmask_b32 v{vTA}, v{t+3}, v{t+2}, vcc")
    p(f"s_and_b32 s{sT+1}, s{sW}, 1"); p(f"s_lshl_b32 s{sT+1}, s{sT+1}, 2"); p(f"s_add_u32 s{sT+1}, s{sT+1}, s{sT}")
    p(f"v_add_u32 v{t+2}, s{sT+1}, v{t+1}"); p(f"v_mul_u32_u24 v{t+2}, 3072, v{t+2}"); p(f"v_mul_u32_u24 v{t}, 92, v{t}"); p(f"v_add_u32 v{t+2}, v{t+2}, v{t}")
    p(f"v_cmp_gt_u32 vcc, 8, v{vLANE}"); p("s_nop 1"); p(f"v_cndmask_b32 v{vTB}, v{t+3}, v{t+2}, vcc")
def touch(it):
    if not OPT['warm'] or it > 9: return []
    d = vTD + 2*(it % 4)
    return [([Ins(f"s_mov_b32 s{sT}, {it*64*12288}")], Ins(f"buffer_load_dword v{d}, v{vTA}, s[12:15], s{sT} offen")),
            ([Ins(f"s_mov_b32 s{sT}, {it*64*3072}")], Ins(f"buffer_load_dword v{d+1}, v{vTB}, s[16:19], s{sT} offen"))]
def a_xloads(it):
    st = it % 3; out = []
    for ks in range(2):
        for qt in range(4):
            sc = [Ins(f"s_mov_b32 s{sT+1}, {(it*2+ks)*4096}")] if qt == 0 else []
            out.append((sc, Ins(f"buffer_load_dwordx4 {ar(XB+32*st+(ks*4+qt)*4)}, v{vL16}, s[20:23], s{sT+1} offen offset:{qt*1024}{SC1}", tag=('A', it))))
    return out
def a_read(it, f):
    st = it % 3; ks, nt = ((f & 1, f >> 1) if OPT['pair'] else divmod(f, 18)); rs = (it*36+f) % 8; o = []
    for rd in range(2):
        if nt < 12:
            j = nt >> 1; e = nt & 1
            a = vAQ + 3*st + (j & 1); off = (j >> 1)*8192 + ks*4096 + rd*2048 + 8*e
        else:
            mtx, tt = divmod(nt-12, 3)
            a = vAQ + 3*st + 2; off = 24576 + mtx*6144 + ks*3072 + rd*1536 + tt*32
        o.append(Ins(f"ds_read_b64_tr_b16 {ar(RING+4*rs+2*rd,2)}, v{a} offset:{off}", tag=('af', it*36+f), slot=('A', st), gen=(it, 0)))
    return o

SCR = 81920
def side_issue(p):
    p(f"s_and_b32 s{sT}, s{sH}, 1"); p(f"s_cmp_eq_u32 s{sT}, 1"); p("s_cbranch_scc1 S_o0")
    srd(p, 4, kX, SZ_XN)
    p(f"v_and_b32 v64, 15, v{vLANE}"); p(f"v_lshrrev_b32 v65, 4, v{vLANE}")
    p("v_mul_u32_u24 v66, 1280, v64"); p("v_lshl_add_u32 v66, v65, 4, v66")
    p(f"s_lshl_b32 s{sT+5}, s{sI}, 4"); p(f"s_lshr_b32 s{sT}, s{sH}, 1"); p(f"s_add_u32 s{sT+5}, s{sT+5}, s{sT}")
    p(f"s_mul_i32 s{sT}, s{sT+5}, 20480"); p(f"s_mul_i32 s{sT+1}, s{sW}, 320"); p(f"s_add_u32 s{sT}, s{sT}, s{sT+1}")
    for j in range(5): p(f"buffer_load_dwordx4 {vr(80+4*j)}, v66, s[4:7], s{sT} offen offset:{64*j}")
    wsrds(p)
    p("s_branch S_c0")
    p("S_o0:")
    wsrds(p)
    if OPT['ctouch']: p(f"buffer_load_dword v200, v{vCT}, s[96:99], 0 offen")
    p("S_c0:")

def wsrds(p):
    p(f"s_mul_i32 s{sT+2}, s{sH}, 384")
    srd(p, 12, kWQ, None, f"s{sT+2}"); p(f"s_sub_u32 s14, {640*12288}, s{sT+2}")
    p(f"s_cmp_lt_u32 s{sW}, 2"); p(f"s_cselect_b32 s16, s{kWG}, s{kWU}"); p(f"s_cselect_b32 s17, s{kWG+1}, s{kWU+1}")
    p(f"s_mul_i32 s{sT+2}, s{sH}, 96")
    srd(p, 16, 16, None, f"s{sT+2}"); p(f"s_sub_u32 s18, {640*3072}, s{sT+2}")

sPKs = 70; sPKm = 71; sPKd = 69
vPKs = 54; vPK = 55; vPK2 = 59
PKL = K_RING
def pack_setup(p):
    t = vT
    p(f"s_lshl_b32 s{sT+3}, s{sI}, 5"); p(f"s_add_u32 s{sT+3}, s{sT+3}, s{sH}")
    p(f"s_cmp_lt_u32 s{sT+3}, 192")
    p(f"s_cselect_b32 s60, s{kWO}, s{kWD}"); p(f"s_cselect_b32 s61, s{kWO+1}, s{kWD+1}")
    p(f"s_mov_b32 s{sT}, {6144*1280}"); p(f"s_cselect_b32 s62, s{sT}, {1536*1280}"); p("s_mov_b32 s63, 0x20000")
    p(f"s_cselect_b32 s{sT}, 0, 192"); p(f"s_sub_u32 s{sT}, s{sT+3}, s{sT}"); p(f"s_mul_i32 s{sT}, s{sT}, 40960")
    p(f"s_mul_i32 s{sPKm}, s{sW}, 10240"); p(f"s_add_u32 s{sPKs}, s{sT}, s{sPKm}"); p(f"s_add_u32 s{sPKm}, s{sPKm}, {PKL}")
    p(f"s_mul_i32 s{sPKd}, s{sW}, 480"); p(f"s_add_u32 s{sPKd}, s{sPKd}, s{sT+3}"); p(f"s_mul_i32 s{sPKd}, s{sPKd}, 5120")
    p(f"s_cmp_lt_u32 s{sT+3}, 240"); p(f"s_cselect_b32 s{sPKd}, s{sPKd}, 0x10000000")
    p(f"v_lshrrev_b32 v{t}, 3, v{vLANE}"); p(f"v_mul_u32_u24 v{t}, 1280, v{t}")
    p(f"v_bfe_u32 v{t+1}, v{vLANE}, 4, 2"); p(f"v_lshlrev_b32 v{t+1}, 1, v{t+1}"); p(f"v_and_b32 v{t+2}, 7, v{vLANE}"); p(f"v_xor_b32 v{t+1}, v{t+1}, v{t+2}")
    p(f"v_lshl_add_u32 v{vPKs}, v{t+1}, 4, v{t}")
    p(f"v_lshrrev_b32 v{t}, 5, v{vLANE}"); p(f"v_mul_u32_u24 v{t}, 10240, v{t}")
    p(f"v_bfe_u32 v{t+1}, v{vLANE}, 2, 3"); p(f"v_lshl_add_u32 v{t}, v{t+1}, 7, v{t}")
    p(f"v_and_b32 v{t+1}, 3, v{vLANE}"); p(f"v_lshl_add_u32 v{t}, v{t+1}, 3, v{t}")
    p(f"v_bfe_u32 v{t+1}, v{vLANE}, 3, 2")
    p(f"s_mul_i32 s{sT}, s{sW}, 10")
    for k in range(4):
        p(f"s_add_u32 s{sT+1}, s{sT}, {k}"); p(f"s_and_b32 s{sT+2}, s{sT+1}, 3"); p(f"s_lshr_b32 s{sT+1}, s{sT+1}, 2"); p(f"s_lshl_b32 s{sT+1}, s{sT+1}, 10"); p(f"s_add_u32 s{sT+1}, s{sT+1}, {PKL}")
        p(f"v_xor_b32 v{t+2}, s{sT+2}, v{t+1}"); p(f"v_lshl_add_u32 v{t+2}, v{t+2}, 5, v{t}"); p(f"v_add_u32 v{vPK+k}, s{sT+1}, v{t+2}")
    p(f"v_add_u32 v{vPK2}, {240*5120-1024}, v{vL16}")
def pack_dmas():
    return [([Ins(f"s_add_u32 m0, s{sPKm}, {1024*j - 128*j}")],
             Ins(f"buffer_load_dwordx4 v{vPKs}, s[60:63], s{sPKs} offen offset:{128*j} lds", tag=('pk', 0), slot=[('K', k) for k in range(4)], gen=(99, 0))) for j in range(10)]
def pack_reads(t):
    return [([], Ins(f"ds_read_b64_tr_b16 {vr(28+4*(t%4)+2*rd,2)}, v{vPK+(t&3)} offset:{(t>>2)*1024 + rd*20480}", slot=[('K', k) for k in range(4)], tag=('pr', t))) for rd in range(2)]
def pack_store(t):
    sc = [Ins(f"s_add_u32 s{sPKd}, s{sPKd}, 1024")] if t in (5, 9) else []
    v, o = (vL16, t*1024) if t < 4 else ((vL1K, 3072) if t == 4 else (vPK2, min(t-5, 3)*1024))
    return (sc, Ins(f"buffer_store_dwordx4 {vr(28+4*(t%4))}, v{v}, s[60:63], s{sPKd} offen offset:{o}{SC1}", tag=('H', 0)))
def has_m0(G, g): return any(isinstance(x, Ins) and ('s', 'm0') in x.wr for x in G.S[g % G.n])
def has_dma(G, g): return any(x.meta.get('dma') for x in G.N[g % G.n])
def fill(G, lst, g0, g1, step, cnt=999, strict=False):
    BARG = G.barg; g = g0
    while lst and g < g1 and cnt > 0:
        sc, m, po = lst[0]
        ok = G.cap[g] >= 1 and not (BARG-2 <= g <= BARG+1)
        if strict: ok = ok and not G.N[g] and (m.kind == 'ds' or G.cap[g] == 2)
        if m.meta.get('dma') and sc: ok = ok and not (has_m0(G, g-2) or has_m0(G, g-1) or has_m0(G, g) or has_dma(G, g-1) or has_dma(G, g))
        if ok:
            lst.pop(0); cnt -= 1
            for s_ in sc: G.sc(g-1, s_)
            G.N[g].append(m); G.cap[g] -= 1
            for s_ in po: G.sc(g+1, s_)
            g += step
        else: g += 1
def free_valu(G, g):
    while G.cap[g] < 1: g += 1
    return g
def free_sc(G, g, n=1):
    while not all(G.sc_free(g+k) for k in range(n)): g += 1
    return g

def side_work(p, nyoung):
    p(f"s_and_b32 s{sT}, s{sH}, 1"); p(f"s_cmp_eq_u32 s{sT}, 1"); p("s_cbranch_scc1 S_pk1")
    ln = Prog(); q = ln
    srd(q, 4, kWS, SZ_XN)
    q(f"v_lshlrev_b32 v67, 4, v64"); q(f"v_add_u32 v67, {SCR}, v67")
    q(f"s_lshl_b32 s{sT}, s{sW}, 2"); q(f"v_add_u32 v68, s{sT}, v67")
    q(f"s_waitcnt vmcnt({nyoung})")
    X = 80; U = 104
    for i in range(20):
        q(f"v_lshlrev_b32 v{U+2*i}, 16, v{X+i}"); q(f"v_and_b32 v{U+2*i+1}, 0xffff0000, v{X+i}")
    q(f"v_add_f32 v69, v{U}, v{U+1}"); q(f"v_add_f32 v70, v{U+2}, v{U+3}")
    for i in range(4, 40, 2):
        q(f"v_add_f32 v69, v69, v{U+i}"); q(f"v_add_f32 v70, v70, v{U+i+1}")
    q("v_add_f32 v69, v69, v70")
    xlane(q, "v_add_f32", 69, 70)
    q("ds_write_b32 v68, v69"); q("s_waitcnt lgkmcnt(0)"); q("s_barrier")
    q("ds_read_b128 v[72:75], v67"); q("s_waitcnt lgkmcnt(0)")
    q("v_add_f32 v72, v72, v73"); q("v_add_f32 v74, v74, v75"); q("v_add_f32 v72, v72, v74")
    q(f"v_mul_f32 v71, {f32(1/640)}, v72")
    q("v_mov_b32 v69, 0"); q("v_mov_b32 v70, 0")
    for i in range(0, 40, 2):
        q(f"v_sub_f32 v72, v{U+i}, v71"); q(f"v_sub_f32 v73, v{U+i+1}, v71")
        q("v_fmac_f32 v69, v72, v72"); q("v_fmac_f32 v70, v73, v73")
    q("v_add_f32 v69, v69, v70")
    xlane(q, "v_add_f32", 69, 70)
    q("ds_write_b32 v68, v69 offset:256"); q("s_waitcnt lgkmcnt(0)"); q("s_barrier")
    q("ds_read_b128 v[72:75], v67 offset:256"); q("s_waitcnt lgkmcnt(0)")
    q("v_add_f32 v72, v72, v73"); q("v_add_f32 v74, v74, v75"); q("v_add_f32 v72, v72, v74")
    q(f"v_mul_f32 v72, {f32(1/640)}, v72")
    q("v_cvt_pk_bf16_f32 v73, v71, v72")
    q("v_lshlrev_b32 v71, 16, v73"); q("v_and_b32 v72, 0xffff0000, v73")
    q(f"v_add_f32 v72, {f32(1e-5)}, v72")
    q("v_cvt_pk_bf16_f32 v72, v72, v72"); q("v_lshlrev_b32 v72, 16, v72")
    q("v_sqrt_f32 v72, v72"); q("s_nop 0")
    q("v_cvt_pk_bf16_f32 v72, v72, v72"); q("v_lshlrev_b32 v72, 16, v72")
    q("v_rcp_f32 v72, v72")
    q(f"s_lshr_b32 s{sT}, s{sT+5}, 2"); q(f"s_mul_i32 s{sT}, s{sT}, 81920")
    q(f"s_and_b32 s{sT+1}, s{sT+5}, 3"); q(f"s_lshl_b32 s{sT+1}, s{sT+1}, 10"); q(f"s_add_u32 s{sT}, s{sT}, s{sT+1}")
    q(f"s_mul_i32 s{sT+1}, s{sW}, 20480"); q(f"s_add_u32 s{sT}, s{sT}, s{sT+1}")
    for i in range(20):
        q(f"v_sub_f32 v73, v{U+2*i}, v71"); q(f"v_sub_f32 v74, v{U+2*i+1}, v71")
        q("v_cvt_pk_bf16_f32 v73, v73, v74")
        q("v_and_b32 v74, 0xffff0000, v73"); q("v_lshlrev_b32 v73, 16, v73")
        q("v_mul_f32 v73, v73, v72"); q("v_mul_f32 v74, v74, v72")
        q(f"v_cvt_pk_bf16_f32 v{X+i}, v73, v74")
        if i % 4 == 3:
            q(f"buffer_store_dwordx4 {vr(X+i-3)}, v{vL16}, s[4:7], s{sT} offen{SC1}"); q(f"s_add_u32 s{sT}, s{sT}, 4096")
    q(f"s_lshr_b32 s{sT+1}, s{sT+5}, 2"); q(f"s_lshl_b32 s{sT+1}, s{sT+1}, {OPT['lnsh']}"); q(f"s_and_b32 s{sT}, s{sT+5}, 3"); q(f"s_lshl_b32 s{sT}, s{sT}, 3"); q(f"s_add_u32 s{sT+1}, s{sT+1}, s{sT}"); q(f"s_add_u32 s{sT+1}, s{sT+1}, {FL_LN}")
    q("s_waitcnt vmcnt(0)"); q("s_barrier")
    q.add(signal(sT+1))
    stamp(q, 17)
    pk = Prog(); q = pk
    q("S_pk1:")
    if OPT['lnfirst']:
        for sc, m in a_wloads(0):
            q.add(sc); q("s_nop 0"); q.add(m)
    for it in range(2, OPT['td']):
        for sc, m in touch(it): q.add(sc); q.add(m)
    for sc, m in a_wloads(1):
        q.add(sc); q("s_nop 0"); q.add(m)
    q("S_c1:")
    return ln.items, pk.items

def kernel():
    p = Prog()
    p("s_cmp_ge_u32 s2, 256"); p("s_cbranch_scc1 K_end")
    p(f"s_load_dwordx16 s[72:87], s[0:1], 0"); p(f"s_load_dwordx8 s[88:95], s[0:1], 64")
    p("s_getpc_b64 s[96:97]"); p("K_pc:"); p("s_mov_b32 s98, K_codeend-K_pc"); p("s_mov_b32 s99, 0x20000")
    if OPT['ct0']:
        p(f"v_lshlrev_b32 v{vCT}, {OPT['ct0']+4}, v0"); p(f"buffer_load_dword v201, v{vCT}, s[96:99], 0 offen")
    p(f"v_lshrrev_b32 v1, 6, v0"); p(f"v_and_b32 v{vLANE}, 63, v0")
    p(f"v_readfirstlane_b32 s{sW}, v1")
    p(f"s_and_b32 s{sH}, s2, 7"); p(f"s_lshl_b32 s{sH}, s{sH}, 2"); p(f"s_bfe_u32 s{sT}, s2, 0x20003"); p(f"s_add_u32 s{sH}, s{sH}, s{sT}")
    p(f"s_lshr_b32 s{sI}, s2, 5")
    p(f"v_lshlrev_b32 v{vL16}, 4, v{vLANE}"); p(f"v_add_u32 v{vL1K}, 1024, v{vL16}")
    if OPT['stamp']: p(f"v_mov_b32 v{vSTAMP}, 0")
    p(f"s_lshr_b32 s{sT}, s2, 4"); p(f"s_lshl_b32 s{sT}, s{sT}, 2"); p(f"s_add_u32 s{sT}, s{sT}, s{sW}"); p(f"s_and_b32 s{sT}, s{sT}, 15"); p(f"s_lshl_b32 s{sT}, s{sT}, 13")
    p(f"v_lshlrev_b32 v{vCT}, 7, v{vLANE}"); p(f"v_add_u32 v{vCT}, s{sT}, v{vCT}")
    stamp(p, 0)
    p("s_waitcnt lgkmcnt(0)")
    side_issue(p)
    srd(p, sFL, kWS, SZ_FL, WS_FL)
    p(f"s_load_dwordx2 s[{sNON}:{sNON+1}], s[{sFL}:{sFL+1}], 0")
    t = vT
    p(f"v_lshrrev_b32 v{t}, 3, v2"); p(f"v_and_b32 v{t+1}, 7, v2"); p(f"v_bfe_u32 v{t+2}, v2, 4, 2")
    p(f"v_lshlrev_b32 v{t+3}, 1, v{t+2}"); p(f"v_xor_b32 v{t+3}, v{t+3}, v{t+1}"); p(f"v_lshlrev_b32 v{t+3}, 4, v{t+3}")
    p(f"v_lshrrev_b32 v{t+4}, 2, v{t}"); p(f"v_lshlrev_b32 v{t+4}, 3, v{t+4}")
    p(f"v_and_b32 v{t+5}, 3, v{t}"); p(f"v_add_u32 v{t+4}, v{t+4}, v{t+5}")
    p(f"s_lshr_b32 s{sT+2}, s{sW}, 1"); p(f"s_lshl_b32 s{sT+2}, s{sT+2}, 5")
    p(f"s_and_b32 s{sT+3}, s{sW}, 1"); p(f"s_lshl_b32 s{sT+3}, s{sT+3}, 2"); p(f"s_add_u32 s{sT+2}, s{sT+2}, s{sT+3}")
    p(f"v_add_u32 v{t+4}, s{sT+2}, v{t+4}")
    p(f"v_mul_u32_u24 v{t+4}, 12288, v{t+4}"); p(f"v_add_u32 v{vWQ}, v{t+4}, v{t+3}")
    p(f"s_lshl_b32 s{sT+2}, s{sW}, 3"); p(f"v_add_u32 v{t+4}, s{sT+2}, v{t}")
    p(f"v_mul_u32_u24 v{t+5}, 384, v{t+4}"); p(f"v_add_u32 v{vDV}, v{t+5}, v{t+3}")
    p(f"v_bfe_u32 v{t+6}, v{t+4}, 1, 3"); p(f"v_xor_b32 v{t+6}, v{t+6}, v{t+1}")
    p(f"v_lshl_add_u32 v{vDK}, v{t+6}, 4, v{t+5}")
    p(f"s_and_b32 s{sT+3}, s{sW}, 1"); p(f"s_lshl_b32 s{sT+3}, s{sT+3}, 5")
    p(f"s_and_b32 s{sT+4}, s{sH}, 1"); p(f"s_lshl_b32 s{sT+4}, s{sT+4}, 1")
    for j in range(3):
        p(f"v_add_u32 v{t+4}, {64*j}, v2")
        p(f"v_mul_u32_u24 v{t+5}, 171, v{t+4}"); p(f"v_lshrrev_b32 v{t+5}, 10, v{t+5}")
        p(f"v_mul_u32_u24 v{t+6}, 6, v{t+5}"); p(f"v_sub_u32 v{t+6}, v{t+4}, v{t+6}")
        p(f"v_add_u32 v{t+6}, s{sT+4}, v{t+6}"); p(f"v_subrev_u32 v{t+7}, 6, v{t+6}"); p(f"v_min_u32 v{t+6}, v{t+6}, v{t+7}")
        p(f"v_bfe_u32 v{t+7}, v{t+5}, 2, 2"); p(f"v_lshlrev_b32 v{t+7}, 3, v{t+7}")
        p(f"v_lshrrev_b32 v{t+8}, 4, v{t+5}"); p(f"v_lshl_add_u32 v{t+7}, v{t+8}, 2, v{t+7}")
        p(f"v_and_b32 v{t+8}, 3, v{t+5}"); p(f"v_add3_u32 v{t+7}, v{t+7}, v{t+8}, s{sT+3}")
        p(f"v_mul_u32_u24 v{t+7}, 3072, v{t+7}"); p(f"v_lshl_add_u32 v{vGU+j}, v{t+6}, 4, v{t+7}")
    p(f"s_lshl_b32 s{sWQm}, s{sW}, 11"); p(f"s_mul_i32 s{sGUm}, s{sW}, 3072")
    ny = 0
    if not OPT['lnfirst']:
        for sc, m in a_wloads(0):
            p.add(sc); p("s_nop 0"); p.add(m); ny += 1
    touch_setup(p)
    pack_setup(p)
    p(f"v_lshrrev_b32 v{t}, 2, v2"); p(f"v_and_b32 v{t+1}, 3, v2"); p(f"v_bfe_u32 v{t+2}, v2, 3, 2")
    p(f"v_lshlrev_b32 v{t+3}, 7, v{t}")
    p(f"v_lshlrev_b32 v{t+4}, 1, v{t+2}"); p(f"v_xor_b32 v{t+4}, v{t+4}, v{t+1}")
    p(f"v_lshl_add_u32 v{vAQ}, v{t+4}, 4, v{t+3}"); p(f"v_xor_b32 v{vAQ+1}, 64, v{vAQ}")
    p(f"v_mul_u32_u24 v{t+4}, 96, v{t}"); p(f"v_lshl_add_u32 v{vAQ+2}, v{t+1}, 3, v{t+4}")
    for s in (1, 2):
        for j in range(3): p(f"v_add_u32 v{vAQ+3*s+j}, {s*A_STAGE}, v{vAQ+j}")
    p(f"v_lshl_add_u32 v{t+4}, v{t+2}, 5, v{t+3}"); p(f"v_lshl_add_u32 v{t+4}, v{t+1}, 3, v{t+4}")
    p(f"v_add_u32 v{vV}, {V_RING}, v{t+4}")
    for u in range(1, 4): p(f"v_xor_b32 v{vV+u}, {32*u}, v{vV}")
    p(f"v_lshlrev_b32 v{vP4}, 3, v{t+1}")
    p(f"v_and_b32 v{t}, 15, v2"); p(f"v_lshrrev_b32 v{t+1}, 4, v2"); p(f"v_bfe_u32 v{t+2}, v2, 1, 3")
    p(f"v_xor_b32 v{t+1}, v{t+1}, v{t+2}"); p(f"v_lshlrev_b32 v{t}, 7, v{t}"); p(f"v_lshl_add_u32 v{t}, v{t+1}, 4, v{t}")
    p(f"v_add_u32 v{vK0}, {K_RING}, v{t}"); p(f"v_xor_b32 v{vK0+1}, 64, v{vK0}")
    p(f"v_and_b32 v{vP8}, 7, v2"); p(f"v_lshlrev_b32 v{vP8}, 3, v{vP8}")
    p(f"v_mov_b32 v{t}, 0x10000000"); p("v_cmp_eq_u32 vcc, 0, v0"); p("s_nop 1"); p(f"v_cndmask_b32 v{vSIG}, v{t}, v0, vcc")
    p(f"s_lshl_b32 s{sT+1}, s{sI}, 2"); p(f"s_add_u32 s{sT+1}, s{sT+1}, s{sW}")
    p(f"s_mul_i32 s{sT+2}, s{sT+1}, 81920"); srd(p, 20, kWS, 81920, f"s{sT+2}")
    p(f"s_mul_i32 s{sT+2}, s{sT+1}, {240*4096}"); p(f"s_add_u32 s{sT+2}, s{sT+2}, {WS_OF}"); srd(p, 24, kWS, 240*4096, f"s{sT+2}")
    p(f"s_lshl_b32 s{sT+4}, s{sT+1}, {OPT['lnsh']}"); p(f"s_add_u32 s{sT+4}, s{sT+4}, {FL_LN}")
    p(f"s_lshl_b32 s{sT+2}, s{sW}, 10")
    p(f"s_add_u32 s{sKb}, s{sT+2}, {K_RING}"); p(f"s_add_u32 s{sVb}, s{sT+2}, {V_RING}")
    p(f"s_mov_b32 s{sPass}, 0")
    p("s_waitcnt lgkmcnt(0)")
    p(f"s_add_u32 s{sNON}, s{sNON}, 0x7f4a7c15"); p(f"s_addc_u32 s{sNON+1}, s{sNON+1}, 0x9e3779b9")
    p(f"v_mov_b32 v{vNON}, s{sNON}"); p(f"v_mov_b32 v{vNON+1}, s{sNON+1}")
    stamp(p, 1)
    head = p.items
    ln, pk = side_work(p, ny)
    p = Prog()
    stamp(p, 2)
    poll(p, "A_pl", vP4, sT+4, slp=OPT["lslp"])
    stamp(p, 3)
    for it in range(2):
        for sc, m in a_xloads(it): p.add(sc); p.add(m)
    p(f"s_mul_i32 s{sT+2}, s{sH}, 786432")
    srd(p, 4, kK, 786432, f"s{sT+2}"); srd(p, 8, kV, 786432, f"s{sT+2}")
    p("s_barrier")
    LA = 4
    for f in range(LA): p.add(a_read(0, f))
    p.wait(vm=('A', 0), lgkm=('af', 1))
    stamp(p, 4)
    for it in range(10):
        st = it % 3; M = []
        seq = [(ks, nt, qt) for nt in range(18) for qt in range(4) for ks in range(2)] if OPT['pair'] else [(ks, nt, qt) for ks in range(2) for nt in range(18) for qt in range(4)]
        for ks, nt, qt in seq:
            rs = (it*36 + (2*nt+ks if OPT['pair'] else ks*18+nt)) % 8
            d = vr(QACC + (nt*4+qt)*4) if nt < 12 else ar(((nt-12)*4+qt)*4)
            c = "0" if (it == 0 and ks == 0) else d
            M.append(Ins(f"{MF} {d}, {ar(RING+4*rs)}, {ar(XB+32*st+(ks*4+qt)*4)}, {c}"))
        G = Gaps(M)
        BG = 4*(36-LA)
        for f in range(LA, 36):
            r = a_read(it, f); g = 4*(f-LA) - (2 if f >= 30 else 0)
            g = G.mem_from(g, r[0]); G.mem_from(g+1, r[1])
        if it < 9:
            G.sc(BG-1, Wait(vm=('A', it+1), lgkm='all')); G.sc(BG, Ins("s_barrier"))
            g = BG+1
            for f in range(LA):
                r = a_read(it+1, f)
                g = max(g, 4*((36+f-8)|1)+4)
                g = G.mem_from(g, r[0]); g = G.mem_from(g+1, r[1]) + 1
            G.sc(143, Wait(lgkm=('af', (it+1)*36+1)))
        for f in range(2, 36, 2):
            if 4*f-1 < BG-1 or it == 9: G.sc(4*f-1, Wait(lgkm=('af', it*36+f+1)))
        L = []
        if it+2 < 10: L = touch(it+OPT['td']) + a_wloads(it+2) + a_xloads(it+2)
        elif it == 8:
            for tl in range(4):
                for b, (mi, d) in enumerate(k_dma(tl, sKo)):
                    L.append((([Ins(f"s_mov_b32 s{sKo}, {tl*SLOT}")] if b == 0 else []) + [mi], d))
        else:
            G.valu(0, Ins(f"v_add_u32 v{vDV2}, {SLOT}, v{vDV}"))
            for b, (mi, d) in enumerate(u_dma(1, sVo) + u_dma(2, sVo)):
                d.meta['slot'] = [d.meta['slot'], ('A', 1), ('A', 2)]
                L.append((([Ins(f"s_mov_b32 s{sVo}, 0")] if b == 0 else []) + [mi], d))
        P0 = OPT['pk0']
        if it in (P0, P0+1): L = L + pack_dmas()[5*(it-P0):5*(it-P0)+5]
        g = 2
        for sc, m in L:
            while G.N[g] or not G.sc_free(g-1) or (len(sc) > 1 and not G.sc_free(g-2)): g += 1
            for k, s_ in enumerate(reversed(sc)): G.sc(g-1-k, s_)
            G.mem(g, m); g += 4
        assert g < BG
        if it == 4:
            G.S[BG-1][-1].vm = [G.S[BG-1][-1].vm, ('pk', 0)]
            q = Prog(); srd(q, 60, kWS, SZ_WP, WS_WP); g = free_sc(G, 100, 4)
            for k, x in enumerate(q.items): G.sc(g+k, x)
        if it in (5, 6, 7):
            ts = [(0, 1, 2, 3), (4, 5, 6), (7, 8, 9)][it-5]
            g = 3
            for t in ts:
                for sc, m in pack_reads(t): g = G.mem_from(g, m) + 4
            g = 79
            for t in ts:
                sc, m = pack_store(t)
                while G.N[g] or not G.sc_free(g-1): g += 1
                for s_ in sc: G.sc(g-1, s_)
                G.mem(g, m); g += 8
            assert g - 8 < BG - 2
        p.add(G.items())
    stamp(p, 5)
    c_setup(p)
    p(f"s_mov_b32 s{sT+4}, {f32(-LOG2E)}")
    p(f"s_lshr_b32 s{sT+2}, s{sH}, 1"); p(f"s_mul_i32 s{sT+2}, s{sT+2}, 3"); p(f"s_add_u32 s{sT+2}, s{sT+2}, 192"); p(f"s_lshl_b32 s{sT+2}, s{sT+2}, 12")
    p(f"s_and_b32 s{sT+3}, s{sH}, 1"); p(f"s_lshl_b32 s{sT}, s{sT+3}, 13"); p(f"s_add_u32 s{sT}, s{sT}, s{sT+2}")
    p(f"s_lshl_b32 s{sT+1}, s{sT+3}, 9"); p(f"s_add_u32 s{sT+1}, s{sT+1}, s{sT+2}"); p(f"s_add_u32 s{sT+1}, s{sT+1}, 4096")
    for qt in range(4):
        o = 52 if qt & 1 else 44
        for tt in range(3):
            b = vT
            for r in range(4): p(f"v_accvgpr_read_b32 v{b+r}, a{(tt*4+qt)*4+r}")
            for r in range(4): p(f"v_mul_f32 v{b+8+r}, s{sT+4}, v{b+r}")
            for r in range(4): p(f"v_exp_f32 v{b+8+r}, v{b+8+r}")
            for r in range(4): p(f"v_accvgpr_read_b32 v{b+4+r}, a{48+(tt*4+qt)*4+r}")
            for r in range(4): p(f"v_add_f32 v{b+8+r}, 1.0, v{b+8+r}")
            for r in range(4): p(f"v_rcp_f32 v{b+8+r}, v{b+8+r}")
            for r in range(0, 4, 2): p(f"v_pk_mul_f32 {vr(b+r,2)}, {vr(b+r,2)}, {vr(b+4+r,2)}")
            for r in range(0, 4, 2): p(f"v_pk_mul_f32 {vr(b+r,2)}, {vr(b+r,2)}, {vr(b+8+r,2)}")
            p(f"v_cvt_pk_bf16_f32 v{o+2*tt}, v{b}, v{b+1}"); p(f"v_cvt_pk_bf16_f32 v{o+2*tt+1}, v{b+2}, v{b+3}")
        p(f"buffer_store_dwordx4 {vr(o)}, v{vL16}, s[24:27], s{sT} offen offset:{qt*1024}{SC1}", tag=('H', 0))
        p(f"buffer_store_dwordx2 {vr(o+4,2)}, v{vL8}, s[24:27], s{sT+1} offen offset:{qt*1024}{SC1}", tag=('H', 0))
    p(f"s_mov_b32 s{sT+4}, {f32(QSCALE)}"); p(f"s_mov_b32 s{sT+5}, s{sT+4}")
    for ks in range(6):
        for qt in range(4):
            d = QF + (ks*4+qt)*4
            for e in range(2):
                s = QACC + ((2*ks+e)*4+qt)*4
                p(f"v_pk_mul_f32 {vr(s,2)}, {vr(s,2)}, s[{sT+4}:{sT+5}]")
                p(f"v_pk_mul_f32 {vr(s+2,2)}, {vr(s+2,2)}, s[{sT+4}:{sT+5}]")
                p(f"v_cvt_pk_bf16_f32 v{d+2*e}, v{s}, v{s+1}"); p(f"v_cvt_pk_bf16_f32 v{d+2*e+1}, v{s+2}, v{s+3}")
    for qt in range(4): p(f"v_mov_b32 v{MXI+qt}, 0xff800000")
    pa = p.items

    a = Prog()
    L2 = OPT.get('lst') == 2
    a("K_attn:")
    a(f"s_mov_b32 s{sKo}, {4*SLOT}"); a(f"s_mov_b32 s{sVo}, {2*SLOT}")
    a.wait(vm=[('K', 0), ('K', 1)]); a("s_barrier")
    stamp(a, 6)
    if L2: stamp(a, 1, True)
    for f in range(6): a.add(kfrag_read(f, 0))
    G = Gaps(qk_mfmas(-1, czero=True))
    a.wait(lgkm=('kf', 2)); G.sc(1, Wait(lgkm=('kf', 5)))
    for f in range(6, 12): G.mem(2*(f-6)+2, kfrag_read(f, 0))
    G.sc(23, Wait(lgkm=('kf', 11)))
    a.add(G.items())
    a("s_barrier")
    for g, m in sorted(PLAN['mem'].items()):
        kind, mp, f, rd, early = m
        if g > PLAN['bar'][1] and early:
            if kind == 'k': a.add(kfrag_read(f, 1))
            elif kind == 'dma':
                mi, d = k_dma(4, sKo)[f] if f < 3 else u_dma(3, sVo)[f-3]
                a.add(mi); a("s_nop 0"); a.add(d)
                if f == 2: a(f"s_add_u32 s{sKo}, s{sKo}, {SLOT}")
    for qt in range(4):
        s0 = SR + qt*4; s1 = SR + 16 + qt*4; m = vX + qt
        a(f"v_max3_f32 v{m}, v{s0}, v{s0+1}, v{MXI+qt}")
        a(f"v_max3_f32 v{m}, v{s0+2}, v{s0+3}, v{m}")
        a(f"v_max3_f32 v{m}, v{s1}, v{s1+1}, v{m}")
        a(f"v_max3_f32 v{m}, v{s1+2}, v{s1+3}, v{m}")
    xlane4(a, "v_max_f32", [vX+q for q in range(4)], vX+4)
    for qt in range(4):
        for r in range(4): a(f"v_sub_f32 v{MR+4*qt+r}, 0, v{vX+qt}")
        a(f"v_mov_b32 v{LR+qt}, 0")
        for kt in range(2):
            for r in range(0, 4, 2):
                s = SR + (kt*4+qt)*4 + r
                a(f"v_pk_add_f32 {vr(s,2)}, {vr(s,2)}, {vr(MR+4*qt,2)}")
    for (c, t_, kt, qt), g in sorted(zip(softmax_items(0), PLAN['vpos'][1]), key=lambda x: x[1]):
        if g < 112: a(t_)
    a.wait(lgkm=[('kf', 12+f) for f in range(OPT['kg'])])
    a("s_nop 1")
    if L2: stamp(a, 2, True)
    for i in range(4):
        G = attn_step(i, 0, pv=(i > 0), czero=(i in (1, 2)))
        if i == 2:
            G.S[G.barg-1][-1].vm.append(('H', 0))
            l = [[[], signal(sFH), []]]; fill(G, l, G.barg+2, G.n-1, 1); assert not l
        a.add(G.items())
        if L2: stamp(a, 3+i, True)
    body = []
    for i in range(4, 8):
        G = attn_step(i, 4)
        if i == 7:
            G.sc(free_sc(G, 30), Ins(f"s_sub_u32 s{sCnt}, s{sCnt}, 1"))
            G.sc(G.n-1, Ins(f"s_cmp_gt_i32 s{sCnt}, 0"))
        body += G.items()
    body.append(Ins("s_cbranch_scc1 K_loop"))
    a(f"s_mov_b32 s{sCnt}, 13")
    a(".p2align 6"); a("K_loop:")
    mid = [Ins(f"s_cmp_lt_i32 s{sCnt}, 0"), Ins("s_cbranch_scc1 K_lx")] + hpoll_loads("0", ('hp', 13)) + \
          [Ins(f"buffer_load_dword v0, v{vCT}, s[96:99], 0 offen"), Ins("s_branch K_loop"), Ins("K_lx:")]
    a.add(Loop("K_loop", 14, body, mid=(12, mid)))
    if L2: stamp(a, 7, True)
    def wl(ns, extra_slots):
        out = []
        for n in ns:
            l, po = c_wloads(n)
            for sc, m in l:
                m.meta['slot'] = [m.meta['slot']] + extra_slots
                out.append([list(sc), m, []])
            out[-1][2].append(po)
        return out
    def bl(ns):
        out = []
        for n in ns:
            l, po = c_bloads(n)
            for sc, m in l: out.append([list(sc), m, []])
            out[-1][2].append(po)
        return out
    w012 = wl(range(3), [('A', 0)]); w34 = wl([3], [('U', 61 % 4)]) + wl([4], [('K', 0), ('K', 1), ('K', 2)]); w5 = wl([5], [('K', 2), ('K', 3)])
    b0 = bl([0]); b12 = bl(range(1, OPT['nb']))
    a.wait(vm=('hp', 13)); hpoll(a, "C_ph"); a.add(c_fcursors())
    for i in range(60, 65):
        G = attn_step(i, 0, qk=(i < 63)); BARG = G.barg
        if i == 61: fill(G, w012, max(g for g in range(G.n) if has_dma(G, g))+3, G.n-1, OPT['esp']); w34 = w012 + w34
        if i == 62:
            fill(G, w34, 2, BARG-2, 4); w5 = w34 + w5
            fill(G, w5, BARG+2, G.n-1, 3)
        if i == 63:
            for k in range(16): G.mem(BARG+2+k+(k//2)//2, vfrag_read(k//2, k % 2, 64))
            l = w5 + b0 + b12; fill(G, l, 49, G.n-1, 4); rest = l
        if i == 64: fill(G, rest, 49, G.n-1, 4); assert not rest, len(rest)
        a.add(G.items())
        if L2: stamp(a, 8+i-60, True)
    stamp(a, 7)
    xlane4(a, "v_add_f32", [LR+q for q in range(4)], vX)
    a(f"s_mov_b32 s{sT}, 0x5d800000")
    a(f"v_cmp_nle_f32 s[{sT+2}:{sT+3}], v{LR}, s{sT}")
    for qt in range(1, 4):
        a(f"v_cmp_nle_f32 vcc, v{LR+qt}, s{sT}"); a(f"s_or_b64 s[{sT+2}:{sT+3}], s[{sT+2}:{sT+3}], vcc")
    a(f"s_or_b32 s{sT+2}, s{sT+2}, s{sT+3}")
    a(f"v_mov_b32 v{vX}, s{sT+2}"); a(f"s_lshl_b32 s{sT}, s{sW}, 2"); a(f"s_add_u32 s{sT}, s{sT}, {VOTE}"); a(f"v_mov_b32 v{vX+1}, s{sT}")
    a(f"ds_write_b32 v{vX+1}, v{vX}"); a(f"v_mov_b32 v{vX+1}, {VOTE}")
    a("s_waitcnt lgkmcnt(0)"); a("s_barrier")
    a(f"ds_read_b128 {vr(vX+4)}, v{vX+1}"); a("s_waitcnt lgkmcnt(0)")
    a(f"v_or_b32 v{vX+4}, v{vX+4}, v{vX+5}"); a(f"v_or3_b32 v{vX+4}, v{vX+4}, v{vX+6}, v{vX+7}"); a("s_nop 0")
    a(f"v_readfirstlane_b32 s{sT}, v{vX+4}")
    a(f"s_cmp_eq_u32 s{sT}, 0"); a("s_cbranch_scc1 K_epi")
    a(f"s_cmp_eq_u32 s{sPass}, 0"); a("s_cbranch_scc1 K_fb")

    e = Prog()
    e("K_epi:")
    if OPT.get('lst') == 2: stamp(e, 13, True)
    phase_c(e)
    if OPT['stamp']: e("s_waitcnt vmcnt(0)")
    stamp(e, 16); stamp_out(e)
    e("K_end:")
    e("s_endpgm")

    fb = Prog()
    fb("K_fb:")
    fb(f"s_mov_b32 s{sPass}, 1");  fb(f"s_mov_b32 s{sKo}, 0"); fb(f"s_mov_b32 s{sCnt}, 64")
    fb("s_waitcnt vmcnt(0)"); fb("s_barrier")
    fb("K_fbl:")
    fb.loop_begin("K_fbl", 2)
    for mi, d in k_dma(1000, sKo, 4):
        fb.add(mi); fb("s_nop 0"); fb.add(d)
    fb(f"s_add_u32 s{sKo}, s{sKo}, {SLOT}")
    fb("s_waitcnt vmcnt(0)"); fb("s_barrier")
    for f in range(12): fb.add(kfrag_read(f, 1000, 4))
    fb("s_waitcnt lgkmcnt(0)"); fb.add(qk_mfmas(999, czero=True))
    fb("s_nop 7")
    for qt in range(4):
        for kt in range(2):
            s0 = SR + (kt*4+qt)*4
            fb(f"v_max3_f32 v{MXI+qt}, v{s0}, v{s0+1}, v{MXI+qt}")
            fb(f"v_max3_f32 v{MXI+qt}, v{s0+2}, v{s0+3}, v{MXI+qt}")
    fb("s_barrier")
    fb(f"s_sub_u32 s{sCnt}, s{sCnt}, 1"); fb(f"s_cmp_lg_u32 s{sCnt}, 0"); fb("s_cbranch_scc1 K_fbl")
    fb.loop_end()
    for tl in range(4):
        fb(f"s_mov_b32 s{sKo}, {tl*SLOT}")
        for mi, d in k_dma(tl, sKo): fb.add(mi); fb("s_nop 0"); fb.add(d)
    fb(f"s_mov_b32 s{sVo}, 0")
    for mi, d in u_dma(1, sVo) + u_dma(2, sVo): fb.add(mi); fb("s_nop 0"); fb.add(d)
    fb("s_waitcnt vmcnt(0)")
    fb("s_branch K_attn")
    fb("K_codeend:")

    out = Prog(); out.items += head + ln + pk + pa + a.items + e.items + fb.items
    res = Prog(); res.items += skip_retry(head + ln + pk + pa + a.items + e.items); res.resolve()
    chk1 = Prog(); chk1.items += skip_retry(head + ln + pk + pa + a.items + fb.items + a.items + e.items)
    chk2 = Prog(); chk2.items += head + pk + pa[:400]
    return out, [chk1, chk2]

def skip_retry(items):
    out = []; skipping = None
    for k, x in enumerate(items):
        if isinstance(x, Ins):
            if x.text.startswith("s_branch") and x.text.endswith("_chk"):
                skipping = x.text.split()[1] + ":"
            elif skipping and x.text == skipping: skipping = None
            elif skipping: continue
        out.append(x)
    return out

HDR = open('recurrent_scan__mha_block_cached__swiglu_ffn__prompt.s.ref').read().split('; Override launch')[0]
def main():
    out = [HDR.rstrip(), "; @launch grid=(256,1,1) block=(256,1,1) lds=163840", '.amdgcn_target "amdgcn-amd-amdhsa--gfx950"', ".text"]
    prog, chks = kernel()
    ok = all([c.check("k") for c in chks])
    out += [f".globl {NAME}", ".p2align 8", f".type {NAME},@function", f"{NAME}:"] + prog.emit()
    out += ['.section .rodata,"a"', ".p2align 6", f".amdhsa_kernel {NAME}", "  .amdhsa_next_free_vgpr 512", "  .amdhsa_next_free_sgpr 102",
            "  .amdhsa_accum_offset 256", "  .amdhsa_group_segment_fixed_size 0", "  .amdhsa_kernarg_size 96",
            "  .amdhsa_user_sgpr_count 2", "  .amdhsa_user_sgpr_kernarg_segment_ptr 1", "  .amdhsa_system_sgpr_workgroup_id_x 1", ".end_amdhsa_kernel"]
    print("\n".join(out))
    if not ok: sys.stderr.write("CHECK FAILED\n"); sys.exit(1)
main()
```

```python
import sys, struct
from asmlib import *

OPT = dict(stamp=0, look=5, barg=80, slp=2, fpub=0, warm=1, sigst=4, early=1, td=4, pair=1, pf0=14, pfi=1, cdiv=2, wt=0, hord=0, pc=6, fc=24, cu=12, cst=12, fv=5, ncv=3, pubst=7, pubn=6, fsig=16, xst=26, ctouch=2, ct0=0, g0=27, span=88, dcap=0, bcap=1, lcap=1, dstep=7, noex=0, lnfirst=0, chain=6, nb=3, kg=3, vg=1, strict=0, pk0=1, bs=24, bl=28, lookg=20, vsp=4, phs=24, phl=40, lnsh=7, lslp=8, e0=60, esp=4)
for a in sys.argv[1:]:
    k, v = a.split('='); OPT[k] = int(v, 0)
NAME = "recurrent_scan__mha_block_cached__swiglu_ffn__prompt_kernel"

WS_XN = 0x0;        SZ_XN = 2048 * 640 * 2
WS_WP = 0x400000;   SZ_WP = 7680 * 640 * 2
WS_OF = 0x1000000;  SZ_OF = 2048 * 7680 * 2
XBW = 2560; WS_XB = 0x3000000;  SZ_XB = 64*4*3*2*4*XBW
WS_FL = 0x5000000;  SZ_FL = 32768
FL_LN = 24576; FL_H = 2048; FL_O = 4096; FL_X = 8192; FL_F = 16384
def f32(x): return "0x%08x" % struct.unpack('<I', struct.pack('<f', x))[0]
MF = "v_mfma_f32_16x16x32_bf16"
SC1 = " sc1"
def vr(b, n=4): return f"v[{b}:{b+n-1}]"
def ar(b, n=4): return f"a[{b}:{b+n-1}]"
LOG2E = 1.4426950408889634
QSCALE = LOG2E / (192 ** 0.5)

sW = 28; sH = 29; sKb = 30; sVb = 31; sKo = 32; sVo = 33; sCnt = 34; sPass = 35; sWQm = 36; sGUm = 37; sI = 38; cC = 39; sT = 40
cWo = 50; cBo = 51; cM = 52; cXO = 53; cXB = 54; cTile = 55; sFL = 56; sNON = 66; cW1 = 68; sFO = 46; sFH = 47; sFX = 48; sVOTE = 49; sX10 = 3; sOb = 36; sHS = 78
kX = 72; kK = 74; kV = 76; kWQ = 78; kWO = 80; kWG = 84; kWU = 86; kWD = 88; kOUT = 90; kWS = 94
vL1K = 1; vLANE = 2; vL16 = 3; vK0 = 4; vV = 6; vDK = 10; vDV = 11
vWQ = 12; vGU = 13; vAQ = 16
cvA = 12; cvB = 15; cvH = 20; vL8 = 22
vSIG = 25; vNON = 26; vP4 = 60; vP8 = 61; vSTAMP = 62; vCT = 63
vT = 28; vPOLL = 248; vX = 248; vDV2 = 23
QACC = 64; QF = 64; SR = 160; PR = 192; MR = 224; LR = 240; MXI = 244
XB = 96; RING = 192
A_STAGE = 36864
K_RING = 114688; V_RING = 65536; SLOT = 12288
VOTE = 114688 + 4096

def srd(p, d, lo, size, add=None):
    if add is None: p(f"s_mov_b32 s{d}, s{lo}"); p(f"s_mov_b32 s{d+1}, s{lo+1}")
    else: p(f"s_add_u32 s{d}, s{lo}, {add}"); p(f"s_addc_u32 s{d+1}, s{lo+1}, 0")
    if size is not None: p(f"s_mov_b32 s{d+2}, {size}")
    p(f"s_mov_b32 s{d+3}, 0x20000")

def xlane(p, op, a, t):
    p(f"v_mov_b32 v{t}, v{a}"); p("s_nop 1")
    p(f"v_permlane32_swap_b32 v{a}, v{t}"); p("s_nop 1")
    p(f"{op} v{a}, v{a}, v{t}")
    p(f"v_mov_b32 v{t}, v{a}"); p("s_nop 1")
    p(f"v_permlane16_swap_b32 v{a}, v{t}"); p("s_nop 1")
    p(f"{op} v{a}, v{a}, v{t}")
def xlane4(p, op, regs, t):
    for sw in ("v_permlane32_swap_b32", "v_permlane16_swap_b32"):
        for i, a in enumerate(regs): p(f"v_mov_b32 v{t+i}, v{a}")
        p("s_nop 0")
        for i, a in enumerate(regs): p(f"{sw} v{a}, v{t+i}")
        for i, a in enumerate(regs): p(f"{op} v{a}, v{a}, v{t+i}")

NST = [0]
def stamp(p, idx, alt=False):
    if OPT.get('lst') in (2, 3) and not alt and idx not in (0,): return
    if OPT['stamp']:
        p("s_memtime s[64:65]" if OPT.get("clk") else "s_memrealtime s[64:65]"); p("s_waitcnt lgkmcnt(0)")
        p(f"v_writelane_b32 v{vSTAMP}, s64, {idx}")
def stamp_out(p):
    if not OPT['stamp']: return
    if OPT['stamp'] == 2:
        p(f"s_cmp_lg_u32 s2, {OPT.get('dwg', 1)}"); p("s_cbranch_scc1 K_so")
        p(f"s_cmp_lg_u32 s{sW}, 0"); p("s_cbranch_scc1 K_so")
        p("s_mov_b32 s4, s92"); p("s_mov_b32 s5, s93"); p("s_mov_b32 s6, 128"); p("s_mov_b32 s7, 0x20000")
        p(f"v_readlane_b32 s64, v{vSTAMP}, 0"); p(f"v_lshlrev_b32 v4, 2, v{vLANE}"); p("v_subrev_u32 v4, 4, v4"); p("s_nop 1")
        p(f"v_subrev_u32 v5, s64, v{vSTAMP}")
        p(f"buffer_store_dword v5, v4, s[4:7], 0 offen"); p("s_waitcnt vmcnt(0)")
        p("K_so:")
        return
    p("s_cmp_ge_u32 s2, 64"); p("s_cbranch_scc1 K_so")
    p(f"s_cmp_lg_u32 s{sW}, 0"); p("s_cbranch_scc1 K_so")
    p(f"s_add_u32 s4, s{kWS}, {0xF000000}"); p(f"s_addc_u32 s5, s{kWS+1}, 0"); p("s_mov_b32 s6, 8192"); p("s_mov_b32 s7, 0x20000")
    p("s_lshl_b32 s64, s2, 7"); p(f"v_lshlrev_b32 v4, 2, v{vLANE}"); p("s_mov_b64 exec, 0xffffffff")
    p(f"buffer_store_dword v{vSTAMP}, v4, s[4:7], s64 offen"); p("s_waitcnt vmcnt(0)")
    p("K_so:")

def signal(soff): return Ins(f"buffer_store_dwordx2 {vr(vNON,2)}, v{vSIG}, s[{sFL}:{sFL+3}], s{soff} offen{SC1}")
def poll_load(voff, soff): return Ins(f"buffer_load_dwordx2 {vr(vPOLL,2)}, v{voff}, s[{sFL}:{sFL+3}], s{soff} offen{SC1}", tag=('pl', 0))
def poll(p, lab, voff, soff, pre=False, slp=None):
    p(f"s_mov_b32 s{sT+2}, 0")
    if pre: p(f"s_branch {lab}_chk")
    p(f"{lab}:")
    p.add(poll_load(voff, soff)); p("s_waitcnt vmcnt(0)")
    p(f"{lab}_chk:")
    p(f"v_cmp_ne_u64 vcc, {vr(vNON,2)}, {vr(vPOLL,2)}"); p("s_nop 4")
    p(f"s_cbranch_vccz {lab}_ok")
    p(f"s_sleep {OPT['slp'] if slp is None else slp}")
    p(f"s_add_u32 s{sT+2}, s{sT+2}, 1"); p(f"s_cmp_lt_u32 s{sT+2}, 0x40000"); p(f"s_cbranch_scc1 {lab}")
    p(f"{lab}_ok:")
def hpoll_loads(so="0", tag=('hp', 99)):
    return [Ins(f"buffer_load_dwordx4 {vr(vPOLL+4*j)}, v{vL16}, s[{sFL}:{sFL+3}], {so} offen offset:{FL_H+1024*j}{SC1}", tag=tag) for j in range(2)]
def hpoll(p, lab):
    p(f"s_mov_b32 s{sT+2}, 0"); p(f"s_branch {lab}_chk")
    p(f"{lab}:")
    p.add(hpoll_loads()); p("s_waitcnt vmcnt(0)")
    p(f"{lab}_chk:")
    p(f"v_cmp_ne_u64 s[{sT}:{sT+1}], {vr(vNON,2)}, {vr(vPOLL,2)}")
    for j in range(1, 4):
        p(f"v_cmp_ne_u64 vcc, {vr(vNON,2)}, {vr(vPOLL+2*j,2)}"); p(f"s_or_b64 s[{sT}:{sT+1}], s[{sT}:{sT+1}], vcc")
    p(f"s_cbranch_scc0 {lab}_ok")
    p(f"s_sleep 8")
    p(f"s_add_u32 s{sT+2}, s{sT+2}, 1"); p(f"s_cmp_lt_u32 s{sT+2}, 0x40000"); p(f"s_cbranch_scc1 {lab}")
    p(f"{lab}_ok:")

PB = [192, 208, 28, 44]
NR = 16
def slen(i): return 112 if i & 1 else 80
def fbase(i): return 4 if i == 64 else (20 if i & 1 else 0)
def k_dma(tile, soff, stride=0):
    slot = tile % 4
    return [(Ins(f"s_add_u32 m0, s{sKb}, {slot*SLOT + blk*4096 - blk*128}"),
             Ins(f"buffer_load_dwordx4 v{vDK}, s[4:7], s{soff} offen offset:{blk*128} lds", tag=('K', tile, stride), slot=('K', slot), gen=(tile, stride))) for blk in range(3)]
def u_dma(e, soff, stride=0):
    j = (e-1) >> 1; ps = j & 1; blks = (0, 1) if e & 1 else (2,)
    return [(Ins(f"s_add_u32 m0, s{sVb}, {ps*24576 + blk*8192 + hf*4096 - blk*128}"),
             Ins(f"buffer_load_dwordx4 v{vDV2 if hf else vDV}, s[8:11], s{soff} offen offset:{blk*128} lds", tag=('U', e, stride), slot=('U', e % 4), gen=(e, stride)))
            for blk in blks for hf in range(2)]
def kfrag_read(f, tile, stride=0):
    kt, ks = divmod(f, 6); slot = tile % 4; rs = (fbase(tile-1) + f) % NR
    return Ins(f"ds_read_b128 {ar(RING+4*rs)}, v{vK0 + (ks&1)} offset:{slot*SLOT + (ks>>1)*4096 + kt*2048}",
               tag=('kf', tile*12+f, stride*12), slot=('K', slot), gen=(tile, stride))
def vfrag_read(f, rd, e, stride=0):
    j = (e-1) >> 1; ps = j & 1; dt = (0 if e & 1 else 8) + (f >> 1); hf = f & 1; rs = (fbase(e) + 12 + f) % NR
    return Ins(f"ds_read_b64_tr_b16 {ar(RING+4*rs+2*rd,2)}, v{vV + (dt&3)} offset:{ps*24576 + (dt>>2)*8192 + hf*4096 + rd*2048}",
               tag=('vf', e*16+f, stride*16), slot=('U', e % 4), gen=(e, stride))
def qk_seq():
    ch = OPT['chain']; seq = []
    for kt in range(2):
        for k0 in range(0, 6, ch):
            for qt in range(4):
                r = list(range(k0, k0+ch))
                if qt & 1: r.reverse()
                seq += [(kt, ks, qt) for ks in r]
    return seq
def qk_mfmas(step, czero=False):
    M = []; seen = set()
    for kt, ks, qt in qk_seq():
        s = SR + (kt*4+qt)*4
        c = vr(s) if (kt, qt) in seen else ("0" if czero else vr(MR+4*qt)); seen.add((kt, qt))
        M.append(Ins(f"{MF} {vr(s)}, {ar(RING+4*((fbase(step)+kt*6+ks)%NR))}, {vr(QF+(ks*4+qt)*4)}, {c}"))
    return M
def pv_mfmas(e, czero=False):
    M = []; j = (e-1) >> 1; d0, nd = (0, 8) if e & 1 else (8, 4)
    for dl in range(nd):
        for qt in range(4):
            o = ((d0+dl)*4+qt)*4
            for k, hf in enumerate((0, 1) if qt % 2 == 0 else (1, 0)):
                M.append(Ins(f"{MF} {ar(o)}, {ar(RING+4*((fbase(e)+12+2*dl+hf)%NR))}, {vr(PB[(2*j+hf)%4]+4*qt)}, {'0' if (czero and k == 0) else ar(o)}"))
    return M
def softmax_items(t):
    pb = PB[t % 4]; it = []
    seq = [(kt, qt, r) for kt in range(2) for qt in range(4) for r in range(4)]
    def reg(e): return SR + (e[0]*4+e[1])*4 + e[2]
    def post(e):
        o = [(1, f"v_add_f32 v{LR+e[1]}, v{LR+e[1]}, v{reg(e)}", e[0], e[1])]
        if e[2] & 1: o.append((1, f"v_cvt_pk_bf16_f32 v{pb+4*e[1]+2*e[0]+(e[2]>>1)}, v{reg(e)-1}, v{reg(e)}", e[0], e[1]))
        return o
    for i, e in enumerate(seq):
        it.append((2, f"v_exp_f32 v{reg(e)}, v{reg(e)}", e[0], e[1]))
        if i >= 2: it += post(seq[i-2])
    it += post(seq[-2]) + post(seq[-1])
    return it
def plan_macro():
    N = 192; st0 = [0, 80]; bar = [80 - OPT['bs'], 192 - OPT['bl']]
    qs = qk_seq()
    kfirst = {}; klast = {}; sfirst = {}; slast = {}
    for g, (kt, ks, qt) in enumerate(qs):
        kfirst.setdefault(kt*6+ks, g); klast[kt*6+ks] = g; sfirst.setdefault((kt, qt), g); slast[(kt, qt)] = g
    fr = []
    for par in range(2):
        for f in range(12): fr.append((par, 'k', f, st0[par]+kfirst[f], st0[par]+klast[f]))
        for f in range(16 if par else 8): fr.append((par, 'v', f, st0[par]+48+8*(f >> 1), st0[par]+48+8*(f >> 1)+7))
    mem = {}; pos = {}
    g = bar[1] - N
    for ph, (par, kind, f, first, last) in enumerate(fr):
        prev = fr[(ph - NR) % 48]; pl = prev[4] - (N if ph < NR else 0)
        lo = pl + 1
        if kind == 'k': lo = max(lo, (bar[1]-N if par == 0 else bar[0]) + 1)
        tgt = first - OPT['lookg']
        if kind == 'v':
            nleft = (16 if par else 8) - f
            tgt = min(tgt, bar[par] - 7 - OPT['vsp']*nleft)
        for rd in range(1 if kind == 'k' else 2):
            g = max(g+1, lo, tgt)
            while (g % N) in mem or (g % N) in bar: g += 1
            mem[g % N] = (kind, par, f, rd, g < st0[par]); pos[(par, kind, f)] = g
            assert g <= first - 6, (par, kind, f, g, first)
            if kind == 'v': assert g < bar[par] - 5, (par, f, g)
            if kind == 'k': g += 1
    for ep in range(2):
        n = 7 if ep == 0 else 5
        g = (bar[1] - N if ep == 0 else bar[0]) + 3
        for k in range(n):
            while (g % N) in mem or ((g-1) % N) in bar or (g % N) in bar or ((g+1) % N) in bar or (g % N) in (0, 80): g += 1
            mem[g % N] = ('dma', ep, k, 0, g < st0[ep]); g += OPT['dstep']
        assert g - OPT['dstep'] < bar[ep] - 2
    cap = [2 - (1 if i in mem else 0) for i in range(N)]
    for g_, m_ in mem.items():
        if m_[0] == 'dma' and OPT['dcap'] <= 0: cap[g_] = 0
        if m_[0] == 'dma' and OPT['dcap'] == -1: cap[(g_+1) % N] = min(cap[(g_+1) % N], 1)
    if OPT['bcap'] == 0:
        for b_ in bar: cap[b_] = 0
    vpos = []
    items = softmax_items(0); tot = sum(x[0] for x in items)
    phi = [OPT['phs'], 80 + OPT['phl']]; span = [phi[1]-phi[0]-2, phi[0]+N-phi[1]-2]
    g = phi[0]
    for par in range(2):
        p_ = [None]*len(items); acc = 0; pend = list(range(len(items))); n = slen(par)
        while pend:
            g = max(g, phi[par] + int(acc*span[par]/tot)); placed = False
            for j in range(min(2, len(pend))):
                c, t, kt, qt = items[pend[j]]
                if j > 0 and not (c == 1 and items[pend[0]][0] == 2): continue
                if c <= cap[g % N] and g >= st0[par] + slast[(kt, qt)] + 7:
                    p_[pend[j]] = g - st0[par]; cap[g % N] -= c; acc += c; pend.pop(j); placed = True
                    assert g - st0[par] < n + sfirst[(kt, qt)] - 1, (par, g, t)
                    if par == 0: assert g < 80 + 46
                    break
            if not placed: g += 1
        vpos.append(p_)
    return dict(mem=mem, vpos=vpos, bar=bar, kfirst=kfirst, pos=pos)
PLAN = plan_macro()

def attn_step(i, stride, qk=True, pv=True, czero=False):
    par = i & 1; n = slen(i); s0 = 80*par; BARG = PLAN['bar'][par] - s0
    ex = lambda t, mx: stride != 0 or t <= mx
    M = (qk_mfmas(i) if qk else [None]*48) + (pv_mfmas(i, czero) if pv else [None]*(n-48))
    G = Gaps(M); G.barg = BARG
    for gg, m in sorted(PLAN['mem'].items()):
        g = gg - s0
        if not 0 <= g < n: continue
        kind, mp, f, rd, early = m
        step = i+1 if early else i
        if kind == 'v':
            if step >= 1 and ex(step, 63): G.mem(g, vfrag_read(f, rd, step, stride))
        elif kind == 'k':
            if ex(step+1, 63): G.mem(g, kfrag_read(f, step+1, stride))
        else:
            if f < 3:
                if not ex(step+4, 63): continue
                mi, d = k_dma(step+4, sKo, stride)[f]; post = f"s_add_u32 s{sKo}, s{sKo}, {SLOT}" if f == 2 else None
            else:
                if not ex(step+3, 64): continue
                l = u_dma(step+3, sVo, stride); mi, d = l[f-3]; post = f"s_add_u32 s{sVo}, s{sVo}, {2*SLOT}" if (f-3 == len(l)-1 and (step+3) % 2 == 0) else None
            G.sc(g-1, mi); G.mem(g, d)
            if post: G.sc(g+1, Ins(post))
    kf = PLAN['kfirst']
    KG = OPT['kg']
    for f0 in range(0, 12, KG):
        fs = range(f0, f0+KG); g = min(kf[f] for f in fs) - 1
        if g < 0:
            if ex(i+2, 63): G.sc(n-1, Wait(lgkm=[('kf', (i+2)*12+f, stride*12) for f in fs]))
        elif qk: G.sc(g, Wait(lgkm=[('kf', (i+1)*12+f, stride*12) for f in fs]))
    if pv:
        VG = OPT['vg']
        for dl in range(0, 8 if par else 4, VG):
            g = 48 + 8*dl - 1
            if g < BARG-1: G.sc(g, Wait(lgkm=[('vf', i*16+2*(dl+VG)-1, stride*16)]))
    need = []
    if ex(i+2, 63): need.append(('K', i+2, stride))
    if ex(i+1, 64): need.append(('U', i+1, stride))
    if need: G.sc(BARG-1, Wait(vm=need, lgkm='all')); G.sc(BARG, Ins("s_barrier"))
    else: G.sc(BARG-1, Wait(lgkm='all'))
    if ex(i, 63):
        pn = slen(i-1)
        for (c, t, kt, qt), g in zip(softmax_items(i), PLAN['vpos'][1-par]):
            if g >= pn: G.valu(g-pn, Ins(t), c)
    if qk:
        for (c, t, kt, qt), g in zip(softmax_items(i+1), PLAN['vpos'][par]):
            if g < n: G.valu(g, Ins(t), c)
    return G

C_STAGE = 20480; C_NS = 8; C_LA = 6; C_D = 6
cS = 0; cF = 80; cRING = 160
CB = [('v', 224), ('v', 192), ('v', 208), ('v', 160), ('v', 176), ('v', 44), ('a', 224), ('a', 240)]
CA = [0, 1, 2, 3, 6, 7, 4, 5]
def cb(n, o):
    if 6 <= n < 9:
        ks, qs = divmod(o//4, 2); return vr(64 + 4*(4*(2*(n-6)+ks) + qs))
    c, b = CB[n % C_NS]
    return f"{c}[{b+o}:{b+o+3}]"
def c_wloads(n, stride=0):
    sl = n % C_NS; out = []
    for j in range(5):
        if j in (0, 4): w = Ins(f"s_add_u32 m0, s{cM}, {CA[sl]*C_STAGE + (1024 if j == 4 else 0)}")
        out.append(([w] if j in (0, 4) else [], Ins(f"buffer_load_dwordx4 v{vL16 if j < 4 else vL1K}, s[12:15], s{cWo} offen offset:{min(j,3)*1024}{SC1} lds",
                            tag=('cw', n, stride), slot=('C', sl), gen=(n, stride), m0reuse=True, m0w=w)))
    po = [Ins(f"s_add_u32 s{cWo}, s{cWo}, 10240")]
    if n >= 6 and n % 3 == 2: po = [Ins(f"s_mul_i32 s{cWo}, s{sHS+(n-8)//3}, {6*5120}"), Ins(f"s_add_u32 s{cWo}, s{cWo}, s{cW1}")]
    return out, po
def cb2(n, o):
    c, b = CB[n % C_NS]
    return f"{c}[{b+o}:{b+o+1}]"
def c_bloads(n, stride=0):
    out = []
    for ks in range(2):
        for qs in range(2):
            if n < 6 and (2*n+ks) % 3 == 1:
                for hf in range(2):
                    sc = [Ins(f"s_add_u32 s{sT+5}, s{cBo}, {4096*ks}")] if (qs == 0 and hf == 0) else []
                    out.append((sc, Ins(f"buffer_load_dwordx2 {cb2(n,(ks*2+qs)*4+2*hf)}, v{cvH+qs}, s[24:27], s{sT+5} offen offset:{512*hf}{SC1}", tag=('cb', n, stride))))
            else:
                out.append(([], Ins(f"buffer_load_dwordx4 {cb(n,(ks*2+qs)*4)}, v{cvB+2*ks+qs}, s[24:27], s{cBo} offen{SC1}", tag=('cb', n, stride))))
    po = [Ins(f"s_add_u32 s{cBo}, s{cBo}, 8192")]
    if n >= 6 and n % 3 == 2: po = [Ins(f"s_mul_i32 s{cBo}, s{sHS+(n-8)//3}, {6*4096}")]
    return out, po
def c_aread(n, f, stride=0):
    sl = n % C_NS; ks, t = ((f & 1, f >> 1) if OPT['pair'] else divmod(f, 10)); sh, tt = divmod(t, 5)
    return Ins(f"ds_read_b128 {ar(cRING+4*(f%10))}, v{cvA + CA[sl]//3} offset:{(CA[sl]%3)*C_STAGE + sh*10240 + ks*5120 + tt*1024}",
               tag=('caf', n*20+f, stride*20), slot=('C', sl), gen=(n, stride))
def c_stage(n, acc, L, VQ, czero=False, nxt=True, wtags=(), after=(), cap=50):
    M = []
    for t in range(10):
        for qs in range(2):
            for k, ks in enumerate((0, 1) if qs == 0 else (1, 0)):
                d = ar(acc + (t*2+qs)*4)
                M.append(Ins(f"{MF} {d}, {ar(cRING+4*((2*t+ks)%10))}, {cb(n,(ks*2+qs)*4)}, {'0' if (czero and k==0) else d}"))
    G = Gaps(M)
    BG = 2*(20-C_LA) - 1
    for f in range(C_LA, 20): G.mem(2*(f-C_LA), c_aread(n, f))
    if nxt:
        for f in range(C_LA): G.mem(2*(20+f-C_LA), c_aread(n+1, f))
        G.sc(BG-1, Wait(vm=[('cw', n+1)] + list(wtags), cap=cap)); G.sc(BG, Ins("s_barrier"))
        G.sc(39, Wait(vm=[('cb', n+1)], cap=cap))
    for f in range(2, 20, 2):
        G.sc(2*f-2 if 2*f-1 != BG else 2*f-3, Wait(lgkm=('caf', n*20+f+1)))
    if nxt: G.sc(38, Wait(lgkm=('caf', (n+1)*20+1)))
    for m in after: G.mem(BG+2, m)
    nm = sum(1 for sc, m in L if m is not None)
    free = [g for g in range(1, 38, 2) if not G.N[g] and g != BG]
    assert nm <= len(free), nm
    slots = [free[min(len(free)-1, int((k+0.5)*len(free)/max(nm,1)))] for k in range(nm)] + [39]
    k = 0; lo = 0
    for sc, m in L:
        g = max(slots[k] - 1, lo); pos = []
        for s_ in reversed(sc):
            while g > lo and not G.sc_free(g): g -= 1
            pos.append((g, s_))
            if g > lo: g -= 1
        for g_, s_ in reversed(pos): G.sc(g_, s_)
        if pos: lo = max(lo, max(x[0] for x in pos))
        if m is not None:
            G.mem(slots[k], m); lo = min(slots[k] + 1, 39); k += 1
    for g in range(40):
        while VQ and G.cap[g] >= VQ[0][0]:
            c, t = VQ.pop(0); G.valu(g, Ins(t), c)
            if c == 2: break
    return G
def o_store(j, qt, reg):
    return ([Ins(f"s_xor_b32 s{sT+3}, s{sOb}, {qt*1024}")] + ([Ins(f"s_add_u32 s{sT+3}, s{sT+3}, {j*4096}")] if j else []),
            Ins(f"buffer_store_dwordx4 {vr(reg)}, v{vL16}, s[24:27], s{sT+3} offen{SC1}", tag=('O', 0)))
EARLY = [(0, 2), (0, 3), (1, 2), (1, 3), (2, 2), (2, 3)]
def pmap(dst):
    if dst == 'alt': return lambda sg, k: (72 + 16*sg + k) if k < 8 else (120 + 16*sg + k - 8)
    return lambda sg, k: dst + 12*sg + k
def c_cvt(p, acc, dst, tmp):
    rm = pmap(dst)
    for sg in range(1, 4):
        qs, sh = sg & 1, sg >> 1
        for tt in range(5):
            t = tmp + 4*(tt & 1)
            for r in range(4): p(f"v_accvgpr_read_b32 v{t+r}, a{acc+((sh*5+tt)*2+qs)*4+r}")
            d = rm(sg-1, 2*tt)
            p(f"v_cvt_pk_bf16_f32 v{d}, v{t}, v{t+1}"); p(f"v_cvt_pk_bf16_f32 v{d+1}, v{t+2}, v{t+3}")
def xb_ops(op, dst, sg, soff, tag):
    rm = pmap(dst)
    return [Ins(f"buffer_{op}_dwordx4 {vr(rm(sg,0))}, v{vL16}, s[20:23], s{soff} offen{SC1}", tag=tag),
            Ins(f"buffer_{op}_dwordx4 {vr(rm(sg,4))}, v{vL16}, s[20:23], s{soff} offen offset:1024{SC1}", tag=tag),
            Ins(f"buffer_{op}_dwordx2 {vr(rm(sg,8),2)}, v{vL8}, s[20:23], s{soff} offen offset:2048{SC1}", tag=tag)]
def c_pub(src, kind):
    out = []
    for sg in range(1, 4):
        sc = [f"s_xor_b32 s{sT}, s{cC}, {sg}", f"s_mul_i32 s{sT}, s{sT}, {3*2*4*XBW}", f"s_add_u32 s{sT}, s{sT}, s{cXB}", f"s_add_u32 s{sT}, s{sT}, {((sg-1)*2+kind)*4*XBW}"]
        for k, m in enumerate(xb_ops('store', src, sg-1, sT, ('pub', kind))):
            out.append(([Ins(x) for x in sc] if k == 0 else [], m))
    return out
def c_get(p, dst, kind, extra=None):
    p(f"s_mul_i32 s{sT}, s{cC}, {3*2*4*XBW}"); p(f"s_add_u32 s{sT}, s{sT}, s{cXB}")
    if kind: p(f"s_add_u32 s{sT}, s{sT}, {4*XBW}")
    if extra: p(f"s_add_u32 s{sT}, s{sT}, s{extra}")
    for sg in range(3):
        p.add(xb_ops('load', dst, sg, sT, ('get', kind)))
        if sg < 2: p(f"s_add_u32 s{sT}, s{sT}, {2*4*XBW}")
def c_sum(p, R, src, tmp):
    for sg in range(3):
        for i in range(10):
            t = tmp + 2*(i & 1); q = src + 12*sg + i
            p(f"v_lshlrev_b32 v{t}, 16, v{q}"); p(f"v_and_b32 v{t+1}, 0xffff0000, v{q}")
            p(f"v_pk_add_f32 {vr(R+2*i,2)}, {vr(R+2*i,2)}, {vr(t,2)}")
def c_setup(p):
    p(f"s_lshr_b32 s{cC}, s{sH}, 3")
    p(f"v_mov_b32 v{cvA}, v{vL16}"); p(f"v_add_u32 v{cvA+1}, {3*C_STAGE}, v{vL16}"); p(f"v_add_u32 v{cvA+2}, {6*C_STAGE}, v{vL16}")
    p(f"s_and_b32 s{sT}, s{sW}, 1"); p(f"s_mul_i32 s{cW1}, s{sT}, 5120")
    p(f"s_lshr_b32 s{sT+4}, s{sX10}, 10")
    p(f"v_add_u32 v{cvB}, s{sX10}, v{vL16}"); p(f"v_xor_b32 v{cvB+1}, 1024, v{cvB}")
    p(f"v_add_u32 v{cvB+2}, 4096, v{cvB}"); p(f"v_add_u32 v{cvB+3}, 4096, v{cvB+1}")
    p(f"v_lshlrev_b32 v{vL8}, 3, v{vLANE}"); p(f"v_add_u32 v{cvH}, s{sX10}, v{vL8}"); p(f"v_xor_b32 v{cvH+1}, 1024, v{cvH}")
    p(f"s_lshr_b32 s{sT+1}, s{sW}, 1")
    p(f"s_lshl_b32 s{sT+2}, s{sI}, 2"); p(f"s_add_u32 s{sT+3}, s{sW}, s{sT+2}")
    p(f"s_mul_i32 s{sOb}, s{sH}, {6*4096}"); p(f"s_add_u32 s{sOb}, s{sOb}, s{sX10}")
    p(f"s_lshr_b32 s{sT}, s{cC}, 1"); p(f"s_xor_b32 s{sT}, s{sT}, s{sT+1}"); p(f"s_and_b32 s{sT+2}, s{sH}, 3"); p(f"s_lshl_b32 s{sT+5}, s{sT+2}, 1"); p(f"s_add_u32 s{sT}, s{sT}, s{sT+5}")
    p(f"s_mul_i32 s{sT}, s{sT}, {240*5120}"); p(f"s_add_u32 s{sT}, s{sT}, {WS_WP}")
    srd(p, 12, kWS, 240*5120, f"s{sT}")
    p(f"s_mul_i32 s{cM}, s{sW}, 5120")
    p(f"s_lshl_b32 s{sT+3}, s{sT+3}, 2"); p(f"s_add_u32 s{sT+3}, s{sT+3}, s{sT+4}"); p(f"s_mul_i32 s{cXO}, s{sT+3}, 20480")
    p(f"s_mul_i32 s{sT+2}, s{sT+2}, 320"); p(f"s_add_u32 s{cXO}, s{cXO}, s{sT+2}")
    p(f"s_lshr_b32 s{sT}, s{cC}, 1"); p(f"s_mul_i32 s{sT}, s{sT}, 160"); p(f"s_add_u32 s{cXO}, s{cXO}, s{sT}")
    p(f"s_lshl_b32 s{cTile}, s{sI}, 3"); p(f"s_and_b32 s{sT}, s{sH}, 7"); p(f"s_add_u32 s{cTile}, s{cTile}, s{sT}")
    p(f"s_mul_i32 s{cXB}, s{cTile}, {4*3*2*4*XBW}"); p(f"s_mul_i32 s{sT}, s{sW}, {XBW}"); p(f"s_add_u32 s{cXB}, s{cXB}, s{sT}")
    srd(p, 20, kWS, SZ_XB, WS_XB)
    p(f"s_lshl_b32 s{sVOTE}, s{sW}, 2"); p(f"s_add_u32 s{sVOTE}, s{sVOTE}, {VOTE}")
    p(f"s_and_b32 s{sT}, s{sH}, 28"); p(f"s_xor_b32 s{sT+1}, s{sT}, 4")
    own = [sHS+4+k for k in range(3)] if OPT['hord'] == 0 else [sHS+k for k in range(3)]
    oth = [sHS+k for k in range(4)] if OPT['hord'] == 0 else [sHS+3+k for k in range(4)]
    for k in range(4): p(f"s_add_u32 s{oth[k]}, s{sT+1}, {k}")
    for k in range(3):
        p(f"s_add_u32 s{own[k]}, s{sT}, {k}"); p(f"s_cmp_ge_u32 s{own[k]}, s{sH}"); p(f"s_addc_u32 s{own[k]}, s{own[k]}, 0")
    p(f"s_mov_b32 s{sHS+7}, 0")
    p(f"s_lshl_b32 s{sFO}, s{sI}, 2"); p(f"s_add_u32 s{sFO}, s{sFO}, s{cC}"); p(f"s_lshl_b32 s{sFO}, s{sFO}, 7"); p(f"s_add_u32 s{sFO}, s{sFO}, {FL_O}")
    p(f"s_lshl_b32 s{sFH}, s{sI}, 5"); p(f"s_add_u32 s{sFH}, s{sFH}, s{sH}"); p(f"s_lshl_b32 s{sFH}, s{sFH}, 3"); p(f"s_add_u32 s{sFH}, s{sFH}, {FL_H}")
    p(f"s_lshl_b32 s{sFX}, s{cTile}, 7"); p(f"s_add_u32 s{sFX}, s{sFX}, {FL_X}")
def c_fcursors():
    return [Ins(x) for x in (f"s_mul_i32 s{cWo}, s{cC}, 12", f"s_add_u32 s{cWo}, s{cWo}, 192", f"s_lshl_b32 s{cBo}, s{cWo}, 12",
                             f"s_mul_i32 s{cWo}, s{cWo}, 5120", f"s_add_u32 s{cWo}, s{cWo}, s{cW1}")]
def flat_loads(ns):
    pf = []
    for n in ns:
        for l, po in (c_wloads(n), c_bloads(n)):
            for sc, m in l: pf.append([list(sc), m, []])
            pf[-1][2].append(po)
    return pf

class Rec:
    def __init__(self): self.q = []
    def __call__(self, t): self.q.append((2 if t.startswith(TRANS) else 1, t))

def phase_c(p):
    p.wait(vm=('cw', 3))
    def unit(l, po): return [(list(sc), m) for sc, m in l] + [(list(po), None)]
    pf = []
    for n in range(OPT['nb'], 6): pf += unit(*c_bloads(n))
    for qt in range(4): p(f"v_mov_b32 v{4+2*qt}, v{LR+qt}"); p(f"v_mov_b32 v{4+2*qt+1}, v{LR+qt}")
    def emit(x):
        p.add(x[0])
        if x[1] is not None: p.add(x[1])
    order = [x for x in EARLY[OPT['ncv']:]] + [(j, qt) for j in range(6) for qt in range(4) if (j, qt) not in EARLY]
    stores = []
    for n, (j, qt) in enumerate(order):
        b = 28 + 8*(n % 2); d = 64 + 4*(4*j+qt)
        for _ in range(OPT['pfi']):
            if pf: emit(pf.pop(0))
            if pf and pf[0][1] is None: emit(pf.pop(0))
        for ee in range(2):
            for r in range(4): p(f"v_accvgpr_read_b32 v{b+4*ee+r}, a{((2*j+ee)*4+qt)*4+r}")
        for h in range(4): p(f"v_pk_mul_f32 {vr(b+2*h,2)}, {vr(b+2*h,2)}, {vr(4+2*qt,2)}")
        for h in range(4): p(f"v_cvt_pk_bf16_f32 v{d+h}, v{b+2*h}, v{b+2*h+1}")
        stores.append(o_store(j, qt, d))
        if n % OPT['cdiv'] == 0: emit(stores.pop(0))
    stamp(p, 8)
    if OPT.get('lst') == 3: stamp(p, 1, True)
    p.wait(vm=[('cw', 0), ('cb', 0)]); p("s_barrier")
    for f in range(C_LA): p.add(c_aread(0, f))
    srd(p, 4, kX, SZ_XN); srd(p, 8, kOUT, SZ_XN)
    sSO, sSX, sSF, sPF = 16, 17, 18, 19
    p(f"s_and_b32 s{sT}, s{sH}, 7"); p(f"s_lshl_b32 s{sSO}, s{sT}, 3"); p(f"s_add_u32 s{sSO}, s{sSO}, s{sFO}")
    p(f"s_lshl_b32 s{sSX}, s{cC}, 3"); p(f"s_add_u32 s{sSX}, s{sSX}, s{sFX}")
    p(f"s_add_u32 s{sSF}, s{sSX}, {FL_F-FL_X}"); p(f"s_add_u32 s{sPF}, s{sFX}, {FL_F-FL_X}")
    p(f"s_mul_i32 s{cWo}, s{sH}, {6*5120}"); p(f"s_add_u32 s{cWo}, s{cWo}, s{cW1}")
    p.wait(lgkm=('caf', 1))
    swB = [Ins(f"s_mul_i32 s{cBo}, s{sHS}, {6*4096}")]
    SG = OPT['sigst']; PC = OPT['pc']; FC = OPT['fc']
    R = 200; F = 128+0; T = 28; GF = 64
    Q0 = stores + pf
    wn = 6; bn = 9; pub = []; VQ = []
    for n in range(30):
        L = []; cnt = 0
        capn = OPT['fv'] if n <= SG else (OPT['cu'] if n <= PC + 6 else 11)
        while Q0 and (cnt < capn or Q0[0][1] is None):
            x = Q0.pop(0); L.append(x); cnt += x[1] is not None
        while True:
            wok = wn < 30 and wn <= n + 6; bok = bn < 30 and n > PC and bn <= n + 7
            must = wok and wn <= n + 2
            if bok and (bn <= wn or not wok) and cnt + 4 <= capn: L += unit(*c_bloads(bn)); bn += 1; cnt += 4
            elif wok and (must or (not Q0 and cnt + 5 <= capn)): L += unit(*c_wloads(wn)); wn += 1; cnt += 5
            else: break
        if n == PC: L.insert(0, ([], poll_load(vP8, sFO)))
        if n == 6:
            r = Rec(); r("v_nop"); r("v_nop"); r("v_nop"); r("v_nop"); c_cvt(r, cF, 'alt', 28); VQ = r.q; pub = c_pub('alt', 1); rest = True
        if n > 8 and rest and not pub:
            assert not VQ
            r = Rec(); rest = False
            for tt in range(5):
                for k in range(4): r(f"v_accvgpr_read_b32 v{F+tt*4+k}, a{cF+(tt*2)*4+k}")
            r(f"v_and_b32 v4, 15, v{vLANE}"); r(f"v_lshrrev_b32 v5, 4, v{vLANE}"); r("v_mul_u32_u24 v4, 1280, v4"); r("v_lshl_add_u32 v4, v5, 3, v4")
            VQ = r.q
        if pub and n >= OPT['pubst']:
            done = 3 - (-(-len(VQ)//30))
            k = min(OPT['pubn'], 3*done - (9 - len(pub)))
            L += pub[:k]; pub = pub[k:]
        if n == OPT['xst']:
            for t in range(5): L.append(([], Ins(f"buffer_load_dwordx2 {vr(100+2*t,2)}, v4, s[4:7], s{cXO} offen offset:{32*t}")))
        if n == FC: L.insert(0, ([], poll_load(vP4, sPF)))
        if n == FC + 1:
            q = Prog(); c_get(q, GF, 1, extra=sSF); sc = []
            for x in q.items:
                if x.kind == 'vm': L.append((sc, x)); sc = []
                else: sc.append(x)
        wt = []; af = []
        if n == SG: wt = [('O', 0)]; af = [signal(sSO)]; assert not any(x[1] is not None and x[1].meta.get('tag') == ('O', 0) for x in L)
        if n == OPT['fsig']: wt = [('pub', 1)]; af = [signal(sSF)]; assert not pub
        G = c_stage(n, cF if n < 6 else cS, L, VQ, czero=(n in (0, 6)), nxt=(n < 29), wtags=wt, after=af, cap=63-OPT['cu']-3)
        p.add(G.items())
        if n == SG: stamp(p, 9)
        if OPT.get('lst') == 3 and n % 2 == 1: stamp(p, 2 + n//2, True)
        if n == PC:
            stamp(p, 10); p.wait(vm=('pl', 0)); poll(p, "C_po", vP8, sFO, pre=True); p.add(swB); stamp(p, 11)
        if n == FC:
            p.wait(vm=('pl', 0)); p(f"v_cmp_ne_u64 vcc, {vr(vNON,2)}, {vr(vPOLL,2)}"); p("s_cmp_eq_u64 vcc, 0"); p(f"s_cselect_b32 s{sSF}, 0, 0x10000000")
    assert wn == 30 and bn == 30 and not Q0
    stamp(p, 12)
    p("s_nop 6")
    SP = 160
    pb = c_pub(SP, 0)
    for sg in range(3):
        r = Prog(); c_cvt(r, cS, SP, 28); k = len(r.items)//3
        p.add(r.items[sg*k:(sg+1)*k])
        for sc, m in pb[3*sg:3*sg+3]: p.add(sc); p.add(m)
    for tt in range(5):
        for k in range(4): p(f"v_accvgpr_read_b32 v{R+tt*4+k}, a{cS+(tt*2)*4+k}")
    p("s_waitcnt vmcnt(0)"); p("s_barrier")
    p.add(signal(sSX))
    stamp(p, 13)
    p(f"s_cmp_eq_u32 s2, 0"); p(f"s_cselect_b32 s{sT+1}, 0, 0x10000000")
    p.add(signal(sT+1))
    p(f"s_cmp_eq_u32 s{sSF}, 0"); p("s_cbranch_scc1 C_fok")
    poll(p, "C_pf", vP4, sPF, slp=6)
    c_get(p, GF, 1)
    p("C_fok:")
    poll(p, "C_px", vP4, sFX)
    stamp(p, 14)
    c_get(p, SP, 0)
    c_sum(p, F, GF, 28)
    p(f"s_mov_b32 s{sT}, {f32(-LOG2E)}")
    for i in range(20): p(f"v_mul_f32 v{T+i}, s{sT}, v{F+i}")
    for i in range(20): p(f"v_exp_f32 v{T+i}, v{T+i}")
    for i in range(20): p(f"v_add_f32 v{T+i}, 1.0, v{T+i}")
    for i in range(20): p(f"v_rcp_f32 v{T+i}, v{T+i}")
    for i in range(20): p(f"v_mul_f32 v{F+i}, v{F+i}, v{T+i}")
    for i in range(10):
        p(f"v_lshlrev_b32 v{T+2*i}, 16, v{100+i}"); p(f"v_and_b32 v{T+2*i+1}, 0xffff0000, v{100+i}")
    p("s_waitcnt vmcnt(0)")
    stamp(p, 15)
    c_sum(p, R, SP, 52)
    for i in range(0, 20, 2): p(f"v_pk_fma_f32 {vr(R+i,2)}, {vr(R+i,2)}, {vr(F+i,2)}, {vr(T+i,2)}")
    for i in range(10): p(f"v_cvt_pk_bf16_f32 v{F+i}, v{R+2*i}, v{R+2*i+1}")
    for t in range(5): p(f"buffer_store_dwordx2 {vr(F+2*t,2)}, v4, s[8:11], s{cXO} offen offset:{32*t}")

def a_wloads(it):
    st = it % 3; out = []; sl = [('A', st)]
    for j in range(2):
        for blk in range(3):
            sc = [Ins(f"s_add_u32 m0, s{sWQm}, {st*A_STAGE + blk*8192 + j*1024 - blk*128}")]
            if blk == 0: sc.insert(0, Ins(f"s_mov_b32 s{sT}, {(it*64 + j*16)*12288}"))
            out.append((sc, Ins(f"buffer_load_dwordx4 v{vWQ}, s[12:15], s{sT} offen offset:{blk*128} lds", tag=('A', it), slot=sl, gen=(it, 0))))
    for j in range(3):
        sc = [Ins(f"s_add_u32 m0, s{sGUm}, {st*A_STAGE + 24576 + j*1024}")]
        if j == 0: sc.insert(0, Ins(f"s_mov_b32 s{sT}, {it*64*3072}"))
        out.append((sc, Ins(f"buffer_load_dwordx4 v{vGU+j}, s[16:19], s{sT} offen lds", tag=('A', it), slot=sl, gen=(it, 0))))
    return out
vTA = 44; vTB = 45; vTD = 46
def touch_setup(p):
    t = vT
    p(f"s_lshl_b32 s{sT}, s{sI}, 3"); p(f"s_lshl_b32 s{sT+1}, s{sW}, 1"); p(f"s_add_u32 s{sT+1}, s{sT+1}, s{sT}")
    p(f"v_and_b32 v{t}, 1, v{vLANE}"); p(f"v_lshrrev_b32 v{t+1}, 1, v{vLANE}")
    p(f"v_add_u32 v{t+2}, s{sT+1}, v{t}"); p(f"v_mul_u32_u24 v{t+2}, 12288, v{t+2}"); p(f"v_lshl_add_u32 v{t+2}, v{t+1}, 7, v{t+2}")
    p(f"v_mov_b32 v{t+3}, 0x10000000"); p(f"v_cmp_gt_u32 vcc, 6, v{vLANE}"); p("s_nop 1"); p(f"v_cndmask_b32 v{vTA}, v{t+3}, v{t+2}, vcc")
    p(f"s_and_b32 s{sT+1}, s{sW}, 1"); p(f"s_lshl_b32 s{sT+1}, s{sT+1}, 2"); p(f"s_add_u32 s{sT+1}, s{sT+1}, s{sT}")
    p(f"v_add_u32 v{t+2}, s{sT+1}, v{t+1}"); p(f"v_mul_u32_u24 v{t+2}, 3072, v{t+2}"); p(f"v_mul_u32_u24 v{t}, 92, v{t}"); p(f"v_add_u32 v{t+2}, v{t+2}, v{t}")
    p(f"v_cmp_gt_u32 vcc, 8, v{vLANE}"); p("s_nop 1"); p(f"v_cndmask_b32 v{vTB}, v{t+3}, v{t+2}, vcc")
def touch(it):
    if not OPT['warm'] or it > 9: return []
    d = vTD + 2*(it % 4)
    return [([Ins(f"s_mov_b32 s{sT}, {it*64*12288}")], Ins(f"buffer_load_dword v{d}, v{vTA}, s[12:15], s{sT} offen")),
            ([Ins(f"s_mov_b32 s{sT}, {it*64*3072}")], Ins(f"buffer_load_dword v{d+1}, v{vTB}, s[16:19], s{sT} offen"))]
def a_xloads(it):
    st = it % 3; out = []
    for ks in range(2):
        for qt in range(4):
            sc = [Ins(f"s_xor_b32 s{sT+1}, s{sX10}, {(it*2+ks)*4096 + qt*1024}")]
            out.append((sc, Ins(f"buffer_load_dwordx4 {ar(XB+32*st+(ks*4+qt)*4)}, v{vL16}, s[20:23], s{sT+1} offen{SC1}", tag=('A', it))))
    return out
def a_read(it, f):
    st = it % 3; ks, nt = ((f & 1, f >> 1) if OPT['pair'] else divmod(f, 18)); rs = (it*36+f) % 8; o = []
    for rd in range(2):
        if nt < 12:
            j = nt >> 1; e = nt & 1
            a = vAQ + 3*st + (j & 1); off = (j >> 1)*8192 + ks*4096 + rd*2048 + 8*e
        else:
            mtx, tt = divmod(nt-12, 3)
            a = vAQ + 3*st + 2; off = 24576 + mtx*6144 + ks*3072 + rd*1536 + tt*32
        o.append(Ins(f"ds_read_b64_tr_b16 {ar(RING+4*rs+2*rd,2)}, v{a} offset:{off}", tag=('af', it*36+f), slot=('A', st), gen=(it, 0)))
    return o

SCR = 81920
def side_issue(p):
    p(f"s_and_b32 s{sT}, s{sH}, 1"); p(f"s_cmp_eq_u32 s{sT}, 1"); p("s_cbranch_scc1 S_o0")
    srd(p, 4, kX, SZ_XN)
    p(f"v_and_b32 v64, 15, v{vLANE}"); p(f"v_lshrrev_b32 v65, 4, v{vLANE}")
    p("v_mul_u32_u24 v66, 1280, v64"); p("v_lshl_add_u32 v66, v65, 4, v66")
    p(f"s_lshl_b32 s{sT+5}, s{sI}, 4"); p(f"s_lshr_b32 s{sT}, s{sH}, 1"); p(f"s_add_u32 s{sT+5}, s{sT+5}, s{sT}")
    p(f"s_mul_i32 s{sT}, s{sT+5}, 20480"); p(f"s_mul_i32 s{sT+1}, s{sW}, 320"); p(f"s_add_u32 s{sT}, s{sT}, s{sT+1}")
    for j in range(5): p(f"buffer_load_dwordx4 {vr(80+4*j)}, v66, s[4:7], s{sT} offen offset:{64*j}")
    wsrds(p)
    p("s_branch S_c0")
    p("S_o0:")
    wsrds(p)
    if OPT['ctouch']: p(f"buffer_load_dword v200, v{vCT}, s[96:99], 0 offen")
    p("S_c0:")

def wsrds(p):
    p(f"s_mul_i32 s{sT+2}, s{sH}, 384")
    srd(p, 12, kWQ, None, f"s{sT+2}"); p(f"s_sub_u32 s14, {640*12288}, s{sT+2}")
    p(f"s_cmp_lt_u32 s{sW}, 2"); p(f"s_cselect_b32 s16, s{kWG}, s{kWU}"); p(f"s_cselect_b32 s17, s{kWG+1}, s{kWU+1}")
    p(f"s_mul_i32 s{sT+2}, s{sH}, 96")
    srd(p, 16, 16, None, f"s{sT+2}"); p(f"s_sub_u32 s18, {640*3072}, s{sT+2}")

sPKs = 70; sPKm = 71; sPKd = 69
vPKs = 54; vPK = 55; vPK2 = 59
PKL = K_RING
def pack_setup(p):
    t = vT
    p(f"s_lshl_b32 s{sT+3}, s{sI}, 5"); p(f"s_add_u32 s{sT+3}, s{sT+3}, s{sH}")
    p(f"s_cmp_lt_u32 s{sT+3}, 192")
    p(f"s_cselect_b32 s60, s{kWO}, s{kWD}"); p(f"s_cselect_b32 s61, s{kWO+1}, s{kWD+1}")
    p(f"s_mov_b32 s{sT}, {6144*1280}"); p(f"s_cselect_b32 s62, s{sT}, {1536*1280}"); p("s_mov_b32 s63, 0x20000")
    p(f"s_cselect_b32 s{sT}, 0, 192"); p(f"s_sub_u32 s{sT}, s{sT+3}, s{sT}"); p(f"s_mul_i32 s{sT}, s{sT}, 40960")
    p(f"s_mul_i32 s{sPKm}, s{sW}, 10240"); p(f"s_add_u32 s{sPKs}, s{sT}, s{sPKm}"); p(f"s_add_u32 s{sPKm}, s{sPKm}, {PKL}")
    p(f"s_mul_i32 s{sPKd}, s{sW}, 480"); p(f"s_add_u32 s{sPKd}, s{sPKd}, s{sT+3}"); p(f"s_mul_i32 s{sPKd}, s{sPKd}, 5120")
    p(f"s_cmp_lt_u32 s{sT+3}, 240"); p(f"s_cselect_b32 s{sPKd}, s{sPKd}, 0x10000000")
    p(f"v_lshrrev_b32 v{t}, 3, v{vLANE}"); p(f"v_mul_u32_u24 v{t}, 1280, v{t}")
    p(f"v_bfe_u32 v{t+1}, v{vLANE}, 4, 2"); p(f"v_lshlrev_b32 v{t+1}, 1, v{t+1}"); p(f"v_and_b32 v{t+2}, 7, v{vLANE}"); p(f"v_xor_b32 v{t+1}, v{t+1}, v{t+2}")
    p(f"v_lshl_add_u32 v{vPKs}, v{t+1}, 4, v{t}")
    p(f"v_lshrrev_b32 v{t}, 5, v{vLANE}"); p(f"v_mul_u32_u24 v{t}, 10240, v{t}")
    p(f"v_bfe_u32 v{t+1}, v{vLANE}, 2, 3"); p(f"v_lshl_add_u32 v{t}, v{t+1}, 7, v{t}")
    p(f"v_and_b32 v{t+1}, 3, v{vLANE}"); p(f"v_lshl_add_u32 v{t}, v{t+1}, 3, v{t}")
    p(f"v_bfe_u32 v{t+1}, v{vLANE}, 3, 2")
    p(f"s_mul_i32 s{sT}, s{sW}, 10")
    for k in range(4):
        p(f"s_add_u32 s{sT+1}, s{sT}, {k}"); p(f"s_and_b32 s{sT+2}, s{sT+1}, 3"); p(f"s_lshr_b32 s{sT+1}, s{sT+1}, 2"); p(f"s_lshl_b32 s{sT+1}, s{sT+1}, 10"); p(f"s_add_u32 s{sT+1}, s{sT+1}, {PKL}")
        p(f"v_xor_b32 v{t+2}, s{sT+2}, v{t+1}"); p(f"v_lshl_add_u32 v{t+2}, v{t+2}, 5, v{t}"); p(f"v_add_u32 v{vPK+k}, s{sT+1}, v{t+2}")
    p(f"v_add_u32 v{vPK2}, {240*5120-1024}, v{vL16}")
def pack_dmas():
    return [([Ins(f"s_add_u32 m0, s{sPKm}, {1024*j - 128*j}")],
             Ins(f"buffer_load_dwordx4 v{vPKs}, s[60:63], s{sPKs} offen offset:{128*j} lds", tag=('pk', 0), slot=[('K', k) for k in range(4)], gen=(99, 0))) for j in range(10)]
def pack_reads(t):
    return [([], Ins(f"ds_read_b64_tr_b16 {vr(28+4*(t%4)+2*rd,2)}, v{vPK+(t&3)} offset:{(t>>2)*1024 + rd*20480}", slot=[('K', k) for k in range(4)], tag=('pr', t))) for rd in range(2)]
def pack_store(t):
    sc = [Ins(f"s_add_u32 s{sPKd}, s{sPKd}, 1024")] if t in (5, 9) else []
    v, o = (vL16, t*1024) if t < 4 else ((vL1K, 3072) if t == 4 else (vPK2, min(t-5, 3)*1024))
    return (sc, Ins(f"buffer_store_dwordx4 {vr(28+4*(t%4))}, v{v}, s[60:63], s{sPKd} offen offset:{o}{SC1}", tag=('H', 0)))
def has_m0(G, g): return any(isinstance(x, Ins) and ('s', 'm0') in x.wr for x in G.S[g % G.n])
def has_dma(G, g): return any(x.meta.get('dma') for x in G.N[g % G.n])
def fill(G, lst, g0, g1, step, cnt=999, strict=False):
    BARG = G.barg; g = g0
    while lst and g < g1 and cnt > 0:
        sc, m, po = lst[0]
        ok = G.cap[g] >= 1 and not (BARG-2 <= g <= BARG+1)
        if strict: ok = ok and not G.N[g] and (m.kind == 'ds' or G.cap[g] == 2)
        if m.meta.get('dma') and sc: ok = ok and not (has_m0(G, g-2) or has_m0(G, g-1) or has_m0(G, g) or has_dma(G, g-1) or has_dma(G, g))
        if ok:
            lst.pop(0); cnt -= 1
            for s_ in sc: G.sc(g-1, s_)
            G.N[g].append(m); G.cap[g] -= 1
            for s_ in po: G.sc(g+1, s_)
            g += step
        else: g += 1
def free_valu(G, g):
    while G.cap[g] < 1: g += 1
    return g
def free_sc(G, g, n=1):
    while not all(G.sc_free(g+k) for k in range(n)): g += 1
    return g

def side_work(p, nyoung):
    p(f"s_and_b32 s{sT}, s{sH}, 1"); p(f"s_cmp_eq_u32 s{sT}, 1"); p("s_cbranch_scc1 S_pk1")
    ln = Prog(); q = ln
    srd(q, 4, kWS, SZ_XN)
    q(f"v_lshlrev_b32 v67, 4, v64"); q(f"v_add_u32 v67, {SCR}, v67")
    q(f"s_lshl_b32 s{sT}, s{sW}, 2"); q(f"v_add_u32 v68, s{sT}, v67")
    q(f"s_waitcnt vmcnt({nyoung})")
    X = 80; U = 104
    for i in range(20):
        q(f"v_lshlrev_b32 v{U+2*i}, 16, v{X+i}"); q(f"v_and_b32 v{U+2*i+1}, 0xffff0000, v{X+i}")
    q(f"v_add_f32 v69, v{U}, v{U+1}"); q(f"v_add_f32 v70, v{U+2}, v{U+3}")
    for i in range(4, 40, 2):
        q(f"v_add_f32 v69, v69, v{U+i}"); q(f"v_add_f32 v70, v70, v{U+i+1}")
    q("v_add_f32 v69, v69, v70")
    xlane(q, "v_add_f32", 69, 70)
    q("ds_write_b32 v68, v69"); q("s_waitcnt lgkmcnt(0)"); q("s_barrier")
    q("ds_read_b128 v[72:75], v67"); q("s_waitcnt lgkmcnt(0)")
    q("v_add_f32 v72, v72, v73"); q("v_add_f32 v74, v74, v75"); q("v_add_f32 v72, v72, v74")
    q(f"v_mul_f32 v71, {f32(1/640)}, v72")
    q("v_mov_b32 v69, 0"); q("v_mov_b32 v70, 0")
    for i in range(0, 40, 2):
        q(f"v_sub_f32 v72, v{U+i}, v71"); q(f"v_sub_f32 v73, v{U+i+1}, v71")
        q("v_fmac_f32 v69, v72, v72"); q("v_fmac_f32 v70, v73, v73")
    q("v_add_f32 v69, v69, v70")
    xlane(q, "v_add_f32", 69, 70)
    q("ds_write_b32 v68, v69 offset:256"); q("s_waitcnt lgkmcnt(0)"); q("s_barrier")
    q("ds_read_b128 v[72:75], v67 offset:256"); q("s_waitcnt lgkmcnt(0)")
    q("v_add_f32 v72, v72, v73"); q("v_add_f32 v74, v74, v75"); q("v_add_f32 v72, v72, v74")
    q(f"v_mul_f32 v72, {f32(1/640)}, v72")
    q("v_cvt_pk_bf16_f32 v73, v71, v72")
    q("v_lshlrev_b32 v71, 16, v73"); q("v_and_b32 v72, 0xffff0000, v73")
    q(f"v_add_f32 v72, {f32(1e-5)}, v72")
    q("v_cvt_pk_bf16_f32 v72, v72, v72"); q("v_lshlrev_b32 v72, 16, v72")
    q("v_sqrt_f32 v72, v72"); q("s_nop 0")
    q("v_cvt_pk_bf16_f32 v72, v72, v72"); q("v_lshlrev_b32 v72, 16, v72")
    q("v_rcp_f32 v72, v72")
    q(f"s_lshr_b32 s{sT}, s{sT+5}, 2"); q(f"s_mul_i32 s{sT}, s{sT}, 81920")
    q(f"s_and_b32 s{sT+1}, s{sT+5}, 3"); q(f"s_lshl_b32 s{sT+1}, s{sT+1}, 10"); q(f"s_add_u32 s{sT}, s{sT}, s{sT+1}")
    q(f"s_mul_i32 s{sT+1}, s{sW}, 20480"); q(f"s_add_u32 s{sT}, s{sT}, s{sT+1}")
    for i in range(20):
        q(f"v_sub_f32 v73, v{U+2*i}, v71"); q(f"v_sub_f32 v74, v{U+2*i+1}, v71")
        q("v_cvt_pk_bf16_f32 v73, v73, v74")
        q("v_and_b32 v74, 0xffff0000, v73"); q("v_lshlrev_b32 v73, 16, v73")
        q("v_mul_f32 v73, v73, v72"); q("v_mul_f32 v74, v74, v72")
        q(f"v_cvt_pk_bf16_f32 v{X+i}, v73, v74")
        if i % 4 == 3:
            q(f"buffer_store_dwordx4 {vr(X+i-3)}, v{vL16}, s[4:7], s{sT} offen{SC1}"); q(f"s_add_u32 s{sT}, s{sT}, 4096")
    q(f"s_lshr_b32 s{sT+1}, s{sT+5}, 2"); q(f"s_lshl_b32 s{sT+1}, s{sT+1}, {OPT['lnsh']}"); q(f"s_and_b32 s{sT}, s{sT+5}, 3"); q(f"s_lshl_b32 s{sT}, s{sT}, 3"); q(f"s_add_u32 s{sT+1}, s{sT+1}, s{sT}"); q(f"s_add_u32 s{sT+1}, s{sT+1}, {FL_LN}")
    q("s_waitcnt vmcnt(0)"); q("s_barrier")
    q.add(signal(sT+1))
    stamp(q, 17)
    pk = Prog(); q = pk
    q("S_pk1:")
    if OPT['lnfirst']:
        for sc, m in a_wloads(0):
            q.add(sc); q("s_nop 0"); q.add(m)
    for it in range(2, OPT['td']):
        for sc, m in touch(it): q.add(sc); q.add(m)
    for sc, m in a_wloads(1):
        q.add(sc); q("s_nop 0"); q.add(m)
    q("S_c1:")
    return ln.items, pk.items

def kernel():
    p = Prog()
    p("s_cmp_ge_u32 s2, 256"); p("s_cbranch_scc1 K_end")
    p(f"s_load_dwordx16 s[72:87], s[0:1], 0"); p(f"s_load_dwordx8 s[88:95], s[0:1], 64")
    p("s_getpc_b64 s[96:97]"); p("K_pc:"); p("s_mov_b32 s98, K_codeend-K_pc"); p("s_mov_b32 s99, 0x20000")
    if OPT['ct0']:
        p(f"v_lshlrev_b32 v{vCT}, {OPT['ct0']+4}, v0"); p(f"buffer_load_dword v201, v{vCT}, s[96:99], 0 offen")
    p(f"v_lshrrev_b32 v1, 6, v0"); p(f"v_and_b32 v{vLANE}, 63, v0")
    p(f"v_readfirstlane_b32 s{sW}, v1")
    p(f"s_and_b32 s{sH}, s2, 7"); p(f"s_lshl_b32 s{sH}, s{sH}, 2"); p(f"s_bfe_u32 s{sT}, s2, 0x20003"); p(f"s_add_u32 s{sH}, s{sH}, s{sT}")
    p(f"s_lshr_b32 s{sI}, s2, 5")
    p(f"s_bfe_u32 s{sX10}, s{sH}, 0x10002"); p(f"s_lshl_b32 s{sX10}, s{sX10}, 1"); p(f"s_bfe_u32 s{sT}, s{sH}, 0x10003"); p(f"s_add_u32 s{sX10}, s{sX10}, s{sT}"); p(f"s_lshl_b32 s{sX10}, s{sX10}, 10")
    p(f"v_lshlrev_b32 v{vL16}, 4, v{vLANE}"); p(f"v_add_u32 v{vL1K}, 1024, v{vL16}")
    if OPT['stamp']: p(f"v_mov_b32 v{vSTAMP}, 0")
    p(f"s_lshr_b32 s{sT}, s2, 4"); p(f"s_lshl_b32 s{sT}, s{sT}, 2"); p(f"s_add_u32 s{sT}, s{sT}, s{sW}"); p(f"s_and_b32 s{sT}, s{sT}, 15"); p(f"s_lshl_b32 s{sT}, s{sT}, 13")
    p(f"v_lshlrev_b32 v{vCT}, 7, v{vLANE}"); p(f"v_add_u32 v{vCT}, s{sT}, v{vCT}")
    stamp(p, 0)
    p("s_waitcnt lgkmcnt(0)")
    side_issue(p)
    srd(p, sFL, kWS, SZ_FL, WS_FL)
    p(f"s_load_dwordx2 s[{sNON}:{sNON+1}], s[{sFL}:{sFL+1}], 0")
    t = vT
    p(f"v_lshrrev_b32 v{t}, 3, v2"); p(f"v_and_b32 v{t+1}, 7, v2"); p(f"v_bfe_u32 v{t+2}, v2, 4, 2")
    p(f"v_lshlrev_b32 v{t+3}, 1, v{t+2}"); p(f"v_xor_b32 v{t+3}, v{t+3}, v{t+1}"); p(f"v_lshlrev_b32 v{t+3}, 4, v{t+3}")
    p(f"v_lshrrev_b32 v{t+4}, 2, v{t}"); p(f"v_lshlrev_b32 v{t+4}, 3, v{t+4}")
    p(f"v_and_b32 v{t+5}, 3, v{t}"); p(f"v_add_u32 v{t+4}, v{t+4}, v{t+5}")
    p(f"s_lshr_b32 s{sT+2}, s{sW}, 1"); p(f"s_lshl_b32 s{sT+2}, s{sT+2}, 5")
    p(f"s_and_b32 s{sT+3}, s{sW}, 1"); p(f"s_lshl_b32 s{sT+3}, s{sT+3}, 2"); p(f"s_add_u32 s{sT+2}, s{sT+2}, s{sT+3}")
    p(f"v_add_u32 v{t+4}, s{sT+2}, v{t+4}")
    p(f"v_mul_u32_u24 v{t+4}, 12288, v{t+4}"); p(f"v_add_u32 v{vWQ}, v{t+4}, v{t+3}")
    p(f"s_lshl_b32 s{sT+2}, s{sW}, 3"); p(f"v_add_u32 v{t+4}, s{sT+2}, v{t}")
    p(f"v_mul_u32_u24 v{t+5}, 384, v{t+4}"); p(f"v_add_u32 v{vDV}, v{t+5}, v{t+3}")
    p(f"v_bfe_u32 v{t+6}, v{t+4}, 1, 3"); p(f"v_xor_b32 v{t+6}, v{t+6}, v{t+1}")
    p(f"v_lshl_add_u32 v{vDK}, v{t+6}, 4, v{t+5}")
    p(f"s_and_b32 s{sT+3}, s{sW}, 1"); p(f"s_lshl_b32 s{sT+3}, s{sT+3}, 5")
    p(f"s_and_b32 s{sT+4}, s{sH}, 1"); p(f"s_lshl_b32 s{sT+4}, s{sT+4}, 1")
    for j in range(3):
        p(f"v_add_u32 v{t+4}, {64*j}, v2")
        p(f"v_mul_u32_u24 v{t+5}, 171, v{t+4}"); p(f"v_lshrrev_b32 v{t+5}, 10, v{t+5}")
        p(f"v_mul_u32_u24 v{t+6}, 6, v{t+5}"); p(f"v_sub_u32 v{t+6}, v{t+4}, v{t+6}")
        p(f"v_add_u32 v{t+6}, s{sT+4}, v{t+6}"); p(f"v_subrev_u32 v{t+7}, 6, v{t+6}"); p(f"v_min_u32 v{t+6}, v{t+6}, v{t+7}")
        p(f"v_bfe_u32 v{t+7}, v{t+5}, 2, 2"); p(f"v_lshlrev_b32 v{t+7}, 3, v{t+7}")
        p(f"v_lshrrev_b32 v{t+8}, 4, v{t+5}"); p(f"v_lshl_add_u32 v{t+7}, v{t+8}, 2, v{t+7}")
        p(f"v_and_b32 v{t+8}, 3, v{t+5}"); p(f"v_add3_u32 v{t+7}, v{t+7}, v{t+8}, s{sT+3}")
        p(f"v_mul_u32_u24 v{t+7}, 3072, v{t+7}"); p(f"v_lshl_add_u32 v{vGU+j}, v{t+6}, 4, v{t+7}")
    p(f"s_lshl_b32 s{sWQm}, s{sW}, 11"); p(f"s_mul_i32 s{sGUm}, s{sW}, 3072")
    ny = 0
    if not OPT['lnfirst']:
        for sc, m in a_wloads(0):
            p.add(sc); p("s_nop 0"); p.add(m); ny += 1
    touch_setup(p)
    pack_setup(p)
    p(f"v_lshrrev_b32 v{t}, 2, v2"); p(f"v_and_b32 v{t+1}, 3, v2"); p(f"v_bfe_u32 v{t+2}, v2, 3, 2")
    p(f"v_lshlrev_b32 v{t+3}, 7, v{t}")
    p(f"v_lshlrev_b32 v{t+4}, 1, v{t+2}"); p(f"v_xor_b32 v{t+4}, v{t+4}, v{t+1}")
    p(f"v_lshl_add_u32 v{vAQ}, v{t+4}, 4, v{t+3}"); p(f"v_xor_b32 v{vAQ+1}, 64, v{vAQ}")
    p(f"v_mul_u32_u24 v{t+4}, 96, v{t}"); p(f"v_lshl_add_u32 v{vAQ+2}, v{t+1}, 3, v{t+4}")
    for s in (1, 2):
        for j in range(3): p(f"v_add_u32 v{vAQ+3*s+j}, {s*A_STAGE}, v{vAQ+j}")
    p(f"v_lshl_add_u32 v{t+4}, v{t+2}, 5, v{t+3}"); p(f"v_lshl_add_u32 v{t+4}, v{t+1}, 3, v{t+4}")
    p(f"v_add_u32 v{vV}, {V_RING}, v{t+4}")
    for u in range(1, 4): p(f"v_xor_b32 v{vV+u}, {32*u}, v{vV}")
    p(f"v_lshlrev_b32 v{vP4}, 3, v{t+1}")
    p(f"v_and_b32 v{t}, 15, v2"); p(f"v_lshrrev_b32 v{t+1}, 4, v2"); p(f"v_bfe_u32 v{t+2}, v2, 1, 3")
    p(f"v_xor_b32 v{t+1}, v{t+1}, v{t+2}"); p(f"v_lshlrev_b32 v{t}, 7, v{t}"); p(f"v_lshl_add_u32 v{t}, v{t+1}, 4, v{t}")
    p(f"v_add_u32 v{vK0}, {K_RING}, v{t}"); p(f"v_xor_b32 v{vK0+1}, 64, v{vK0}")
    p(f"v_and_b32 v{vP8}, 7, v2"); p(f"v_lshlrev_b32 v{vP8}, 3, v{vP8}")
    p(f"v_mov_b32 v{t}, 0x10000000"); p("v_cmp_eq_u32 vcc, 0, v0"); p("s_nop 1"); p(f"v_cndmask_b32 v{vSIG}, v{t}, v0, vcc")
    p(f"s_lshl_b32 s{sT+1}, s{sI}, 2"); p(f"s_add_u32 s{sT+1}, s{sT+1}, s{sW}")
    p(f"s_mul_i32 s{sT+2}, s{sT+1}, 81920"); srd(p, 20, kWS, 81920, f"s{sT+2}")
    p(f"s_mul_i32 s{sT+2}, s{sT+1}, {240*4096}"); p(f"s_add_u32 s{sT+2}, s{sT+2}, {WS_OF}"); srd(p, 24, kWS, 240*4096, f"s{sT+2}")
    p(f"s_lshl_b32 s{sT+4}, s{sT+1}, {OPT['lnsh']}"); p(f"s_add_u32 s{sT+4}, s{sT+4}, {FL_LN}")
    p(f"s_lshl_b32 s{sT+2}, s{sW}, 10")
    p(f"s_add_u32 s{sKb}, s{sT+2}, {K_RING}"); p(f"s_add_u32 s{sVb}, s{sT+2}, {V_RING}")
    p(f"s_mov_b32 s{sPass}, 0")
    p("s_waitcnt lgkmcnt(0)")
    p(f"s_add_u32 s{sNON}, s{sNON}, 0x7f4a7c15"); p(f"s_addc_u32 s{sNON+1}, s{sNON+1}, 0x9e3779b9")
    p(f"v_mov_b32 v{vNON}, s{sNON}"); p(f"v_mov_b32 v{vNON+1}, s{sNON+1}")
    stamp(p, 1)
    head = p.items
    ln, pk = side_work(p, ny)
    p = Prog()
    stamp(p, 2)
    poll(p, "A_pl", vP4, sT+4, slp=OPT["lslp"])
    stamp(p, 3)
    for it in range(2):
        for sc, m in a_xloads(it): p.add(sc); p.add(m)
    p(f"s_mul_i32 s{sT+2}, s{sH}, 786432")
    srd(p, 4, kK, 786432, f"s{sT+2}"); srd(p, 8, kV, 786432, f"s{sT+2}")
    p("s_barrier")
    LA = 4
    for f in range(LA): p.add(a_read(0, f))
    p.wait(vm=('A', 0), lgkm=('af', 1))
    stamp(p, 4)
    for it in range(10):
        st = it % 3; M = []
        seq = [(ks, nt, qt) for nt in range(18) for qt in range(4) for ks in range(2)] if OPT['pair'] else [(ks, nt, qt) for ks in range(2) for nt in range(18) for qt in range(4)]
        for ks, nt, qt in seq:
            rs = (it*36 + (2*nt+ks if OPT['pair'] else ks*18+nt)) % 8
            d = vr(QACC + (nt*4+qt)*4) if nt < 12 else ar(((nt-12)*4+qt)*4)
            c = "0" if (it == 0 and ks == 0) else d
            M.append(Ins(f"{MF} {d}, {ar(RING+4*rs)}, {ar(XB+32*st+(ks*4+qt)*4)}, {c}"))
        G = Gaps(M)
        BG = 4*(36-LA)
        for f in range(LA, 36):
            r = a_read(it, f); g = 4*(f-LA) - (2 if f >= 30 else 0)
            g = G.mem_from(g, r[0]); G.mem_from(g+1, r[1])
        if it < 9:
            G.sc(BG-1, Wait(vm=('A', it+1), lgkm='all')); G.sc(BG, Ins("s_barrier"))
            g = BG+1
            for f in range(LA):
                r = a_read(it+1, f)
                g = max(g, 4*((36+f-8)|1)+4)
                g = G.mem_from(g, r[0]); g = G.mem_from(g+1, r[1]) + 1
            G.sc(143, Wait(lgkm=('af', (it+1)*36+1)))
        for f in range(2, 36, 2):
            if 4*f-1 < BG-1 or it == 9: G.sc(4*f-1, Wait(lgkm=('af', it*36+f+1)))
        L = []
        if it+2 < 10: L = touch(it+OPT['td']) + a_wloads(it+2) + a_xloads(it+2)
        elif it == 8:
            for tl in range(4):
                for b, (mi, d) in enumerate(k_dma(tl, sKo)):
                    L.append((([Ins(f"s_mov_b32 s{sKo}, {tl*SLOT}")] if b == 0 else []) + [mi], d))
        else:
            G.valu(0, Ins(f"v_add_u32 v{vDV2}, {SLOT}, v{vDV}"))
            for b, (mi, d) in enumerate(u_dma(1, sVo) + u_dma(2, sVo)):
                d.meta['slot'] = [d.meta['slot'], ('A', 1), ('A', 2)]
                L.append((([Ins(f"s_mov_b32 s{sVo}, 0")] if b == 0 else []) + [mi], d))
        P0 = OPT['pk0']
        if it in (P0, P0+1): L = L + pack_dmas()[5*(it-P0):5*(it-P0)+5]
        g = 2
        for sc, m in L:
            while G.N[g] or not G.sc_free(g-1) or (len(sc) > 1 and not G.sc_free(g-2)): g += 1
            for k, s_ in enumerate(reversed(sc)): G.sc(g-1-k, s_)
            G.mem(g, m); g += 4
        assert g < BG
        if it == 4:
            G.S[BG-1][-1].vm = [G.S[BG-1][-1].vm, ('pk', 0)]
            q = Prog(); srd(q, 60, kWS, SZ_WP, WS_WP); g = free_sc(G, 100, 4)
            for k, x in enumerate(q.items): G.sc(g+k, x)
        if it in (5, 6, 7):
            ts = [(0, 1, 2, 3), (4, 5, 6), (7, 8, 9)][it-5]
            g = 3
            for t in ts:
                for sc, m in pack_reads(t): g = G.mem_from(g, m) + 4
            g = 79
            for t in ts:
                sc, m = pack_store(t)
                while G.N[g] or not G.sc_free(g-1): g += 1
                for s_ in sc: G.sc(g-1, s_)
                G.mem(g, m); g += 8
            assert g - 8 < BG - 2
        p.add(G.items())
    stamp(p, 5)
    c_setup(p)
    p(f"s_mov_b32 s{sT+4}, {f32(-LOG2E)}")
    p(f"s_lshr_b32 s{sT+2}, s{sH}, 1"); p(f"s_mul_i32 s{sT+2}, s{sT+2}, 3"); p(f"s_add_u32 s{sT+2}, s{sT+2}, 192"); p(f"s_lshl_b32 s{sT+2}, s{sT+2}, 12"); p(f"s_add_u32 s{sT+2}, s{sT+2}, s{sX10}")
    p(f"s_and_b32 s{sT+3}, s{sH}, 1"); p(f"s_lshl_b32 s{sT}, s{sT+3}, 13"); p(f"s_add_u32 s{sT}, s{sT}, s{sT+2}")
    p(f"s_lshl_b32 s{sT+1}, s{sT+3}, 9"); p(f"s_add_u32 s{sT+1}, s{sT+1}, s{sT+2}"); p(f"s_add_u32 s{sT+1}, s{sT+1}, 4096")
    for qt in range(4):
        o = 52 if qt & 1 else 44
        for tt in range(3):
            b = vT
            for r in range(4): p(f"v_accvgpr_read_b32 v{b+r}, a{(tt*4+qt)*4+r}")
            for r in range(4): p(f"v_mul_f32 v{b+8+r}, s{sT+4}, v{b+r}")
            for r in range(4): p(f"v_exp_f32 v{b+8+r}, v{b+8+r}")
            for r in range(4): p(f"v_accvgpr_read_b32 v{b+4+r}, a{48+(tt*4+qt)*4+r}")
            for r in range(4): p(f"v_add_f32 v{b+8+r}, 1.0, v{b+8+r}")
            for r in range(4): p(f"v_rcp_f32 v{b+8+r}, v{b+8+r}")
            for r in range(0, 4, 2): p(f"v_pk_mul_f32 {vr(b+r,2)}, {vr(b+r,2)}, {vr(b+4+r,2)}")
            for r in range(0, 4, 2): p(f"v_pk_mul_f32 {vr(b+r,2)}, {vr(b+r,2)}, {vr(b+8+r,2)}")
            p(f"v_cvt_pk_bf16_f32 v{o+2*tt}, v{b}, v{b+1}"); p(f"v_cvt_pk_bf16_f32 v{o+2*tt+1}, v{b+2}, v{b+3}")
        p(f"s_xor_b32 s{sT+2}, s{sT}, {qt*1024}"); p(f"s_xor_b32 s{sT+3}, s{sT+1}, {qt*1024}")
        p(f"buffer_store_dwordx4 {vr(o)}, v{vL16}, s[24:27], s{sT+2} offen{SC1}", tag=('H', 0))
        p(f"buffer_store_dwordx2 {vr(o+4,2)}, v{vL8}, s[24:27], s{sT+3} offen{SC1}", tag=('H', 0))
    p(f"s_mov_b32 s{sT+4}, {f32(QSCALE)}"); p(f"s_mov_b32 s{sT+5}, s{sT+4}")
    for ks in range(6):
        for qt in range(4):
            d = QF + (ks*4+qt)*4
            for e in range(2):
                s = QACC + ((2*ks+e)*4+qt)*4
                p(f"v_pk_mul_f32 {vr(s,2)}, {vr(s,2)}, s[{sT+4}:{sT+5}]")
                p(f"v_pk_mul_f32 {vr(s+2,2)}, {vr(s+2,2)}, s[{sT+4}:{sT+5}]")
                p(f"v_cvt_pk_bf16_f32 v{d+2*e}, v{s}, v{s+1}"); p(f"v_cvt_pk_bf16_f32 v{d+2*e+1}, v{s+2}, v{s+3}")
    for qt in range(4): p(f"v_mov_b32 v{MXI+qt}, 0xff800000")
    pa = p.items

    a = Prog()
    L2 = OPT.get('lst') == 2
    a("K_attn:")
    a(f"s_mov_b32 s{sKo}, {4*SLOT}"); a(f"s_mov_b32 s{sVo}, {2*SLOT}")
    a.wait(vm=[('K', 0), ('K', 1)]); a("s_barrier")
    stamp(a, 6)
    if L2: stamp(a, 1, True)
    for f in range(6): a.add(kfrag_read(f, 0))
    G = Gaps(qk_mfmas(-1, czero=True))
    a.wait(lgkm=('kf', 2)); G.sc(1, Wait(lgkm=('kf', 5)))
    for f in range(6, 12): G.mem(2*(f-6)+2, kfrag_read(f, 0))
    G.sc(23, Wait(lgkm=('kf', 11)))
    a.add(G.items())
    a("s_barrier")
    for g, m in sorted(PLAN['mem'].items()):
        kind, mp, f, rd, early = m
        if g > PLAN['bar'][1] and early:
            if kind == 'k': a.add(kfrag_read(f, 1))
            elif kind == 'dma':
                mi, d = k_dma(4, sKo)[f] if f < 3 else u_dma(3, sVo)[f-3]
                a.add(mi); a("s_nop 0"); a.add(d)
                if f == 2: a(f"s_add_u32 s{sKo}, s{sKo}, {SLOT}")
    for qt in range(4):
        s0 = SR + qt*4; s1 = SR + 16 + qt*4; m = vX + qt
        a(f"v_max3_f32 v{m}, v{s0}, v{s0+1}, v{MXI+qt}")
        a(f"v_max3_f32 v{m}, v{s0+2}, v{s0+3}, v{m}")
        a(f"v_max3_f32 v{m}, v{s1}, v{s1+1}, v{m}")
        a(f"v_max3_f32 v{m}, v{s1+2}, v{s1+3}, v{m}")
    xlane4(a, "v_max_f32", [vX+q for q in range(4)], vX+4)
    for qt in range(4):
        for r in range(4): a(f"v_sub_f32 v{MR+4*qt+r}, 0, v{vX+qt}")
        a(f"v_mov_b32 v{LR+qt}, 0")
        for kt in range(2):
            for r in range(0, 4, 2):
                s = SR + (kt*4+qt)*4 + r
                a(f"v_pk_add_f32 {vr(s,2)}, {vr(s,2)}, {vr(MR+4*qt,2)}")
    for (c, t_, kt, qt), g in sorted(zip(softmax_items(0), PLAN['vpos'][1]), key=lambda x: x[1]):
        if g < 112: a(t_)
    a.wait(lgkm=[('kf', 12+f) for f in range(OPT['kg'])])
    a("s_nop 1")
    if L2: stamp(a, 2, True)
    for i in range(4):
        G = attn_step(i, 0, pv=(i > 0), czero=(i in (1, 2)))
        if i == 2:
            G.S[G.barg-1][-1].vm.append(('H', 0))
            l = [[[], signal(sFH), []]]; fill(G, l, G.barg+2, G.n-1, 1); assert not l
        a.add(G.items())
        if L2: stamp(a, 3+i, True)
    body = []
    for i in range(4, 8):
        G = attn_step(i, 4)
        if i == 7:
            G.sc(free_sc(G, 30), Ins(f"s_sub_u32 s{sCnt}, s{sCnt}, 1"))
            G.sc(G.n-1, Ins(f"s_cmp_gt_i32 s{sCnt}, 0"))
        body += G.items()
    body.append(Ins("s_cbranch_scc1 K_loop"))
    a(f"s_mov_b32 s{sCnt}, 13")
    a(".p2align 6"); a("K_loop:")
    mid = [Ins(f"s_cmp_lt_i32 s{sCnt}, 0"), Ins("s_cbranch_scc1 K_lx")] + hpoll_loads("0", ('hp', 13)) + \
          [Ins(f"buffer_load_dword v0, v{vCT}, s[96:99], 0 offen"), Ins("s_branch K_loop"), Ins("K_lx:")]
    a.add(Loop("K_loop", 14, body, mid=(12, mid)))
    if L2: stamp(a, 7, True)
    def wl(ns, extra_slots):
        out = []
        for n in ns:
            l, po = c_wloads(n)
            for sc, m in l:
                m.meta['slot'] = [m.meta['slot']] + extra_slots
                out.append([list(sc), m, []])
            out[-1][2].extend(po)
        return out
    def bl(ns):
        out = []
        for n in ns:
            l, po = c_bloads(n)
            for sc, m in l: out.append([list(sc), m, []])
            out[-1][2].extend(po)
        return out
    w012 = wl(range(3), [('A', 0)]); w34 = wl([3], [('U', 61 % 4)]) + wl([4], [('K', 0), ('K', 1), ('K', 2)]); w5 = wl([5], [('K', 2), ('K', 3)])
    b0 = bl([0]); b12 = bl(range(1, OPT['nb']))
    a.wait(vm=('hp', 13)); hpoll(a, "C_ph"); a.add(c_fcursors())
    if OPT['wt']:
        a(f"v_lshlrev_b32 v{vCT}, 7, v{vLANE}")
        a(f"s_mul_i32 s{sT}, s{cC}, 245760"); a(f"s_mul_i32 s{sT+1}, s{sI}, 30720"); a(f"s_add_u32 s{sT}, s{sT}, s{sT+1}")
        a(f"s_mul_i32 s{sT+1}, s{cW1}, 3"); a(f"s_add_u32 s{sT}, s{sT}, s{sT+1}"); a(f"s_add_u32 s{sT+1}, s{sT}, 7680")
    Gs = {}
    for i in range(60, 65):
        G = attn_step(i, 0, qk=(i < 63)); BARG = G.barg; Gs[i] = G
        if i == OPT['wt']:
            l = [[[], Ins(f"buffer_load_dword v{vX+k}, v{vCT}, s[12:15], s{sT+k} offen{SC1}"), []] for k in range(2)]
            fill(G, l, 30, G.n-1, 16); assert not l
        if i == 61: fill(G, w012, max(g for g in range(G.n) if has_dma(G, g))+3, G.n-1, OPT['esp']); w34 = w012 + w34
        if i == 62:
            fill(G, w34, 2, BARG-2, 4); w5 = w34 + w5
            fill(G, w5, BARG+2, G.n-1, 3)
        if i == 63:
            for k in range(16): G.mem(BARG+2+k+(k//2)//2, vfrag_read(k//2, k % 2, 64))
    def loc(g): return (Gs[63], 48+g) if g < 64 else (Gs[64], g-16)
    cur = [0]
    def put(text, cost=1, ming=0, gapafter=0, kind='v', **meta):
        g = max(cur[0], ming)
        while True:
            G, lg = loc(g)
            if kind == 's': break
            if G.cap[lg] >= cost and not (kind == 'm' and (G.N[lg] or G.V[lg])): break
            g += 1
        x = Ins(text, **meta)
        if kind == 'v': G.valu(lg, x, cost)
        elif kind == 'm': G.mem(lg, x)
        else: G.V[lg].append(x)
        cur[0] = g + gapafter
        return g
    L_ = [LR+q for q in range(4)]
    for sw in ("v_permlane32_swap_b32", "v_permlane16_swap_b32"):
        for k, r in enumerate(L_): put(f"v_mov_b32 v{vX+k}, v{r}", gapafter=(1 if k == 3 else 0))
        for k, r in enumerate(L_): put(f"{sw} v{r}, v{vX+k}", 2)
        for k, r in enumerate(L_): put(f"v_add_f32 v{r}, v{r}, v{vX+k}")
    put(f"s_mov_b32 s{sT}, 0x5d800000", kind='s')
    put(f"v_cmp_nle_f32 s[{sT+2}:{sT+3}], v{LR}, s{sT}")
    for qt in range(1, 4):
        put(f"v_cmp_nle_f32 vcc, v{LR+qt}, s{sT}", gapafter=1); put(f"s_or_b64 s[{sT+2}:{sT+3}], s[{sT+2}:{sT+3}], vcc", kind='s')
    put(f"s_or_b32 s{sT+2}, s{sT+2}, s{sT+3}", kind='s', gapafter=1)
    put(f"v_mov_b32 v{vX}, s{sT+2}"); put(f"v_mov_b32 v{vX+1}, s{sVOTE}", gapafter=1)
    g = put(f"ds_write_b32 v{vX+1}, v{vX}", kind='m', gapafter=1)
    assert g < Gs[63].barg - 48 - 3, g
    for qt in range(4): put(f"v_rcp_f32 v{LR+qt}, v{LR+qt}", 2)
    put(f"v_mov_b32 v{vK0}, {VOTE}", gapafter=1)
    for j, qt in EARLY[:OPT['ncv']]:
        for ee in range(2):
            for r in range(4): put(f"v_accvgpr_read_b32 v{vX+4*ee+r}, a{((2*j+ee)*4+qt)*4+r}", ming=16*j+8*ee+2*qt+1+6)
        sc, m = o_store(j, qt, vX)
        for x in sc: put(x.text, kind='s', gapafter=1)
        for r in range(8): put(f"v_mul_f32 v{vX+r}, v{vX+r}, v{LR+qt}")
        for h in range(4): put(f"v_cvt_pk_bf16_f32 v{vX+h}, v{vX+2*h}, v{vX+2*h+1}", gapafter=(1 if h == 3 else 0))
        put(m.text, kind='m', gapafter=2, tag=('O', 0))
    sys.stderr.write(f"final block: last gap {cur[0]}\n")
    l = w5 + b0 + b12
    fill(Gs[63], l, 30, 111, 3); fill(Gs[64], l, 49, 79, 3); assert not l, len(l)
    Gs[64].N[50].append(Ins(f"ds_read_b128 {vr(MXI)}, v{vK0}"))
    for i in range(60, 65):
        a.add(Gs[i].items())
        if L2: stamp(a, 8+i-60, True)
    stamp(a, 7)
    a(f"v_or_b32 v{MXI}, v{MXI}, v{MXI+1}"); a(f"v_or3_b32 v{MXI}, v{MXI}, v{MXI+2}, v{MXI+3}"); a("s_nop 0")
    a(f"v_readfirstlane_b32 s{sT}, v{MXI}")
    a(f"s_cmp_eq_u32 s{sT}, 0"); a("s_cbranch_scc1 K_epi")
    a(f"s_cmp_eq_u32 s{sPass}, 0"); a("s_cbranch_scc1 K_fb")

    e = Prog()
    e("K_epi:")
    if OPT.get('lst') == 2: stamp(e, 13, True)
    phase_c(e)
    if OPT['stamp']: e("s_waitcnt vmcnt(0)")
    stamp(e, 16); stamp_out(e)
    e("K_end:")
    e("s_endpgm")

    fb = Prog()
    fb("K_fb:")
    fb(f"s_mov_b32 s{sPass}, 1");  fb(f"s_mov_b32 s{sKo}, 0"); fb(f"s_mov_b32 s{sCnt}, 64")
    fb(f"v_xor_b32 v{vK0}, 64, v{vK0+1}")
    for qt in range(4): fb(f"v_mov_b32 v{MXI+qt}, 0xff800000")
    fb("s_waitcnt vmcnt(0)"); fb("s_barrier")
    fb("K_fbl:")
    fb.loop_begin("K_fbl", 2)
    for mi, d in k_dma(1000, sKo, 4):
        fb.add(mi); fb("s_nop 0"); fb.add(d)
    fb(f"s_add_u32 s{sKo}, s{sKo}, {SLOT}")
    fb("s_waitcnt vmcnt(0)"); fb("s_barrier")
    for f in range(12): fb.add(kfrag_read(f, 1000, 4))
    fb("s_waitcnt lgkmcnt(0)"); fb.add(qk_mfmas(999, czero=True))
    fb("s_nop 7")
    for qt in range(4):
        for kt in range(2):
            s0 = SR + (kt*4+qt)*4
            fb(f"v_max3_f32 v{MXI+qt}, v{s0}, v{s0+1}, v{MXI+qt}")
            fb(f"v_max3_f32 v{MXI+qt}, v{s0+2}, v{s0+3}, v{MXI+qt}")
    fb("s_barrier")
    fb(f"s_sub_u32 s{sCnt}, s{sCnt}, 1"); fb(f"s_cmp_lg_u32 s{sCnt}, 0"); fb("s_cbranch_scc1 K_fbl")
    fb.loop_end()
    for tl in range(4):
        fb(f"s_mov_b32 s{sKo}, {tl*SLOT}")
        for mi, d in k_dma(tl, sKo): fb.add(mi); fb("s_nop 0"); fb.add(d)
    fb(f"s_mov_b32 s{sVo}, 0")
    for mi, d in u_dma(1, sVo) + u_dma(2, sVo): fb.add(mi); fb("s_nop 0"); fb.add(d)
    fb("s_waitcnt vmcnt(0)")
    fb("s_branch K_attn")
    fb("K_codeend:")

    out = Prog(); out.items += head + ln + pk + pa + a.items + e.items + fb.items
    res = Prog(); res.items += skip_retry(head + ln + pk + pa + a.items + e.items); res.resolve()
    chk1 = Prog(); chk1.items += skip_retry(head + ln + pk + pa + a.items + fb.items + a.items + e.items)
    chk2 = Prog(); chk2.items += head + pk + pa[:400]
    return out, [chk1, chk2]

def skip_retry(items):
    out = []; skipping = None
    for k, x in enumerate(items):
        if isinstance(x, Ins):
            if x.text.startswith("s_branch") and x.text.endswith("_chk"):
                skipping = x.text.split()[1] + ":"
            elif skipping and x.text == skipping: skipping = None
            elif skipping: continue
        out.append(x)
    return out

HDR = open('recurrent_scan__mha_block_cached__swiglu_ffn__prompt.s.ref').read().split('; Override launch')[0]
def main():
    out = [HDR.rstrip(), "; @launch grid=(256,1,1) block=(256,1,1) lds=163840", '.amdgcn_target "amdgcn-amd-amdhsa--gfx950"', ".text"]
    prog, chks = kernel()
    ok = all([c.check("k") for c in chks])
    out += [f".globl {NAME}", ".p2align 8", f".type {NAME},@function", f"{NAME}:"] + prog.emit()
    out += ['.section .rodata,"a"', ".p2align 6", f".amdhsa_kernel {NAME}", "  .amdhsa_next_free_vgpr 512", "  .amdhsa_next_free_sgpr 102",
            "  .amdhsa_accum_offset 256", "  .amdhsa_group_segment_fixed_size 0", "  .amdhsa_kernarg_size 96",
            "  .amdhsa_user_sgpr_count 2", "  .amdhsa_user_sgpr_kernarg_segment_ptr 1", "  .amdhsa_system_sgpr_workgroup_id_x 1", ".end_amdhsa_kernel"]
    print("\n".join(out))
    if not ok: sys.stderr.write("CHECK FAILED\n"); sys.exit(1)
main()
```

```python
import sys, struct
from asmlib import *

OPT = dict(stamp=0, look=5, barg=80, slp=2, fpub=0, warm=1, sigst=4, early=1, td=4, pair=1, pf0=14, pfi=1, cdiv=2, wt=0, hord=0, ndef=4, dsp=40, pc=6, fc=24, cu=12, cst=12, fv=5, ncv=3, pubst=7, pubn=6, fsig=16, xst=26, ctouch=2, ct0=0, g0=27, span=88, dcap=0, bcap=1, lcap=1, dstep=7, noex=0, lnfirst=0, chain=6, nb=3, kg=3, vg=1, strict=0, pk0=1, bs=24, bl=28, lookg=20, vsp=4, phs=24, phl=40, lnsh=7, lslp=8, e0=60, esp=4)
for a in sys.argv[1:]:
    k, v = a.split('='); OPT[k] = int(v, 0)
NAME = "recurrent_scan__mha_block_cached__swiglu_ffn__prompt_kernel"

WS_XN = 0x0;        SZ_XN = 2048 * 640 * 2
WS_WP = 0x400000;   SZ_WP = 7680 * 640 * 2
WS_OF = 0x1000000;  SZ_OF = 2048 * 7680 * 2
XBW = 2560; WS_XB = 0x3000000;  SZ_XB = 64*4*3*2*4*XBW
WS_FL = 0x5000000;  SZ_FL = 32768
FL_LN = 24576; FL_H = 2048; FL_O = 4096; FL_X = 8192; FL_F = 16384
def f32(x): return "0x%08x" % struct.unpack('<I', struct.pack('<f', x))[0]
MF = "v_mfma_f32_16x16x32_bf16"
SC1 = " sc1"
def vr(b, n=4): return f"v[{b}:{b+n-1}]"
def ar(b, n=4): return f"a[{b}:{b+n-1}]"
LOG2E = 1.4426950408889634
QSCALE = LOG2E / (192 ** 0.5)

sW = 28; sH = 29; sKb = 30; sVb = 31; sKo = 32; sVo = 33; sCnt = 34; sPass = 35; sWQm = 36; sGUm = 37; sI = 38; cC = 39; sT = 40
cWo = 50; cBo = 51; cM = 52; cXO = 53; cXB = 54; cTile = 55; sFL = 56; sNON = 66; cW1 = 68; sFO = 46; sFH = 47; sFX = 48; sVOTE = 49; sX10 = 3; sOb = 36; sHS = 78
kX = 72; kK = 74; kV = 76; kWQ = 78; kWO = 80; kWG = 84; kWU = 86; kWD = 88; kOUT = 90; kWS = 94
vL1K = 1; vLANE = 2; vL16 = 3; vK0 = 4; vV = 6; vDK = 10; vDV = 11
vWQ = 12; vGU = 13; vAQ = 16
cvA = 12; cvB = 15; cvH = 20; vL8 = 22
vSIG = 25; vNON = 26; vP4 = 60; vP8 = 61; vSTAMP = 62; vCT = 63
vT = 28; vPOLL = 248; vX = 248; vDV2 = 23
QACC = 64; QF = 64; SR = 160; PR = 192; MR = 224; LR = 240; MXI = 244
XB = 96; RING = 192
A_STAGE = 36864
K_RING = 114688; V_RING = 65536; SLOT = 12288
VOTE = 114688 + 4096

def srd(p, d, lo, size, add=None):
    if add is None: p(f"s_mov_b32 s{d}, s{lo}"); p(f"s_mov_b32 s{d+1}, s{lo+1}")
    else: p(f"s_add_u32 s{d}, s{lo}, {add}"); p(f"s_addc_u32 s{d+1}, s{lo+1}, 0")
    if size is not None: p(f"s_mov_b32 s{d+2}, {size}")
    p(f"s_mov_b32 s{d+3}, 0x20000")

def xlane(p, op, a, t):
    p(f"v_mov_b32 v{t}, v{a}"); p("s_nop 1")
    p(f"v_permlane32_swap_b32 v{a}, v{t}"); p("s_nop 1")
    p(f"{op} v{a}, v{a}, v{t}")
    p(f"v_mov_b32 v{t}, v{a}"); p("s_nop 1")
    p(f"v_permlane16_swap_b32 v{a}, v{t}"); p("s_nop 1")
    p(f"{op} v{a}, v{a}, v{t}")
def xlane4(p, op, regs, t):
    for sw in ("v_permlane32_swap_b32", "v_permlane16_swap_b32"):
        for i, a in enumerate(regs): p(f"v_mov_b32 v{t+i}, v{a}")
        p("s_nop 0")
        for i, a in enumerate(regs): p(f"{sw} v{a}, v{t+i}")
        for i, a in enumerate(regs): p(f"{op} v{a}, v{a}, v{t+i}")

NST = [0]
def stamp(p, idx, alt=False):
    if OPT.get('lst') in (2, 3) and not alt and idx not in (0,): return
    if OPT['stamp']:
        p("s_memtime s[64:65]" if OPT.get("clk") else "s_memrealtime s[64:65]"); p("s_waitcnt lgkmcnt(0)")
        p(f"v_writelane_b32 v{vSTAMP}, s64, {idx}")
def stamp_out(p):
    if not OPT['stamp']: return
    if OPT['stamp'] == 2:
        p(f"s_cmp_lg_u32 s2, {OPT.get('dwg', 1)}"); p("s_cbranch_scc1 K_so")
        p(f"s_cmp_lg_u32 s{sW}, 0"); p("s_cbranch_scc1 K_so")
        p("s_mov_b32 s4, s92"); p("s_mov_b32 s5, s93"); p("s_mov_b32 s6, 128"); p("s_mov_b32 s7, 0x20000")
        p(f"v_readlane_b32 s64, v{vSTAMP}, 0"); p(f"v_lshlrev_b32 v4, 2, v{vLANE}"); p("v_subrev_u32 v4, 4, v4"); p("s_nop 1")
        p(f"v_subrev_u32 v5, s64, v{vSTAMP}")
        p(f"buffer_store_dword v5, v4, s[4:7], 0 offen"); p("s_waitcnt vmcnt(0)")
        p("K_so:")
        return
    p("s_cmp_ge_u32 s2, 64"); p("s_cbranch_scc1 K_so")
    p(f"s_cmp_lg_u32 s{sW}, 0"); p("s_cbranch_scc1 K_so")
    p(f"s_add_u32 s4, s{kWS}, {0xF000000}"); p(f"s_addc_u32 s5, s{kWS+1}, 0"); p("s_mov_b32 s6, 8192"); p("s_mov_b32 s7, 0x20000")
    p("s_lshl_b32 s64, s2, 7"); p(f"v_lshlrev_b32 v4, 2, v{vLANE}"); p("s_mov_b64 exec, 0xffffffff")
    p(f"buffer_store_dword v{vSTAMP}, v4, s[4:7], s64 offen"); p("s_waitcnt vmcnt(0)")
    p("K_so:")

def signal(soff): return Ins(f"buffer_store_dwordx2 {vr(vNON,2)}, v{vSIG}, s[{sFL}:{sFL+3}], s{soff} offen{SC1}")
def poll_load(voff, soff): return Ins(f"buffer_load_dwordx2 {vr(vPOLL,2)}, v{voff}, s[{sFL}:{sFL+3}], s{soff} offen{SC1}", tag=('pl', 0))
def poll(p, lab, voff, soff, pre=False, slp=None):
    p(f"s_mov_b32 s{sT+2}, 0")
    if pre: p(f"s_branch {lab}_chk")
    p(f"{lab}:")
    p.add(poll_load(voff, soff)); p("s_waitcnt vmcnt(0)")
    p(f"{lab}_chk:")
    p(f"v_cmp_ne_u64 vcc, {vr(vNON,2)}, {vr(vPOLL,2)}"); p("s_nop 4")
    p(f"s_cbranch_vccz {lab}_ok")
    p(f"s_sleep {OPT['slp'] if slp is None else slp}")
    p(f"s_add_u32 s{sT+2}, s{sT+2}, 1"); p(f"s_cmp_lt_u32 s{sT+2}, 0x40000"); p(f"s_cbranch_scc1 {lab}")
    p(f"{lab}_ok:")
def hpoll_loads(so="0", tag=('hp', 99)):
    return [Ins(f"buffer_load_dwordx4 {vr(vPOLL+4*j)}, v{vL16}, s[{sFL}:{sFL+3}], {so} offen offset:{FL_H+1024*j}{SC1}", tag=tag) for j in range(2)]
def hpoll(p, lab):
    p(f"s_mov_b32 s{sT+2}, 0"); p(f"s_branch {lab}_chk")
    p(f"{lab}:")
    p.add(hpoll_loads()); p("s_waitcnt vmcnt(0)")
    p(f"{lab}_chk:")
    p(f"v_cmp_ne_u64 s[{sT}:{sT+1}], {vr(vNON,2)}, {vr(vPOLL,2)}")
    for j in range(1, 4):
        p(f"v_cmp_ne_u64 vcc, {vr(vNON,2)}, {vr(vPOLL+2*j,2)}"); p(f"s_or_b64 s[{sT}:{sT+1}], s[{sT}:{sT+1}], vcc")
    p(f"s_cbranch_scc0 {lab}_ok")
    p(f"s_sleep 8")
    p(f"s_add_u32 s{sT+2}, s{sT+2}, 1"); p(f"s_cmp_lt_u32 s{sT+2}, 0x40000"); p(f"s_cbranch_scc1 {lab}")
    p(f"{lab}_ok:")

PB = [192, 208, 28, 44]
NR = 16
def slen(i): return 112 if i & 1 else 80
def fbase(i): return 4 if i == 64 else (20 if i & 1 else 0)
def k_dma(tile, soff, stride=0):
    slot = tile % 4
    return [(Ins(f"s_add_u32 m0, s{sKb}, {slot*SLOT + blk*4096 - blk*128}"),
             Ins(f"buffer_load_dwordx4 v{vDK}, s[4:7], s{soff} offen offset:{blk*128} lds", tag=('K', tile, stride), slot=('K', slot), gen=(tile, stride))) for blk in range(3)]
def u_dma(e, soff, stride=0):
    j = (e-1) >> 1; ps = j & 1; blks = (0, 1) if e & 1 else (2,)
    return [(Ins(f"s_add_u32 m0, s{sVb}, {ps*24576 + blk*8192 + hf*4096 - blk*128}"),
             Ins(f"buffer_load_dwordx4 v{vDV2 if hf else vDV}, s[8:11], s{soff} offen offset:{blk*128} lds", tag=('U', e, stride), slot=('U', e % 4), gen=(e, stride)))
            for blk in blks for hf in range(2)]
def kfrag_read(f, tile, stride=0):
    kt, ks = divmod(f, 6); slot = tile % 4; rs = (fbase(tile-1) + f) % NR
    return Ins(f"ds_read_b128 {ar(RING+4*rs)}, v{vK0 + (ks&1)} offset:{slot*SLOT + (ks>>1)*4096 + kt*2048}",
               tag=('kf', tile*12+f, stride*12), slot=('K', slot), gen=(tile, stride))
def vfrag_read(f, rd, e, stride=0):
    j = (e-1) >> 1; ps = j & 1; dt = (0 if e & 1 else 8) + (f >> 1); hf = f & 1; rs = (fbase(e) + 12 + f) % NR
    return Ins(f"ds_read_b64_tr_b16 {ar(RING+4*rs+2*rd,2)}, v{vV + (dt&3)} offset:{ps*24576 + (dt>>2)*8192 + hf*4096 + rd*2048}",
               tag=('vf', e*16+f, stride*16), slot=('U', e % 4), gen=(e, stride))
def qk_seq():
    ch = OPT['chain']; seq = []
    for kt in range(2):
        for k0 in range(0, 6, ch):
            for qt in range(4):
                r = list(range(k0, k0+ch))
                if qt & 1: r.reverse()
                seq += [(kt, ks, qt) for ks in r]
    return seq
def qk_mfmas(step, czero=False):
    M = []; seen = set()
    for kt, ks, qt in qk_seq():
        s = SR + (kt*4+qt)*4
        c = vr(s) if (kt, qt) in seen else ("0" if czero else vr(MR+4*qt)); seen.add((kt, qt))
        M.append(Ins(f"{MF} {vr(s)}, {ar(RING+4*((fbase(step)+kt*6+ks)%NR))}, {vr(QF+(ks*4+qt)*4)}, {c}"))
    return M
def pv_mfmas(e, czero=False):
    M = []; j = (e-1) >> 1; d0, nd = (0, 8) if e & 1 else (8, 4)
    for dl in range(nd):
        for qt in range(4):
            o = ((d0+dl)*4+qt)*4
            for k, hf in enumerate((0, 1) if qt % 2 == 0 else (1, 0)):
                M.append(Ins(f"{MF} {ar(o)}, {ar(RING+4*((fbase(e)+12+2*dl+hf)%NR))}, {vr(PB[(2*j+hf)%4]+4*qt)}, {'0' if (czero and k == 0) else ar(o)}"))
    return M
def softmax_items(t):
    pb = PB[t % 4]; it = []
    seq = [(kt, qt, r) for kt in range(2) for qt in range(4) for r in range(4)]
    def reg(e): return SR + (e[0]*4+e[1])*4 + e[2]
    def post(e):
        o = [(1, f"v_add_f32 v{LR+e[1]}, v{LR+e[1]}, v{reg(e)}", e[0], e[1])]
        if e[2] & 1: o.append((1, f"v_cvt_pk_bf16_f32 v{pb+4*e[1]+2*e[0]+(e[2]>>1)}, v{reg(e)-1}, v{reg(e)}", e[0], e[1]))
        return o
    for i, e in enumerate(seq):
        it.append((2, f"v_exp_f32 v{reg(e)}, v{reg(e)}", e[0], e[1]))
        if i >= 2: it += post(seq[i-2])
    it += post(seq[-2]) + post(seq[-1])
    return it
def plan_macro():
    N = 192; st0 = [0, 80]; bar = [80 - OPT['bs'], 192 - OPT['bl']]
    qs = qk_seq()
    kfirst = {}; klast = {}; sfirst = {}; slast = {}
    for g, (kt, ks, qt) in enumerate(qs):
        kfirst.setdefault(kt*6+ks, g); klast[kt*6+ks] = g; sfirst.setdefault((kt, qt), g); slast[(kt, qt)] = g
    fr = []
    for par in range(2):
        for f in range(12): fr.append((par, 'k', f, st0[par]+kfirst[f], st0[par]+klast[f]))
        for f in range(16 if par else 8): fr.append((par, 'v', f, st0[par]+48+8*(f >> 1), st0[par]+48+8*(f >> 1)+7))
    mem = {}; pos = {}
    g = bar[1] - N
    for ph, (par, kind, f, first, last) in enumerate(fr):
        prev = fr[(ph - NR) % 48]; pl = prev[4] - (N if ph < NR else 0)
        lo = pl + 1
        if kind == 'k': lo = max(lo, (bar[1]-N if par == 0 else bar[0]) + 1)
        tgt = first - OPT['lookg']
        if kind == 'v':
            nleft = (16 if par else 8) - f
            tgt = min(tgt, bar[par] - 7 - OPT['vsp']*nleft)
        for rd in range(1 if kind == 'k' else 2):
            g = max(g+1, lo, tgt)
            while (g % N) in mem or (g % N) in bar: g += 1
            mem[g % N] = (kind, par, f, rd, g < st0[par]); pos[(par, kind, f)] = g
            assert g <= first - 6, (par, kind, f, g, first)
            if kind == 'v': assert g < bar[par] - 5, (par, f, g)
            if kind == 'k': g += 1
    for ep in range(2):
        n = 7 if ep == 0 else 5
        g = (bar[1] - N if ep == 0 else bar[0]) + 3
        for k in range(n):
            while (g % N) in mem or ((g-1) % N) in bar or (g % N) in bar or ((g+1) % N) in bar or (g % N) in (0, 80): g += 1
            mem[g % N] = ('dma', ep, k, 0, g < st0[ep]); g += OPT['dstep']
        assert g - OPT['dstep'] < bar[ep] - 2
    cap = [2 - (1 if i in mem else 0) for i in range(N)]
    for g_, m_ in mem.items():
        if m_[0] == 'dma' and OPT['dcap'] <= 0: cap[g_] = 0
        if m_[0] == 'dma' and OPT['dcap'] == -1: cap[(g_+1) % N] = min(cap[(g_+1) % N], 1)
    if OPT['bcap'] == 0:
        for b_ in bar: cap[b_] = 0
    vpos = []
    items = softmax_items(0); tot = sum(x[0] for x in items)
    phi = [OPT['phs'], 80 + OPT['phl']]; span = [phi[1]-phi[0]-2, phi[0]+N-phi[1]-2]
    g = phi[0]
    for par in range(2):
        p_ = [None]*len(items); acc = 0; pend = list(range(len(items))); n = slen(par)
        while pend:
            g = max(g, phi[par] + int(acc*span[par]/tot)); placed = False
            for j in range(min(2, len(pend))):
                c, t, kt, qt = items[pend[j]]
                if j > 0 and not (c == 1 and items[pend[0]][0] == 2): continue
                if c <= cap[g % N] and g >= st0[par] + slast[(kt, qt)] + 7:
                    p_[pend[j]] = g - st0[par]; cap[g % N] -= c; acc += c; pend.pop(j); placed = True
                    assert g - st0[par] < n + sfirst[(kt, qt)] - 1, (par, g, t)
                    if par == 0: assert g < 80 + 46
                    break
            if not placed: g += 1
        vpos.append(p_)
    return dict(mem=mem, vpos=vpos, bar=bar, kfirst=kfirst, pos=pos)
PLAN = plan_macro()

def attn_step(i, stride, qk=True, pv=True, czero=False):
    par = i & 1; n = slen(i); s0 = 80*par; BARG = PLAN['bar'][par] - s0
    ex = lambda t, mx: stride != 0 or t <= mx
    M = (qk_mfmas(i) if qk else [None]*48) + (pv_mfmas(i, czero) if pv else [None]*(n-48))
    G = Gaps(M); G.barg = BARG
    for gg, m in sorted(PLAN['mem'].items()):
        g = gg - s0
        if not 0 <= g < n: continue
        kind, mp, f, rd, early = m
        step = i+1 if early else i
        if kind == 'v':
            if step >= 1 and ex(step, 63): G.mem(g, vfrag_read(f, rd, step, stride))
        elif kind == 'k':
            if ex(step+1, 63): G.mem(g, kfrag_read(f, step+1, stride))
        else:
            if f < 3:
                if not ex(step+4, 63): continue
                mi, d = k_dma(step+4, sKo, stride)[f]; post = f"s_add_u32 s{sKo}, s{sKo}, {SLOT}" if f == 2 else None
            else:
                if not ex(step+3, 64): continue
                l = u_dma(step+3, sVo, stride); mi, d = l[f-3]; post = f"s_add_u32 s{sVo}, s{sVo}, {2*SLOT}" if (f-3 == len(l)-1 and (step+3) % 2 == 0) else None
            G.sc(g-1, mi); G.mem(g, d)
            if post: G.sc(g+1, Ins(post))
    kf = PLAN['kfirst']
    KG = OPT['kg']
    for f0 in range(0, 12, KG):
        fs = range(f0, f0+KG); g = min(kf[f] for f in fs) - 1
        if g < 0:
            if ex(i+2, 63): G.sc(n-1, Wait(lgkm=[('kf', (i+2)*12+f, stride*12) for f in fs]))
        elif qk: G.sc(g, Wait(lgkm=[('kf', (i+1)*12+f, stride*12) for f in fs]))
    if pv:
        VG = OPT['vg']
        for dl in range(0, 8 if par else 4, VG):
            g = 48 + 8*dl - 1
            if g < BARG-1: G.sc(g, Wait(lgkm=[('vf', i*16+2*(dl+VG)-1, stride*16)]))
    need = []
    if ex(i+2, 63): need.append(('K', i+2, stride))
    if ex(i+1, 64): need.append(('U', i+1, stride))
    if need: G.sc(BARG-1, Wait(vm=need, lgkm='all')); G.sc(BARG, Ins("s_barrier"))
    else: G.sc(BARG-1, Wait(lgkm='all'))
    if ex(i, 63):
        pn = slen(i-1)
        for (c, t, kt, qt), g in zip(softmax_items(i), PLAN['vpos'][1-par]):
            if g >= pn: G.valu(g-pn, Ins(t), c)
    if qk:
        for (c, t, kt, qt), g in zip(softmax_items(i+1), PLAN['vpos'][par]):
            if g < n: G.valu(g, Ins(t), c)
    return G

C_STAGE = 20480; C_NS = 8; C_LA = 6; C_D = 6
cS = 0; cF = 80; cRING = 160
CB = [('v', 224), ('v', 192), ('v', 208), ('v', 160), ('v', 176), ('v', 44), ('a', 224), ('a', 240)]
CA = [0, 1, 2, 3, 6, 7, 4, 5]
def cb(n, o):
    if 6 <= n < 9:
        ks, qs = divmod(o//4, 2); return vr(64 + 4*(4*(2*(n-6)+ks) + qs))
    c, b = CB[n % C_NS]
    return f"{c}[{b+o}:{b+o+3}]"
def c_wloads(n, stride=0):
    sl = n % C_NS; out = []
    for j in range(5):
        if j in (0, 4): w = Ins(f"s_add_u32 m0, s{cM}, {CA[sl]*C_STAGE + (1024 if j == 4 else 0)}")
        out.append(([w] if j in (0, 4) else [], Ins(f"buffer_load_dwordx4 v{vL16 if j < 4 else vL1K}, s[12:15], s{cWo} offen offset:{min(j,3)*1024}{SC1} lds",
                            tag=('cw', n, stride), slot=('C', sl), gen=(n, stride), m0reuse=True, m0w=w)))
    po = [Ins(f"s_add_u32 s{cWo}, s{cWo}, 10240")]
    if n >= 6 and n % 3 == 2: po = [Ins(f"s_mul_i32 s{cWo}, s{sHS+(n-8)//3}, {6*5120}"), Ins(f"s_add_u32 s{cWo}, s{cWo}, s{cW1}")]
    return out, po
def cb2(n, o):
    c, b = CB[n % C_NS]
    return f"{c}[{b+o}:{b+o+1}]"
def c_bloads(n, stride=0):
    out = []
    for ks in range(2):
        for qs in range(2):
            if n < 6 and (2*n+ks) % 3 == 1:
                for hf in range(2):
                    sc = [Ins(f"s_add_u32 s{sT+5}, s{cBo}, {4096*ks}")] if (qs == 0 and hf == 0) else []
                    out.append((sc, Ins(f"buffer_load_dwordx2 {cb2(n,(ks*2+qs)*4+2*hf)}, v{cvH+qs}, s[24:27], s{sT+5} offen offset:{512*hf}{SC1}", tag=('cb', n, stride))))
            else:
                out.append(([], Ins(f"buffer_load_dwordx4 {cb(n,(ks*2+qs)*4)}, v{cvB+2*ks+qs}, s[24:27], s{cBo} offen{SC1}", tag=('cb', n, stride))))
    po = [Ins(f"s_add_u32 s{cBo}, s{cBo}, 8192")]
    if n >= 6 and n % 3 == 2: po = [Ins(f"s_mul_i32 s{cBo}, s{sHS+(n-8)//3}, {6*4096}")]
    return out, po
def c_aread(n, f, stride=0):
    sl = n % C_NS; ks, t = ((f & 1, f >> 1) if OPT['pair'] else divmod(f, 10)); sh, tt = divmod(t, 5)
    return Ins(f"ds_read_b128 {ar(cRING+4*(f%10))}, v{cvA + CA[sl]//3} offset:{(CA[sl]%3)*C_STAGE + sh*10240 + ks*5120 + tt*1024}",
               tag=('caf', n*20+f, stride*20), slot=('C', sl), gen=(n, stride))
def c_stage(n, acc, L, VQ, czero=False, nxt=True, wtags=(), after=(), cap=50, red=False):
    M = []; first = {}
    for t in range(10):
        for qs in range(2):
            if red and t < 5 and qs == 0: continue
            for k, ks in enumerate((0, 1) if qs == 0 else (1, 0)):
                d = ar(acc + (t*2+qs)*4); first.setdefault(t, len(M))
                M.append(Ins(f"{MF} {d}, {ar(cRING+4*((2*t+ks)%10))}, {cb(n,(ks*2+qs)*4)}, {'0' if (czero and k==0) else d}"))
    G = Gaps(M); n_ = len(M)
    def rpos(f):
        t, e = divmod(f - C_LA, 2); w = (first[t+1] if t < 9 else n_) - first[t]
        return first[t] + e*(w//2)
    BG = rpos(20) - 1
    for f in range(C_LA, 20): G.mem(rpos(f), c_aread(n, f))
    if nxt:
        for f in range(C_LA): G.mem(rpos(20+f), c_aread(n+1, f))
        G.sc(BG-1, Wait(vm=[('cw', n+1)] + list(wtags), cap=cap)); G.sc(BG, Ins("s_barrier"))
        G.sc(n_-1, Wait(vm=[('cb', n+1)], cap=cap))
    for t in range(1, 10):
        g = first[t] - (2 if first[t] - first[t-1] > 2 else 1)
        if g == BG-1: g -= 1
        G.sc(g, Wait(lgkm=('caf', n*20+2*t+1)))
    if nxt: G.sc(n_-2, Wait(lgkm=('caf', (n+1)*20+1)))
    for m in after: G.mem(BG+2, m)
    nm = sum(1 for sc, m in L if m is not None)
    free = [g for g in range(1, n_-2) if not G.N[g] and g != BG]
    if nm > len(free): free = [g for g in range(1, n_-2) if G.cap[g] >= 1 and g != BG]
    assert nm <= len(free), (n, nm, len(free))
    slots = [free[min(len(free)-1, int((k+0.5)*len(free)/max(nm,1)))] for k in range(nm)] + [n_-1]
    k = 0; lo = 0
    for sc, m in L:
        g = max(slots[k] - 1, lo); pos = []
        for s_ in reversed(sc):
            while g > lo and not G.sc_free(g): g -= 1
            pos.append((g, s_))
            if g > lo: g -= 1
        for g_, s_ in reversed(pos): G.sc(g_, s_)
        if pos: lo = max(lo, max(x[0] for x in pos))
        if m is not None:
            G.N[slots[k]].append(m); G.cap[slots[k]] -= 1; lo = min(slots[k] + 1, n_-1); k += 1
    for g in range(n_):
        while VQ and G.cap[g] >= VQ[0][0]:
            c, t = VQ.pop(0); G.valu(g, Ins(t), c)
            if c == 2: break
    return G
def c_deferred(ns):
    seq = [(t, n, ks) for t in range(5) for n in ns for ks in range(2)]
    def rd(i):
        t, n, ks = seq[i]; x = c_aread(n, 2*t+ks); sl = n % C_NS
        return Ins(f"ds_read_b128 {ar(cRING+4*(i%10))}, " + x.text.split(", ", 1)[1], tag=('df', i), slot=x.meta['slot'], gen=x.meta['gen'])
    pre = [rd(i) for i in range(8)]
    G = Gaps([Ins(f"{MF} {ar(cS+t*8)}, {ar(cRING+4*(i%10))}, {cb(n, ks*8)}, {ar(cS+t*8)}") for i, (t, n, ks) in enumerate(seq)])
    for i in range(8, len(seq)): G.mem(i-8, rd(i))
    for i in range(2, len(seq), 2): G.sc(i-1, Wait(lgkm=('df', i+1)))
    k = min(OPT['dsp'], len(seq))
    return pre, [Wait(lgkm=('df', 1))] + G.items(0, k), G.items(k)
def o_store(j, qt, reg):
    return ([Ins(f"s_xor_b32 s{sT+3}, s{sOb}, {qt*1024}")] + ([Ins(f"s_add_u32 s{sT+3}, s{sT+3}, {j*4096}")] if j else []),
            Ins(f"buffer_store_dwordx4 {vr(reg)}, v{vL16}, s[24:27], s{sT+3} offen{SC1}", tag=('O', 0)))
EARLY = [(0, 2), (0, 3), (1, 2), (1, 3), (2, 2), (2, 3)]
def pmap(dst):
    if dst == 'sp': return lambda sg, k: ((112, 148)[sg] + k) if sg < 2 else (240 + k if k < 8 else 122 + k - 8)
    if dst == 'alt': return lambda sg, k: (72 + 16*sg + k) if k < 8 else (120 + 16*sg + k - 8)
    return lambda sg, k: dst + 12*sg + k
def c_cvt(p, acc, dst, tmp):
    rm = pmap(dst)
    for sg in range(1, 4):
        qs, sh = sg & 1, sg >> 1
        for tt in range(5):
            t = tmp + 4*(tt & 1)
            for r in range(4): p(f"v_accvgpr_read_b32 v{t+r}, a{acc+((sh*5+tt)*2+qs)*4+r}")
            d = rm(sg-1, 2*tt)
            p(f"v_cvt_pk_bf16_f32 v{d}, v{t}, v{t+1}"); p(f"v_cvt_pk_bf16_f32 v{d+1}, v{t+2}, v{t+3}")
def xb_ops(op, dst, sg, soff, tag):
    rm = pmap(dst)
    return [Ins(f"buffer_{op}_dwordx4 {vr(rm(sg,0))}, v{vL16}, s[20:23], s{soff} offen{SC1}", tag=tag),
            Ins(f"buffer_{op}_dwordx4 {vr(rm(sg,4))}, v{vL16}, s[20:23], s{soff} offen offset:1024{SC1}", tag=tag),
            Ins(f"buffer_{op}_dwordx2 {vr(rm(sg,8),2)}, v{vL8}, s[20:23], s{soff} offen offset:2048{SC1}", tag=tag)]
def c_pub(src, kind):
    out = []
    for sg in range(1, 4):
        sc = [f"s_xor_b32 s{sT}, s{cC}, {sg}", f"s_mul_i32 s{sT}, s{sT}, {3*2*4*XBW}", f"s_add_u32 s{sT}, s{sT}, s{cXB}", f"s_add_u32 s{sT}, s{sT}, {((sg-1)*2+kind)*4*XBW}"]
        for k, m in enumerate(xb_ops('store', src, sg-1, sT, ('pub', kind))):
            out.append(([Ins(x) for x in sc] if k == 0 else [], m))
    return out
def c_get(p, dst, kind, extra=None):
    p(f"s_mul_i32 s{sT}, s{cC}, {3*2*4*XBW}"); p(f"s_add_u32 s{sT}, s{sT}, s{cXB}")
    if kind: p(f"s_add_u32 s{sT}, s{sT}, {4*XBW}")
    if extra: p(f"s_add_u32 s{sT}, s{sT}, s{extra}")
    for sg in range(3):
        p.add(xb_ops('load', dst, sg, sT, ('get', kind)))
        if sg < 2: p(f"s_add_u32 s{sT}, s{sT}, {2*4*XBW}")
def c_sum(p, R, src, tmp):
    for sg in range(3):
        for i in range(10):
            t = tmp + 2*(i & 1); q = src + 12*sg + i
            p(f"v_lshlrev_b32 v{t}, 16, v{q}"); p(f"v_and_b32 v{t+1}, 0xffff0000, v{q}")
            p(f"v_pk_add_f32 {vr(R+2*i,2)}, {vr(R+2*i,2)}, {vr(t,2)}")
def c_setup(p):
    p(f"s_lshr_b32 s{cC}, s{sH}, 3")
    p(f"v_mov_b32 v{cvA}, v{vL16}"); p(f"v_add_u32 v{cvA+1}, {3*C_STAGE}, v{vL16}"); p(f"v_add_u32 v{cvA+2}, {6*C_STAGE}, v{vL16}")
    p(f"s_and_b32 s{sT}, s{sW}, 1"); p(f"s_mul_i32 s{cW1}, s{sT}, 5120")
    p(f"s_lshr_b32 s{sT+4}, s{sX10}, 10")
    p(f"v_add_u32 v{cvB}, s{sX10}, v{vL16}"); p(f"v_xor_b32 v{cvB+1}, 1024, v{cvB}")
    p(f"v_add_u32 v{cvB+2}, 4096, v{cvB}"); p(f"v_add_u32 v{cvB+3}, 4096, v{cvB+1}")
    p(f"v_lshlrev_b32 v{vL8}, 3, v{vLANE}"); p(f"v_add_u32 v{cvH}, s{sX10}, v{vL8}"); p(f"v_xor_b32 v{cvH+1}, 1024, v{cvH}")
    p(f"s_lshr_b32 s{sT+1}, s{sW}, 1")
    p(f"s_lshl_b32 s{sT+2}, s{sI}, 2"); p(f"s_add_u32 s{sT+3}, s{sW}, s{sT+2}")
    p(f"s_mul_i32 s{sOb}, s{sH}, {6*4096}"); p(f"s_add_u32 s{sOb}, s{sOb}, s{sX10}")
    p(f"s_lshr_b32 s{sT}, s{cC}, 1"); p(f"s_xor_b32 s{sT}, s{sT}, s{sT+1}"); p(f"s_and_b32 s{sT+2}, s{sH}, 3"); p(f"s_lshl_b32 s{sT+5}, s{sT+2}, 1"); p(f"s_add_u32 s{sT}, s{sT}, s{sT+5}")
    p(f"s_mul_i32 s{sT}, s{sT}, {240*5120}"); p(f"s_add_u32 s{sT}, s{sT}, {WS_WP}")
    srd(p, 12, kWS, 240*5120, f"s{sT}")
    p(f"s_mul_i32 s{cM}, s{sW}, 5120")
    p(f"s_lshl_b32 s{sT+3}, s{sT+3}, 2"); p(f"s_add_u32 s{sT+3}, s{sT+3}, s{sT+4}"); p(f"s_mul_i32 s{cXO}, s{sT+3}, 20480")
    p(f"s_mul_i32 s{sT+2}, s{sT+2}, 320"); p(f"s_add_u32 s{cXO}, s{cXO}, s{sT+2}")
    p(f"s_lshr_b32 s{sT}, s{cC}, 1"); p(f"s_mul_i32 s{sT}, s{sT}, 160"); p(f"s_add_u32 s{cXO}, s{cXO}, s{sT}")
    p(f"s_lshl_b32 s{cTile}, s{sI}, 3"); p(f"s_and_b32 s{sT}, s{sH}, 7"); p(f"s_add_u32 s{cTile}, s{cTile}, s{sT}")
    p(f"s_mul_i32 s{cXB}, s{cTile}, {4*3*2*4*XBW}"); p(f"s_mul_i32 s{sT}, s{sW}, {XBW}"); p(f"s_add_u32 s{cXB}, s{cXB}, s{sT}")
    srd(p, 20, kWS, SZ_XB, WS_XB)
    p(f"s_lshl_b32 s{sVOTE}, s{sW}, 2"); p(f"s_add_u32 s{sVOTE}, s{sVOTE}, {VOTE}")
    p(f"s_and_b32 s{sT}, s{sH}, 28"); p(f"s_xor_b32 s{sT+1}, s{sT}, 4")
    own = [sHS+4+k for k in range(3)] if OPT['hord'] == 0 else [sHS+k for k in range(3)]
    oth = [sHS+k for k in range(4)] if OPT['hord'] == 0 else [sHS+3+k for k in range(4)]
    for k in range(4): p(f"s_add_u32 s{oth[k]}, s{sT+1}, {k}")
    for k in range(3):
        p(f"s_add_u32 s{own[k]}, s{sT}, {k}"); p(f"s_cmp_ge_u32 s{own[k]}, s{sH}"); p(f"s_addc_u32 s{own[k]}, s{own[k]}, 0")
    p(f"s_mov_b32 s{sHS+7}, 0")
    p(f"s_lshl_b32 s{sFO}, s{sI}, 2"); p(f"s_add_u32 s{sFO}, s{sFO}, s{cC}"); p(f"s_lshl_b32 s{sFO}, s{sFO}, 7"); p(f"s_add_u32 s{sFO}, s{sFO}, {FL_O}")
    p(f"s_lshl_b32 s{sFH}, s{sI}, 5"); p(f"s_add_u32 s{sFH}, s{sFH}, s{sH}"); p(f"s_lshl_b32 s{sFH}, s{sFH}, 3"); p(f"s_add_u32 s{sFH}, s{sFH}, {FL_H}")
    p(f"s_lshl_b32 s{sFX}, s{cTile}, 7"); p(f"s_add_u32 s{sFX}, s{sFX}, {FL_X}")
def c_fcursors():
    return [Ins(x) for x in (f"s_mul_i32 s{cWo}, s{cC}, 12", f"s_add_u32 s{cWo}, s{cWo}, 192", f"s_lshl_b32 s{cBo}, s{cWo}, 12",
                             f"s_mul_i32 s{cWo}, s{cWo}, 5120", f"s_add_u32 s{cWo}, s{cWo}, s{cW1}")]
def flat_loads(ns):
    pf = []
    for n in ns:
        for l, po in (c_wloads(n), c_bloads(n)):
            for sc, m in l: pf.append([list(sc), m, []])
            pf[-1][2].append(po)
    return pf

class Rec:
    def __init__(self): self.q = []
    def __call__(self, t): self.q.append((2 if t.startswith(TRANS) else 1, t))

def phase_c(p):
    p.wait(vm=('cw', 3))
    def unit(l, po): return [(list(sc), m) for sc, m in l] + [(list(po), None)]
    pf = []
    for n in range(OPT['nb'], 6): pf += unit(*c_bloads(n))
    for qt in range(4): p(f"v_mov_b32 v{4+2*qt}, v{LR+qt}"); p(f"v_mov_b32 v{4+2*qt+1}, v{LR+qt}")
    def emit(x):
        p.add(x[0])
        if x[1] is not None: p.add(x[1])
    order = [x for x in EARLY[OPT['ncv']:]] + [(j, qt) for j in range(6) for qt in range(4) if (j, qt) not in EARLY]
    stores = []
    for n, (j, qt) in enumerate(order):
        b = 28 + 8*(n % 2); d = 64 + 4*(4*j+qt)
        for _ in range(OPT['pfi']):
            if pf: emit(pf.pop(0))
            if pf and pf[0][1] is None: emit(pf.pop(0))
        for ee in range(2):
            for r in range(4): p(f"v_accvgpr_read_b32 v{b+4*ee+r}, a{((2*j+ee)*4+qt)*4+r}")
        for h in range(4): p(f"v_pk_mul_f32 {vr(b+2*h,2)}, {vr(b+2*h,2)}, {vr(4+2*qt,2)}")
        for h in range(4): p(f"v_cvt_pk_bf16_f32 v{d+h}, v{b+2*h}, v{b+2*h+1}")
        stores.append(o_store(j, qt, d))
        if n % OPT['cdiv'] == 0: emit(stores.pop(0))
    stamp(p, 8)
    if OPT.get('lst') == 3: stamp(p, 1, True)
    p.wait(vm=[('cw', 0), ('cb', 0)]); p("s_barrier")
    for f in range(C_LA): p.add(c_aread(0, f))
    srd(p, 4, kX, SZ_XN); srd(p, 8, kOUT, SZ_XN)
    sSO, sSX, sSF, sPF = 16, 17, 18, 19
    p(f"s_and_b32 s{sT}, s{sH}, 7"); p(f"s_lshl_b32 s{sSO}, s{sT}, 3"); p(f"s_add_u32 s{sSO}, s{sSO}, s{sFO}")
    p(f"s_lshl_b32 s{sSX}, s{cC}, 3"); p(f"s_add_u32 s{sSX}, s{sSX}, s{sFX}")
    p(f"s_add_u32 s{sSF}, s{sSX}, {FL_F-FL_X}"); p(f"s_add_u32 s{sPF}, s{sFX}, {FL_F-FL_X}")
    p(f"s_mul_i32 s{cWo}, s{sH}, {6*5120}"); p(f"s_add_u32 s{cWo}, s{cWo}, s{cW1}")
    p.wait(lgkm=('caf', 1))
    swB = [Ins(f"s_mul_i32 s{cBo}, s{sHS}, {6*4096}")]
    SG = OPT['sigst']; PC = OPT['pc']; FC = OPT['fc']
    R = 200; F = 128+0; T = 28; GF = 64
    Q0 = stores + pf
    wn = 6; bn = 9; pub = []; VQ = []
    for n in range(30):
        L = []; cnt = 0
        capn = OPT['fv'] if n <= SG else (OPT['cu'] if n <= PC + 6 else 11)
        while Q0 and (cnt < capn or Q0[0][1] is None):
            x = Q0.pop(0); L.append(x); cnt += x[1] is not None
        while True:
            wok = wn < 30 and wn <= n + 6; bok = bn < 30 and n > PC and bn <= n + 7
            must = wok and wn <= n + 2
            if bok and (bn <= wn or not wok) and cnt + 4 <= capn: L += unit(*c_bloads(bn)); bn += 1; cnt += 4
            elif wok and (must or (not Q0 and cnt + 5 <= capn)): L += unit(*c_wloads(wn)); wn += 1; cnt += 5
            else: break
        if n == PC: L.insert(0, ([], poll_load(vP8, sFO)))
        if n == 6:
            r = Rec(); r("v_nop"); r("v_nop"); r("v_nop"); r("v_nop"); c_cvt(r, cF, 'alt', 28); VQ = r.q; pub = c_pub('alt', 1); rest = True
        if n > 8 and rest and not pub:
            assert not VQ
            r = Rec(); rest = False
            for tt in range(5):
                for k in range(4): r(f"v_accvgpr_read_b32 v{F+tt*4+k}, a{cF+(tt*2)*4+k}")
            r(f"v_and_b32 v4, 15, v{vLANE}"); r(f"v_lshrrev_b32 v5, 4, v{vLANE}"); r("v_mul_u32_u24 v4, 1280, v4"); r("v_lshl_add_u32 v4, v5, 3, v4")
            VQ = r.q
        if pub and n >= OPT['pubst']:
            done = 3 - (-(-len(VQ)//30))
            k = min(OPT['pubn'], 3*done - (9 - len(pub)))
            L += pub[:k]; pub = pub[k:]
        if n == OPT['xst']:
            for t in range(5): L.append(([], Ins(f"buffer_load_dwordx2 {vr(100+2*t,2)}, v4, s[4:7], s{cXO} offen offset:{32*t}")))
        if n == FC: L.insert(0, ([], poll_load(vP4, sPF)))
        if n == FC + 1:
            q = Prog(); c_get(q, GF, 1, extra=sSF); sc = []
            for x in q.items:
                if x.kind == 'vm': L.append((sc, x)); sc = []
                else: sc.append(x)
        wt = []; af = []
        if n == SG: wt = [('O', 0)]; af = [signal(sSO)]; assert not any(x[1] is not None and x[1].meta.get('tag') == ('O', 0) for x in L)
        if n == OPT['fsig']: wt = [('pub', 1)]; af = [signal(sSF)]; assert not pub
        G = c_stage(n, cF if n < 6 else cS, L, VQ, czero=(n in (0, 6)), nxt=(n < 29), wtags=wt, after=af, cap=63-OPT['cu']-3, red=(n >= 30-OPT['ndef']))
        p.add(G.items())
        if n == SG: stamp(p, 9)
        if OPT.get('lst') == 3 and n % 2 == 1: stamp(p, 2 + n//2, True)
        if n == PC:
            stamp(p, 10); p.wait(vm=('pl', 0)); poll(p, "C_po", vP8, sFO, pre=True); p.add(swB); stamp(p, 11)
        if n == FC:
            p.wait(vm=('pl', 0)); p(f"v_cmp_ne_u64 vcc, {vr(vNON,2)}, {vr(vPOLL,2)}"); p("s_cmp_eq_u64 vcc, 0"); p(f"s_cselect_b32 s{sSF}, 0, 0x10000000")
    assert wn == 30 and bn == 30 and not Q0
    stamp(p, 12)
    ND = OPT['ndef']
    pre, dbody, dbody2 = c_deferred(range(30-ND, 30)) if ND else ([], [], [])
    p.add(pre)
    if not ND: p("s_nop 6")
    SP = 'sp'
    pb = c_pub(SP, 0)
    for sg in range(3):
        r = Prog(); c_cvt(r, cS, SP, 28); k = len(r.items)//3
        p.add(r.items[sg*k:(sg+1)*k])
        for sc, m in pb[3*sg:3*sg+3]: p.add(sc); p.add(m)
    p.add(dbody)
    p("s_waitcnt vmcnt(0)"); p("s_barrier")
    p.add(signal(sSX))
    stamp(p, 13)
    p.add(poll_load(vP4, sFX))
    p.add(dbody2)
    for tt in range(5):
        for k in range(4): p(f"v_accvgpr_read_b32 v{R+tt*4+k}, a{cS+(tt*2)*4+k}")
    SP = 160
    p(f"s_cmp_eq_u32 s2, 0"); p(f"s_cselect_b32 s{sT+1}, 0, 0x10000000")
    p.add(signal(sT+1))
    p("s_waitcnt vmcnt(0)")
    p(f"s_mov_b32 s{sT+2}, 0"); p(f"s_cmp_eq_u32 s{sSF}, 0"); p("s_cbranch_scc1 C_px_chk")
    poll(p, "C_pf", vP4, sPF, slp=6)
    c_get(p, GF, 1)
    poll(p, "C_px", vP4, sFX)
    stamp(p, 14)
    c_get(p, SP, 0)
    c_sum(p, F, GF, 28)
    p(f"s_mov_b32 s{sT}, {f32(-LOG2E)}")
    for i in range(20): p(f"v_mul_f32 v{T+i}, s{sT}, v{F+i}")
    for i in range(20): p(f"v_exp_f32 v{T+i}, v{T+i}")
    for i in range(20): p(f"v_add_f32 v{T+i}, 1.0, v{T+i}")
    for i in range(20): p(f"v_rcp_f32 v{T+i}, v{T+i}")
    for i in range(20): p(f"v_mul_f32 v{F+i}, v{F+i}, v{T+i}")
    for i in range(10):
        p(f"v_lshlrev_b32 v{T+2*i}, 16, v{100+i}"); p(f"v_and_b32 v{T+2*i+1}, 0xffff0000, v{100+i}")
    p("s_waitcnt vmcnt(0)")
    stamp(p, 15)
    c_sum(p, R, SP, 52)
    for i in range(0, 20, 2): p(f"v_pk_fma_f32 {vr(R+i,2)}, {vr(R+i,2)}, {vr(F+i,2)}, {vr(T+i,2)}")
    for i in range(10): p(f"v_cvt_pk_bf16_f32 v{F+i}, v{R+2*i}, v{R+2*i+1}")
    for t in range(5): p(f"buffer_store_dwordx2 {vr(F+2*t,2)}, v4, s[8:11], s{cXO} offen offset:{32*t}")

def a_wloads(it):
    st = it % 3; out = []; sl = [('A', st)]
    for j in range(2):
        for blk in range(3):
            sc = [Ins(f"s_add_u32 m0, s{sWQm}, {st*A_STAGE + blk*8192 + j*1024 - blk*128}")]
            if blk == 0: sc.insert(0, Ins(f"s_mov_b32 s{sT}, {(it*64 + j*16)*12288}"))
            out.append((sc, Ins(f"buffer_load_dwordx4 v{vWQ}, s[12:15], s{sT} offen offset:{blk*128} lds", tag=('A', it), slot=sl, gen=(it, 0))))
    for j in range(3):
        sc = [Ins(f"s_add_u32 m0, s{sGUm}, {st*A_STAGE + 24576 + j*1024}")]
        if j == 0: sc.insert(0, Ins(f"s_mov_b32 s{sT}, {it*64*3072}"))
        out.append((sc, Ins(f"buffer_load_dwordx4 v{vGU+j}, s[16:19], s{sT} offen lds", tag=('A', it), slot=sl, gen=(it, 0))))
    return out
vTA = 44; vTB = 45; vTD = 46
def touch_setup(p):
    t = vT
    p(f"s_lshl_b32 s{sT}, s{sI}, 3"); p(f"s_lshl_b32 s{sT+1}, s{sW}, 1"); p(f"s_add_u32 s{sT+1}, s{sT+1}, s{sT}")
    p(f"v_and_b32 v{t}, 1, v{vLANE}"); p(f"v_lshrrev_b32 v{t+1}, 1, v{vLANE}")
    p(f"v_add_u32 v{t+2}, s{sT+1}, v{t}"); p(f"v_mul_u32_u24 v{t+2}, 12288, v{t+2}"); p(f"v_lshl_add_u32 v{t+2}, v{t+1}, 7, v{t+2}")
    p(f"v_mov_b32 v{t+3}, 0x10000000"); p(f"v_cmp_gt_u32 vcc, 6, v{vLANE}"); p("s_nop 1"); p(f"v_cndmask_b32 v{vTA}, v{t+3}, v{t+2}, vcc")
    p(f"s_and_b32 s{sT+1}, s{sW}, 1"); p(f"s_lshl_b32 s{sT+1}, s{sT+1}, 2"); p(f"s_add_u32 s{sT+1}, s{sT+1}, s{sT}")
    p(f"v_add_u32 v{t+2}, s{sT+1}, v{t+1}"); p(f"v_mul_u32_u24 v{t+2}, 3072, v{t+2}"); p(f"v_mul_u32_u24 v{t}, 92, v{t}"); p(f"v_add_u32 v{t+2}, v{t+2}, v{t}")
    p(f"v_cmp_gt_u32 vcc, 8, v{vLANE}"); p("s_nop 1"); p(f"v_cndmask_b32 v{vTB}, v{t+3}, v{t+2}, vcc")
def touch(it):
    if not OPT['warm'] or it > 9: return []
    d = vTD + 2*(it % 4)
    return [([Ins(f"s_mov_b32 s{sT}, {it*64*12288}")], Ins(f"buffer_load_dword v{d}, v{vTA}, s[12:15], s{sT} offen")),
            ([Ins(f"s_mov_b32 s{sT}, {it*64*3072}")], Ins(f"buffer_load_dword v{d+1}, v{vTB}, s[16:19], s{sT} offen"))]
def a_xloads(it):
    st = it % 3; out = []
    for ks in range(2):
        for qt in range(4):
            sc = [Ins(f"s_xor_b32 s{sT+1}, s{sX10}, {(it*2+ks)*4096 + qt*1024}")]
            out.append((sc, Ins(f"buffer_load_dwordx4 {ar(XB+32*st+(ks*4+qt)*4)}, v{vL16}, s[20:23], s{sT+1} offen{SC1}", tag=('A', it))))
    return out
def a_read(it, f):
    st = it % 3; ks, nt = ((f & 1, f >> 1) if OPT['pair'] else divmod(f, 18)); rs = (it*36+f) % 8; o = []
    for rd in range(2):
        if nt < 12:
            j = nt >> 1; e = nt & 1
            a = vAQ + 3*st + (j & 1); off = (j >> 1)*8192 + ks*4096 + rd*2048 + 8*e
        else:
            mtx, tt = divmod(nt-12, 3)
            a = vAQ + 3*st + 2; off = 24576 + mtx*6144 + ks*3072 + rd*1536 + tt*32
        o.append(Ins(f"ds_read_b64_tr_b16 {ar(RING+4*rs+2*rd,2)}, v{a} offset:{off}", tag=('af', it*36+f), slot=('A', st), gen=(it, 0)))
    return o

SCR = 81920
def side_issue(p):
    p(f"s_and_b32 s{sT}, s{sH}, 1"); p(f"s_cmp_eq_u32 s{sT}, 1"); p("s_cbranch_scc1 S_o0")
    srd(p, 4, kX, SZ_XN)
    p(f"v_and_b32 v64, 15, v{vLANE}"); p(f"v_lshrrev_b32 v65, 4, v{vLANE}")
    p("v_mul_u32_u24 v66, 1280, v64"); p("v_lshl_add_u32 v66, v65, 4, v66")
    p(f"s_lshl_b32 s{sT+5}, s{sI}, 4"); p(f"s_lshr_b32 s{sT}, s{sH}, 1"); p(f"s_add_u32 s{sT+5}, s{sT+5}, s{sT}")
    p(f"s_mul_i32 s{sT}, s{sT+5}, 20480"); p(f"s_mul_i32 s{sT+1}, s{sW}, 320"); p(f"s_add_u32 s{sT}, s{sT}, s{sT+1}")
    for j in range(5): p(f"buffer_load_dwordx4 {vr(80+4*j)}, v66, s[4:7], s{sT} offen offset:{64*j}")
    wsrds(p)
    p("s_branch S_c0")
    p("S_o0:")
    wsrds(p)
    if OPT['ctouch']: p(f"buffer_load_dword v200, v{vCT}, s[96:99], 0 offen")
    p("S_c0:")

def wsrds(p):
    p(f"s_mul_i32 s{sT+2}, s{sH}, 384")
    srd(p, 12, kWQ, None, f"s{sT+2}"); p(f"s_sub_u32 s14, {640*12288}, s{sT+2}")
    p(f"s_cmp_lt_u32 s{sW}, 2"); p(f"s_cselect_b32 s16, s{kWG}, s{kWU}"); p(f"s_cselect_b32 s17, s{kWG+1}, s{kWU+1}")
    p(f"s_mul_i32 s{sT+2}, s{sH}, 96")
    srd(p, 16, 16, None, f"s{sT+2}"); p(f"s_sub_u32 s18, {640*3072}, s{sT+2}")

sPKs = 70; sPKm = 71; sPKd = 69
vPKs = 54; vPK = 55; vPK2 = 59
PKL = K_RING
def pack_setup(p):
    t = vT
    p(f"s_lshl_b32 s{sT+3}, s{sI}, 5"); p(f"s_add_u32 s{sT+3}, s{sT+3}, s{sH}")
    p(f"s_cmp_lt_u32 s{sT+3}, 192")
    p(f"s_cselect_b32 s60, s{kWO}, s{kWD}"); p(f"s_cselect_b32 s61, s{kWO+1}, s{kWD+1}")
    p(f"s_mov_b32 s{sT}, {6144*1280}"); p(f"s_cselect_b32 s62, s{sT}, {1536*1280}"); p("s_mov_b32 s63, 0x20000")
    p(f"s_cselect_b32 s{sT}, 0, 192"); p(f"s_sub_u32 s{sT}, s{sT+3}, s{sT}"); p(f"s_mul_i32 s{sT}, s{sT}, 40960")
    p(f"s_mul_i32 s{sPKm}, s{sW}, 10240"); p(f"s_add_u32 s{sPKs}, s{sT}, s{sPKm}"); p(f"s_add_u32 s{sPKm}, s{sPKm}, {PKL}")
    p(f"s_mul_i32 s{sPKd}, s{sW}, 480"); p(f"s_add_u32 s{sPKd}, s{sPKd}, s{sT+3}"); p(f"s_mul_i32 s{sPKd}, s{sPKd}, 5120")
    p(f"s_cmp_lt_u32 s{sT+3}, 240"); p(f"s_cselect_b32 s{sPKd}, s{sPKd}, 0x10000000")
    p(f"v_lshrrev_b32 v{t}, 3, v{vLANE}"); p(f"v_mul_u32_u24 v{t}, 1280, v{t}")
    p(f"v_bfe_u32 v{t+1}, v{vLANE}, 4, 2"); p(f"v_lshlrev_b32 v{t+1}, 1, v{t+1}"); p(f"v_and_b32 v{t+2}, 7, v{vLANE}"); p(f"v_xor_b32 v{t+1}, v{t+1}, v{t+2}")
    p(f"v_lshl_add_u32 v{vPKs}, v{t+1}, 4, v{t}")
    p(f"v_lshrrev_b32 v{t}, 5, v{vLANE}"); p(f"v_mul_u32_u24 v{t}, 10240, v{t}")
    p(f"v_bfe_u32 v{t+1}, v{vLANE}, 2, 3"); p(f"v_lshl_add_u32 v{t}, v{t+1}, 7, v{t}")
    p(f"v_and_b32 v{t+1}, 3, v{vLANE}"); p(f"v_lshl_add_u32 v{t}, v{t+1}, 3, v{t}")
    p(f"v_bfe_u32 v{t+1}, v{vLANE}, 3, 2")
    p(f"s_mul_i32 s{sT}, s{sW}, 10")
    for k in range(4):
        p(f"s_add_u32 s{sT+1}, s{sT}, {k}"); p(f"s_and_b32 s{sT+2}, s{sT+1}, 3"); p(f"s_lshr_b32 s{sT+1}, s{sT+1}, 2"); p(f"s_lshl_b32 s{sT+1}, s{sT+1}, 10"); p(f"s_add_u32 s{sT+1}, s{sT+1}, {PKL}")
        p(f"v_xor_b32 v{t+2}, s{sT+2}, v{t+1}"); p(f"v_lshl_add_u32 v{t+2}, v{t+2}, 5, v{t}"); p(f"v_add_u32 v{vPK+k}, s{sT+1}, v{t+2}")
    p(f"v_add_u32 v{vPK2}, {240*5120-1024}, v{vL16}")
def pack_dmas():
    return [([Ins(f"s_add_u32 m0, s{sPKm}, {1024*j - 128*j}")],
             Ins(f"buffer_load_dwordx4 v{vPKs}, s[60:63], s{sPKs} offen offset:{128*j} lds", tag=('pk', 0), slot=[('K', k) for k in range(4)], gen=(99, 0))) for j in range(10)]
def pack_reads(t):
    return [([], Ins(f"ds_read_b64_tr_b16 {vr(28+4*(t%4)+2*rd,2)}, v{vPK+(t&3)} offset:{(t>>2)*1024 + rd*20480}", slot=[('K', k) for k in range(4)], tag=('pr', t))) for rd in range(2)]
def pack_store(t):
    sc = [Ins(f"s_add_u32 s{sPKd}, s{sPKd}, 1024")] if t in (5, 9) else []
    v, o = (vL16, t*1024) if t < 4 else ((vL1K, 3072) if t == 4 else (vPK2, min(t-5, 3)*1024))
    return (sc, Ins(f"buffer_store_dwordx4 {vr(28+4*(t%4))}, v{v}, s[60:63], s{sPKd} offen offset:{o}{SC1}", tag=('H', 0)))
def has_m0(G, g): return any(isinstance(x, Ins) and ('s', 'm0') in x.wr for x in G.S[g % G.n])
def has_dma(G, g): return any(x.meta.get('dma') for x in G.N[g % G.n])
def fill(G, lst, g0, g1, step, cnt=999, strict=False):
    BARG = G.barg; g = g0
    while lst and g < g1 and cnt > 0:
        sc, m, po = lst[0]
        ok = G.cap[g] >= 1 and not (BARG-2 <= g <= BARG+1)
        if strict: ok = ok and not G.N[g] and (m.kind == 'ds' or G.cap[g] == 2)
        if m.meta.get('dma') and sc: ok = ok and not (has_m0(G, g-2) or has_m0(G, g-1) or has_m0(G, g) or has_dma(G, g-1) or has_dma(G, g))
        if ok:
            lst.pop(0); cnt -= 1
            for s_ in sc: G.sc(g-1, s_)
            G.N[g].append(m); G.cap[g] -= 1
            for s_ in po: G.sc(g+1, s_)
            g += step
        else: g += 1
def free_valu(G, g):
    while G.cap[g] < 1: g += 1
    return g
def free_sc(G, g, n=1):
    while not all(G.sc_free(g+k) for k in range(n)): g += 1
    return g

def side_work(p, nyoung):
    p(f"s_and_b32 s{sT}, s{sH}, 1"); p(f"s_cmp_eq_u32 s{sT}, 1"); p("s_cbranch_scc1 S_pk1")
    ln = Prog(); q = ln
    srd(q, 4, kWS, SZ_XN)
    q(f"v_lshlrev_b32 v67, 4, v64"); q(f"v_add_u32 v67, {SCR}, v67")
    q(f"s_lshl_b32 s{sT}, s{sW}, 2"); q(f"v_add_u32 v68, s{sT}, v67")
    q(f"s_waitcnt vmcnt({nyoung})")
    X = 80; U = 104
    for i in range(20):
        q(f"v_lshlrev_b32 v{U+2*i}, 16, v{X+i}"); q(f"v_and_b32 v{U+2*i+1}, 0xffff0000, v{X+i}")
    q(f"v_pk_add_f32 v[70:71], {vr(U,2)}, {vr(U+2,2)}"); q(f"v_pk_add_f32 v[72:73], {vr(U+4,2)}, {vr(U+6,2)}")
    for i in range(8, 40, 4):
        q(f"v_pk_add_f32 v[70:71], v[70:71], {vr(U+i,2)}"); q(f"v_pk_add_f32 v[72:73], v[72:73], {vr(U+i+2,2)}")
    q("v_pk_add_f32 v[70:71], v[70:71], v[72:73]"); q("v_add_f32 v70, v70, v71")
    xlane(q, "v_add_f32", 70, 71)
    q(f"v_mul_f32 v70, {f32(-1/160)}, v70"); q("v_mov_b32 v71, v70")
    q(f"v_pk_add_f32 v[74:75], {vr(U,2)}, v[70:71]"); q(f"v_pk_add_f32 v[76:77], {vr(U+2,2)}, v[70:71]")
    q("v_pk_mul_f32 v[72:73], v[74:75], v[74:75]"); q("v_pk_mul_f32 v[78:79], v[76:77], v[76:77]")
    for i in range(4, 40, 4):
        q(f"v_pk_add_f32 v[74:75], {vr(U+i,2)}, v[70:71]"); q(f"v_pk_add_f32 v[76:77], {vr(U+i+2,2)}, v[70:71]")
        q("v_pk_fma_f32 v[72:73], v[74:75], v[74:75], v[72:73]"); q("v_pk_fma_f32 v[78:79], v[76:77], v[76:77], v[78:79]")
    q("v_pk_add_f32 v[72:73], v[72:73], v[78:79]"); q("v_add_f32 v71, v72, v73")
    xlane(q, "v_add_f32", 71, 72)
    q("ds_write_b32 v68, v70"); q("ds_write_b32 v68, v71 offset:256"); q("s_waitcnt lgkmcnt(0)"); q("s_barrier")
    q("ds_read_b128 v[72:75], v67"); q("ds_read_b128 v[76:79], v67 offset:256"); q("s_waitcnt lgkmcnt(0)")
    q("v_add_f32 v70, v72, v73"); q("v_add_f32 v71, v74, v75"); q("v_add_f32 v70, v70, v71"); q("v_mul_f32 v71, -0.25, v70".replace("-0.25", f32(-0.25)))
    q("v_add_f32 v76, v76, v77"); q("v_add_f32 v78, v78, v79"); q("v_add_f32 v76, v76, v78")
    for k in range(4): q(f"v_add_f32 v{72+k}, v{72+k}, v71")
    q("v_mul_f32 v72, v72, v72"); q("v_fmac_f32 v72, v73, v73"); q("v_fmac_f32 v72, v74, v74"); q("v_fmac_f32 v72, v75, v75")
    q(f"v_mul_f32 v76, {f32(1/640)}, v76"); q(f"v_fmac_f32 v76, {f32(0.25)}, v72"); q("v_mov_b32 v72, v76")
    q("v_cvt_pk_bf16_f32 v73, v71, v72")
    q("v_lshlrev_b32 v71, 16, v73"); q("v_and_b32 v72, 0xffff0000, v73")
    q(f"v_add_f32 v72, {f32(1e-5)}, v72")
    q("v_cvt_pk_bf16_f32 v72, v72, v72"); q("v_lshlrev_b32 v72, 16, v72")
    q("v_sqrt_f32 v72, v72"); q("s_nop 0")
    q("v_cvt_pk_bf16_f32 v72, v72, v72"); q("v_lshlrev_b32 v72, 16, v72")
    q("v_rcp_f32 v72, v72")
    q(f"s_lshr_b32 s{sT}, s{sT+5}, 2"); q(f"s_mul_i32 s{sT}, s{sT}, 81920")
    q(f"s_and_b32 s{sT+1}, s{sT+5}, 3"); q(f"s_lshl_b32 s{sT+1}, s{sT+1}, 10"); q(f"s_add_u32 s{sT}, s{sT}, s{sT+1}")
    q(f"s_mul_i32 s{sT+1}, s{sW}, 20480"); q(f"s_add_u32 s{sT}, s{sT}, s{sT+1}")
    q("v_sub_f32 v70, 0, v71"); q("v_mov_b32 v71, v70"); q("v_mov_b32 v73, v72")
    for i in range(20):
        t = 74 + 2*(i & 1)
        q(f"v_pk_add_f32 {vr(t,2)}, {vr(U+2*i,2)}, v[70:71]")
        q(f"v_cvt_pk_bf16_f32 v{t}, v{t}, v{t+1}")
        q(f"v_and_b32 v{t+1}, 0xffff0000, v{t}"); q(f"v_lshlrev_b32 v{t}, 16, v{t}")
        q(f"v_pk_mul_f32 {vr(t,2)}, {vr(t,2)}, v[72:73]")
        q(f"v_cvt_pk_bf16_f32 v{X+i}, v{t}, v{t+1}")
        if i % 4 == 3:
            q(f"buffer_store_dwordx4 {vr(X+i-3)}, v{vL16}, s[4:7], s{sT} offen{SC1}"); q(f"s_add_u32 s{sT}, s{sT}, 4096")
    q(f"s_lshr_b32 s{sT+1}, s{sT+5}, 2"); q(f"s_lshl_b32 s{sT+1}, s{sT+1}, {OPT['lnsh']}"); q(f"s_and_b32 s{sT}, s{sT+5}, 3"); q(f"s_lshl_b32 s{sT}, s{sT}, 3"); q(f"s_add_u32 s{sT+1}, s{sT+1}, s{sT}"); q(f"s_add_u32 s{sT+1}, s{sT+1}, {FL_LN}")
    q("s_waitcnt vmcnt(0)"); q("s_barrier")
    q.add(signal(sT+1))
    stamp(q, 17)
    q("S_pk1:")
    return ln.items

def kernel():
    p = Prog()
    p("s_cmp_ge_u32 s2, 256"); p("s_cbranch_scc1 K_end")
    p(f"s_load_dwordx16 s[72:87], s[0:1], 0"); p(f"s_load_dwordx8 s[88:95], s[0:1], 64")
    p("s_getpc_b64 s[96:97]"); p("K_pc:"); p("s_mov_b32 s98, K_codeend-K_pc"); p("s_mov_b32 s99, 0x20000")
    if OPT['ct0']:
        p(f"v_lshlrev_b32 v{vCT}, {OPT['ct0']+4}, v0"); p(f"buffer_load_dword v201, v{vCT}, s[96:99], 0 offen")
    p(f"v_lshrrev_b32 v1, 6, v0"); p(f"v_and_b32 v{vLANE}, 63, v0")
    p(f"v_readfirstlane_b32 s{sW}, v1")
    p(f"s_and_b32 s{sH}, s2, 7"); p(f"s_lshl_b32 s{sH}, s{sH}, 2"); p(f"s_bfe_u32 s{sT}, s2, 0x20003"); p(f"s_add_u32 s{sH}, s{sH}, s{sT}")
    p(f"s_lshr_b32 s{sI}, s2, 5")
    p(f"s_bfe_u32 s{sX10}, s{sH}, 0x10002"); p(f"s_lshl_b32 s{sX10}, s{sX10}, 1"); p(f"s_bfe_u32 s{sT}, s{sH}, 0x10003"); p(f"s_add_u32 s{sX10}, s{sX10}, s{sT}"); p(f"s_lshl_b32 s{sX10}, s{sX10}, 10")
    p(f"v_lshlrev_b32 v{vL16}, 4, v{vLANE}"); p(f"v_add_u32 v{vL1K}, 1024, v{vL16}")
    if OPT['stamp']: p(f"v_mov_b32 v{vSTAMP}, 0")
    p(f"s_lshr_b32 s{sT}, s2, 4"); p(f"s_lshl_b32 s{sT}, s{sT}, 2"); p(f"s_add_u32 s{sT}, s{sT}, s{sW}"); p(f"s_and_b32 s{sT}, s{sT}, 15"); p(f"s_lshl_b32 s{sT}, s{sT}, 13")
    p(f"v_lshlrev_b32 v{vCT}, 7, v{vLANE}"); p(f"v_add_u32 v{vCT}, s{sT}, v{vCT}")
    stamp(p, 0)
    p("s_waitcnt lgkmcnt(0)")
    side_issue(p)
    srd(p, sFL, kWS, SZ_FL, WS_FL)
    p(f"s_load_dwordx2 s[{sNON}:{sNON+1}], s[{sFL}:{sFL+1}], 0")
    t = vT
    p(f"v_lshrrev_b32 v{t}, 3, v2"); p(f"v_and_b32 v{t+1}, 7, v2"); p(f"v_bfe_u32 v{t+2}, v2, 4, 2")
    p(f"v_lshlrev_b32 v{t+3}, 1, v{t+2}"); p(f"v_xor_b32 v{t+3}, v{t+3}, v{t+1}"); p(f"v_lshlrev_b32 v{t+3}, 4, v{t+3}")
    p(f"v_lshrrev_b32 v{t+4}, 2, v{t}"); p(f"v_lshlrev_b32 v{t+4}, 3, v{t+4}")
    p(f"v_and_b32 v{t+5}, 3, v{t}"); p(f"v_add_u32 v{t+4}, v{t+4}, v{t+5}")
    p(f"s_lshr_b32 s{sT+2}, s{sW}, 1"); p(f"s_lshl_b32 s{sT+2}, s{sT+2}, 5")
    p(f"s_and_b32 s{sT+3}, s{sW}, 1"); p(f"s_lshl_b32 s{sT+3}, s{sT+3}, 2"); p(f"s_add_u32 s{sT+2}, s{sT+2}, s{sT+3}")
    p(f"v_add_u32 v{t+4}, s{sT+2}, v{t+4}")
    p(f"v_mul_u32_u24 v{t+4}, 12288, v{t+4}"); p(f"v_add_u32 v{vWQ}, v{t+4}, v{t+3}")
    p(f"s_lshl_b32 s{sT+2}, s{sW}, 3"); p(f"v_add_u32 v{t+4}, s{sT+2}, v{t}")
    p(f"v_mul_u32_u24 v{t+5}, 384, v{t+4}"); p(f"v_add_u32 v{vDV}, v{t+5}, v{t+3}")
    p(f"v_bfe_u32 v{t+6}, v{t+4}, 1, 3"); p(f"v_xor_b32 v{t+6}, v{t+6}, v{t+1}")
    p(f"v_lshl_add_u32 v{vDK}, v{t+6}, 4, v{t+5}")
    p(f"s_and_b32 s{sT+3}, s{sW}, 1"); p(f"s_lshl_b32 s{sT+3}, s{sT+3}, 5")
    p(f"s_and_b32 s{sT+4}, s{sH}, 1"); p(f"s_lshl_b32 s{sT+4}, s{sT+4}, 1")
    for j in range(3):
        p(f"v_add_u32 v{t+4}, {64*j}, v2")
        p(f"v_mul_u32_u24 v{t+5}, 171, v{t+4}"); p(f"v_lshrrev_b32 v{t+5}, 10, v{t+5}")
        p(f"v_mul_u32_u24 v{t+6}, 6, v{t+5}"); p(f"v_sub_u32 v{t+6}, v{t+4}, v{t+6}")
        p(f"v_add_u32 v{t+6}, s{sT+4}, v{t+6}"); p(f"v_subrev_u32 v{t+7}, 6, v{t+6}"); p(f"v_min_u32 v{t+6}, v{t+6}, v{t+7}")
        p(f"v_bfe_u32 v{t+7}, v{t+5}, 2, 2"); p(f"v_lshlrev_b32 v{t+7}, 3, v{t+7}")
        p(f"v_lshrrev_b32 v{t+8}, 4, v{t+5}"); p(f"v_lshl_add_u32 v{t+7}, v{t+8}, 2, v{t+7}")
        p(f"v_and_b32 v{t+8}, 3, v{t+5}"); p(f"v_add3_u32 v{t+7}, v{t+7}, v{t+8}, s{sT+3}")
        p(f"v_mul_u32_u24 v{t+7}, 3072, v{t+7}"); p(f"v_lshl_add_u32 v{vGU+j}, v{t+6}, 4, v{t+7}")
    p(f"s_lshl_b32 s{sWQm}, s{sW}, 11"); p(f"s_mul_i32 s{sGUm}, s{sW}, 3072")
    ny = 0
    if not OPT['lnfirst']:
        for sc, m in a_wloads(0):
            p.add(sc); p("s_nop 0"); p.add(m); ny += 1
    p(f"v_mov_b32 v{t}, 0x10000000"); p("v_cmp_eq_u32 vcc, 0, v0"); p("s_nop 1"); p(f"v_cndmask_b32 v{vSIG}, v{t}, v0, vcc")
    p("s_waitcnt lgkmcnt(0)")
    p(f"s_add_u32 s{sNON}, s{sNON}, 0x7f4a7c15"); p(f"s_addc_u32 s{sNON+1}, s{sNON+1}, 0x9e3779b9")
    p(f"v_mov_b32 v{vNON}, s{sNON}"); p(f"v_mov_b32 v{vNON+1}, s{sNON+1}")
    stamp(p, 1)
    head = p.items
    ln = side_work(p, ny)
    p = Prog()
    touch_setup(p)
    pack_setup(p)
    p(f"v_lshrrev_b32 v{t}, 2, v2"); p(f"v_and_b32 v{t+1}, 3, v2"); p(f"v_bfe_u32 v{t+2}, v2, 3, 2")
    p(f"v_lshlrev_b32 v{t+3}, 7, v{t}")
    p(f"v_lshlrev_b32 v{t+4}, 1, v{t+2}"); p(f"v_xor_b32 v{t+4}, v{t+4}, v{t+1}")
    p(f"v_lshl_add_u32 v{vAQ}, v{t+4}, 4, v{t+3}"); p(f"v_xor_b32 v{vAQ+1}, 64, v{vAQ}")
    p(f"v_mul_u32_u24 v{t+4}, 96, v{t}"); p(f"v_lshl_add_u32 v{vAQ+2}, v{t+1}, 3, v{t+4}")
    for s in (1, 2):
        for j in range(3): p(f"v_add_u32 v{vAQ+3*s+j}, {s*A_STAGE}, v{vAQ+j}")
    p(f"v_lshl_add_u32 v{t+4}, v{t+2}, 5, v{t+3}"); p(f"v_lshl_add_u32 v{t+4}, v{t+1}, 3, v{t+4}")
    p(f"v_add_u32 v{vV}, {V_RING}, v{t+4}")
    for u in range(1, 4): p(f"v_xor_b32 v{vV+u}, {32*u}, v{vV}")
    p(f"v_lshlrev_b32 v{vP4}, 3, v{t+1}")
    p(f"v_and_b32 v{t}, 15, v2"); p(f"v_lshrrev_b32 v{t+1}, 4, v2"); p(f"v_bfe_u32 v{t+2}, v2, 1, 3")
    p(f"v_xor_b32 v{t+1}, v{t+1}, v{t+2}"); p(f"v_lshlrev_b32 v{t}, 7, v{t}"); p(f"v_lshl_add_u32 v{t}, v{t+1}, 4, v{t}")
    p(f"v_add_u32 v{vK0}, {K_RING}, v{t}"); p(f"v_xor_b32 v{vK0+1}, 64, v{vK0}")
    p(f"v_and_b32 v{vP8}, 7, v2"); p(f"v_lshlrev_b32 v{vP8}, 3, v{vP8}")
    p(f"s_lshl_b32 s{sT+1}, s{sI}, 2"); p(f"s_add_u32 s{sT+1}, s{sT+1}, s{sW}")
    p(f"s_mul_i32 s{sT+2}, s{sT+1}, 81920"); srd(p, 20, kWS, 81920, f"s{sT+2}")
    p(f"s_mul_i32 s{sT+2}, s{sT+1}, {240*4096}"); p(f"s_add_u32 s{sT+2}, s{sT+2}, {WS_OF}"); srd(p, 24, kWS, 240*4096, f"s{sT+2}")
    p(f"s_lshl_b32 s{sT+4}, s{sT+1}, {OPT['lnsh']}"); p(f"s_add_u32 s{sT+4}, s{sT+4}, {FL_LN}")
    p(f"s_lshl_b32 s{sT+2}, s{sW}, 10")
    p(f"s_add_u32 s{sKb}, s{sT+2}, {K_RING}"); p(f"s_add_u32 s{sVb}, s{sT+2}, {V_RING}")
    p(f"s_mov_b32 s{sPass}, 0")
    p(f"s_mul_i32 s{sT+2}, s{sH}, 786432")
    srd(p, 4, kK, 786432, f"s{sT+2}"); srd(p, 8, kV, 786432, f"s{sT+2}")
    def w1(q):
        n = 0
        for it in range(2, OPT['td']):
            for sc, m in touch(it): q.add(sc); q.add(m); n += 1
        for sc, m in a_wloads(1):
            q.add(sc); q("s_nop 0"); q.add(m); n += 1
        return n
    p(f"s_bitcmp0_b32 s{sH}, 0"); p("s_cbranch_scc1 S_e0")
    c0 = p.items; p = Prog(); w1(p); odd0 = p.items; p = Prog()
    p("S_e0:")
    stamp(p, 2)
    poll(p, "A_pl", vP4, sT+4, slp=OPT["lslp"])
    stamp(p, 3)
    for it in range(2):
        for sc, m in a_xloads(it): p.add(sc); p.add(m)
    p("s_barrier")
    LA = 4
    for f in range(LA): p.add(a_read(0, f))
    p(f"s_bitcmp1_b32 s{sH}, 0"); p("s_cbranch_scc1 S_o1")
    c1 = p.items; p = Prog(); n1 = w1(p); p(f"s_waitcnt vmcnt({8+n1})"); p("s_branch S_c2"); ev1 = p.items
    p = Prog(); p("S_o1:"); p("s_waitcnt vmcnt(8)"); od1 = p.items
    p = Prog(); p("S_c2:")
    p.wait(lgkm=('af', 1))
    stamp(p, 4)
    for it in range(10):
        st = it % 3; M = []
        seq = [(ks, nt, qt) for nt in range(18) for qt in range(4) for ks in range(2)] if OPT['pair'] else [(ks, nt, qt) for ks in range(2) for nt in range(18) for qt in range(4)]
        for ks, nt, qt in seq:
            rs = (it*36 + (2*nt+ks if OPT['pair'] else ks*18+nt)) % 8
            d = vr(QACC + (nt*4+qt)*4) if nt < 12 else ar(((nt-12)*4+qt)*4)
            c = "0" if (it == 0 and ks == 0) else d
            M.append(Ins(f"{MF} {d}, {ar(RING+4*rs)}, {ar(XB+32*st+(ks*4+qt)*4)}, {c}"))
        G = Gaps(M)
        BG = 4*(36-LA)
        for f in range(LA, 36):
            r = a_read(it, f); g = 4*(f-LA) - (2 if f >= 30 else 0)
            g = G.mem_from(g, r[0]); G.mem_from(g+1, r[1])
        if it < 9:
            G.sc(BG-1, Wait(vm=('A', it+1), lgkm='all')); G.sc(BG, Ins("s_barrier"))
            g = BG+1
            for f in range(LA):
                r = a_read(it+1, f)
                g = max(g, 4*((36+f-8)|1)+4)
                g = G.mem_from(g, r[0]); g = G.mem_from(g+1, r[1]) + 1
            G.sc(143, Wait(lgkm=('af', (it+1)*36+1)))
        for f in range(2, 36, 2):
            if 4*f-1 < BG-1 or it == 9: G.sc(4*f-1, Wait(lgkm=('af', it*36+f+1)))
        L = []
        if it+2 < 10: L = touch(it+OPT['td']) + a_wloads(it+2) + a_xloads(it+2)
        elif it == 8:
            for tl in range(4):
                for b, (mi, d) in enumerate(k_dma(tl, sKo)):
                    L.append((([Ins(f"s_mov_b32 s{sKo}, {tl*SLOT}")] if b == 0 else []) + [mi], d))
        else:
            G.valu(0, Ins(f"v_add_u32 v{vDV2}, {SLOT}, v{vDV}"))
            for b, (mi, d) in enumerate(u_dma(1, sVo) + u_dma(2, sVo)):
                d.meta['slot'] = [d.meta['slot'], ('A', 1), ('A', 2)]
                L.append((([Ins(f"s_mov_b32 s{sVo}, 0")] if b == 0 else []) + [mi], d))
        P0 = OPT['pk0']
        if it in (P0, P0+1): L = L + pack_dmas()[5*(it-P0):5*(it-P0)+5]
        g = 2
        for sc, m in L:
            while G.N[g] or not G.sc_free(g-1) or (len(sc) > 1 and not G.sc_free(g-2)): g += 1
            for k, s_ in enumerate(reversed(sc)): G.sc(g-1-k, s_)
            G.mem(g, m); g += 4
        assert g < BG
        if it == 4:
            G.S[BG-1][-1].vm = [G.S[BG-1][-1].vm, ('pk', 0)]
            q = Prog(); srd(q, 60, kWS, SZ_WP, WS_WP); g = free_sc(G, 100, 4)
            for k, x in enumerate(q.items): G.sc(g+k, x)
        if it in (5, 6, 7):
            ts = [(0, 1, 2, 3), (4, 5, 6), (7, 8, 9)][it-5]
            g = 3
            for t in ts:
                for sc, m in pack_reads(t): g = G.mem_from(g, m) + 4
            g = 79
            for t in ts:
                sc, m = pack_store(t)
                while G.N[g] or not G.sc_free(g-1): g += 1
                for s_ in sc: G.sc(g-1, s_)
                G.mem(g, m); g += 8
            assert g - 8 < BG - 2
        p.add(G.items())
    stamp(p, 5)
    c_setup(p)
    p(f"s_mov_b32 s{sT+4}, {f32(-LOG2E)}")
    p(f"s_lshr_b32 s{sT+2}, s{sH}, 1"); p(f"s_mul_i32 s{sT+2}, s{sT+2}, 3"); p(f"s_add_u32 s{sT+2}, s{sT+2}, 192"); p(f"s_lshl_b32 s{sT+2}, s{sT+2}, 12"); p(f"s_add_u32 s{sT+2}, s{sT+2}, s{sX10}")
    p(f"s_and_b32 s{sT+3}, s{sH}, 1"); p(f"s_lshl_b32 s{sT}, s{sT+3}, 13"); p(f"s_add_u32 s{sT}, s{sT}, s{sT+2}")
    p(f"s_lshl_b32 s{sT+1}, s{sT+3}, 9"); p(f"s_add_u32 s{sT+1}, s{sT+1}, s{sT+2}"); p(f"s_add_u32 s{sT+1}, s{sT+1}, 4096")
    for qt in range(4):
        o = 52 if qt & 1 else 44
        for tt in range(3):
            b = vT
            for r in range(4): p(f"v_accvgpr_read_b32 v{b+r}, a{(tt*4+qt)*4+r}")
            for r in range(4): p(f"v_mul_f32 v{b+8+r}, s{sT+4}, v{b+r}")
            for r in range(4): p(f"v_exp_f32 v{b+8+r}, v{b+8+r}")
            for r in range(4): p(f"v_accvgpr_read_b32 v{b+4+r}, a{48+(tt*4+qt)*4+r}")
            for r in range(4): p(f"v_add_f32 v{b+8+r}, 1.0, v{b+8+r}")
            for r in range(4): p(f"v_rcp_f32 v{b+8+r}, v{b+8+r}")
            for r in range(0, 4, 2): p(f"v_pk_mul_f32 {vr(b+r,2)}, {vr(b+r,2)}, {vr(b+4+r,2)}")
            for r in range(0, 4, 2): p(f"v_pk_mul_f32 {vr(b+r,2)}, {vr(b+r,2)}, {vr(b+8+r,2)}")
            p(f"v_cvt_pk_bf16_f32 v{o+2*tt}, v{b}, v{b+1}"); p(f"v_cvt_pk_bf16_f32 v{o+2*tt+1}, v{b+2}, v{b+3}")
        p(f"s_xor_b32 s{sT+2}, s{sT}, {qt*1024}"); p(f"s_xor_b32 s{sT+3}, s{sT+1}, {qt*1024}")
        p(f"buffer_store_dwordx4 {vr(o)}, v{vL16}, s[24:27], s{sT+2} offen{SC1}", tag=('H', 0))
        p(f"buffer_store_dwordx2 {vr(o+4,2)}, v{vL8}, s[24:27], s{sT+3} offen{SC1}", tag=('H', 0))
    p(f"s_mov_b32 s{sT+4}, {f32(QSCALE)}"); p(f"s_mov_b32 s{sT+5}, s{sT+4}")
    for ks in range(6):
        for qt in range(4):
            d = QF + (ks*4+qt)*4
            for e in range(2):
                s = QACC + ((2*ks+e)*4+qt)*4
                p(f"v_pk_mul_f32 {vr(s,2)}, {vr(s,2)}, s[{sT+4}:{sT+5}]")
                p(f"v_pk_mul_f32 {vr(s+2,2)}, {vr(s+2,2)}, s[{sT+4}:{sT+5}]")
                p(f"v_cvt_pk_bf16_f32 v{d+2*e}, v{s}, v{s+1}"); p(f"v_cvt_pk_bf16_f32 v{d+2*e+1}, v{s+2}, v{s+3}")
    for qt in range(4): p(f"v_mov_b32 v{MXI+qt}, 0xff800000")
    pa = p.items

    a = Prog()
    L2 = OPT.get('lst') == 2
    a("K_attn:")
    a(f"s_mov_b32 s{sKo}, {4*SLOT}"); a(f"s_mov_b32 s{sVo}, {2*SLOT}")
    a.wait(vm=[('K', 0), ('K', 1)]); a("s_barrier")
    stamp(a, 6)
    if L2: stamp(a, 1, True)
    for f in range(6): a.add(kfrag_read(f, 0))
    G = Gaps(qk_mfmas(-1, czero=True))
    a.wait(lgkm=('kf', 2)); G.sc(1, Wait(lgkm=('kf', 5)))
    for f in range(6, 12): G.mem(2*(f-6)+2, kfrag_read(f, 0))
    G.sc(23, Wait(lgkm=('kf', 11)))
    a.add(G.items())
    a("s_barrier")
    for g, m in sorted(PLAN['mem'].items()):
        kind, mp, f, rd, early = m
        if g > PLAN['bar'][1] and early:
            if kind == 'k': a.add(kfrag_read(f, 1))
            elif kind == 'dma':
                mi, d = k_dma(4, sKo)[f] if f < 3 else u_dma(3, sVo)[f-3]
                a.add(mi); a("s_nop 0"); a.add(d)
                if f == 2: a(f"s_add_u32 s{sKo}, s{sKo}, {SLOT}")
    for qt in range(4):
        s0 = SR + qt*4; s1 = SR + 16 + qt*4; m = vX + qt
        a(f"v_max3_f32 v{m}, v{s0}, v{s0+1}, v{MXI+qt}")
        a(f"v_max3_f32 v{m}, v{s0+2}, v{s0+3}, v{m}")
        a(f"v_max3_f32 v{m}, v{s1}, v{s1+1}, v{m}")
        a(f"v_max3_f32 v{m}, v{s1+2}, v{s1+3}, v{m}")
    xlane4(a, "v_max_f32", [vX+q for q in range(4)], vX+4)
    for qt in range(4):
        for r in range(4): a(f"v_sub_f32 v{MR+4*qt+r}, 0, v{vX+qt}")
        a(f"v_mov_b32 v{LR+qt}, 0")
        for kt in range(2):
            for r in range(0, 4, 2):
                s = SR + (kt*4+qt)*4 + r
                a(f"v_pk_add_f32 {vr(s,2)}, {vr(s,2)}, {vr(MR+4*qt,2)}")
    for (c, t_, kt, qt), g in sorted(zip(softmax_items(0), PLAN['vpos'][1]), key=lambda x: x[1]):
        if g < 112: a(t_)
    a.wait(lgkm=[('kf', 12+f) for f in range(OPT['kg'])])
    a("s_nop 1")
    if L2: stamp(a, 2, True)
    for i in range(4):
        G = attn_step(i, 0, pv=(i > 0), czero=(i in (1, 2)))
        if i == 2:
            G.S[G.barg-1][-1].vm.append(('H', 0))
            l = [[[], signal(sFH), []]]; fill(G, l, G.barg+2, G.n-1, 1); assert not l
        a.add(G.items())
        if L2: stamp(a, 3+i, True)
    body = []
    for i in range(4, 8):
        G = attn_step(i, 4)
        if i == 7:
            G.sc(free_sc(G, 30), Ins(f"s_sub_u32 s{sCnt}, s{sCnt}, 1"))
            G.sc(G.n-1, Ins(f"s_cmp_gt_i32 s{sCnt}, 0"))
        body += G.items()
    body.append(Ins("s_cbranch_scc1 K_loop"))
    a(f"s_mov_b32 s{sCnt}, 13")
    a(".p2align 6"); a("K_loop:")
    mid = [Ins(f"s_cmp_lt_i32 s{sCnt}, 0"), Ins("s_cbranch_scc1 K_lx")] + hpoll_loads("0", ('hp', 13)) + \
          [Ins(f"buffer_load_dword v0, v{vCT}, s[96:99], 0 offen"), Ins("s_branch K_loop"), Ins("K_lx:")]
    a.add(Loop("K_loop", 14, body, mid=(12, mid)))
    if L2: stamp(a, 7, True)
    def wl(ns, extra_slots):
        out = []
        for n in ns:
            l, po = c_wloads(n)
            for sc, m in l:
                m.meta['slot'] = [m.meta['slot']] + extra_slots
                out.append([list(sc), m, []])
            out[-1][2].extend(po)
        return out
    def bl(ns):
        out = []
        for n in ns:
            l, po = c_bloads(n)
            for sc, m in l: out.append([list(sc), m, []])
            out[-1][2].extend(po)
        return out
    w012 = wl(range(3), [('A', 0)]); w34 = wl([3], [('U', 61 % 4)]) + wl([4], [('K', 0), ('K', 1), ('K', 2)]); w5 = wl([5], [('K', 2), ('K', 3)])
    b0 = bl([0]); b12 = bl(range(1, OPT['nb']))
    a.wait(vm=('hp', 13)); hpoll(a, "C_ph"); a.add(c_fcursors())
    if OPT['wt']:
        a(f"v_lshlrev_b32 v{vCT}, 7, v{vLANE}")
        a(f"s_mul_i32 s{sT}, s{cC}, 245760"); a(f"s_mul_i32 s{sT+1}, s{sI}, 30720"); a(f"s_add_u32 s{sT}, s{sT}, s{sT+1}")
        a(f"s_mul_i32 s{sT+1}, s{cW1}, 3"); a(f"s_add_u32 s{sT}, s{sT}, s{sT+1}"); a(f"s_add_u32 s{sT+1}, s{sT}, 7680")
    Gs = {}
    for i in range(60, 65):
        G = attn_step(i, 0, qk=(i < 63)); BARG = G.barg; Gs[i] = G
        if i == OPT['wt']:
            l = [[[], Ins(f"buffer_load_dword v{vX+k}, v{vCT}, s[12:15], s{sT+k} offen{SC1}"), []] for k in range(2)]
            fill(G, l, 30, G.n-1, 16); assert not l
        if i == 61: fill(G, w012, max(g for g in range(G.n) if has_dma(G, g))+3, G.n-1, OPT['esp']); w34 = w012 + w34
        if i == 62:
            fill(G, w34, 2, BARG-2, 4); w5 = w34 + w5
            fill(G, w5, BARG+2, G.n-1, 3)
        if i == 63:
            for k in range(16): G.mem(BARG+2+k+(k//2)//2, vfrag_read(k//2, k % 2, 64))
    def loc(g): return (Gs[63], 48+g) if g < 64 else (Gs[64], g-16)
    cur = [0]
    def put(text, cost=1, ming=0, gapafter=0, kind='v', **meta):
        g = max(cur[0], ming)
        while True:
            G, lg = loc(g)
            if kind == 's': break
            if G.cap[lg] >= cost and not (kind == 'm' and (G.N[lg] or G.V[lg])): break
            g += 1
        x = Ins(text, **meta)
        if kind == 'v': G.valu(lg, x, cost)
        elif kind == 'm': G.mem(lg, x)
        else: G.V[lg].append(x)
        cur[0] = g + gapafter
        return g
    L_ = [LR+q for q in range(4)]
    for sw in ("v_permlane32_swap_b32", "v_permlane16_swap_b32"):
        for k, r in enumerate(L_): put(f"v_mov_b32 v{vX+k}, v{r}", gapafter=(1 if k == 3 else 0))
        for k, r in enumerate(L_): put(f"{sw} v{r}, v{vX+k}", 2)
        for k, r in enumerate(L_): put(f"v_add_f32 v{r}, v{r}, v{vX+k}")
    put(f"s_mov_b32 s{sT}, 0x5d800000", kind='s')
    put(f"v_cmp_nle_f32 s[{sT+2}:{sT+3}], v{LR}, s{sT}")
    for qt in range(1, 4):
        put(f"v_cmp_nle_f32 vcc, v{LR+qt}, s{sT}", gapafter=1); put(f"s_or_b64 s[{sT+2}:{sT+3}], s[{sT+2}:{sT+3}], vcc", kind='s')
    put(f"s_or_b32 s{sT+2}, s{sT+2}, s{sT+3}", kind='s', gapafter=1)
    put(f"v_mov_b32 v{vX}, s{sT+2}"); put(f"v_mov_b32 v{vX+1}, s{sVOTE}", gapafter=1)
    g = put(f"ds_write_b32 v{vX+1}, v{vX}", kind='m', gapafter=1)
    assert g < Gs[63].barg - 48 - 3, g
    for qt in range(4): put(f"v_rcp_f32 v{LR+qt}, v{LR+qt}", 2)
    put(f"v_mov_b32 v{vK0}, {VOTE}", gapafter=1)
    for j, qt in EARLY[:OPT['ncv']]:
        for ee in range(2):
            for r in range(4): put(f"v_accvgpr_read_b32 v{vX+4*ee+r}, a{((2*j+ee)*4+qt)*4+r}", ming=16*j+8*ee+2*qt+1+6)
        sc, m = o_store(j, qt, vX)
        for x in sc: put(x.text, kind='s', gapafter=1)
        for r in range(8): put(f"v_mul_f32 v{vX+r}, v{vX+r}, v{LR+qt}")
        for h in range(4): put(f"v_cvt_pk_bf16_f32 v{vX+h}, v{vX+2*h}, v{vX+2*h+1}", gapafter=(1 if h == 3 else 0))
        put(m.text, kind='m', gapafter=2, tag=('O', 0))
    sys.stderr.write(f"final block: last gap {cur[0]}\n")
    l = w5 + b0 + b12
    fill(Gs[63], l, 30, 111, 3); fill(Gs[64], l, 49, 79, 3); assert not l, len(l)
    Gs[64].N[50].append(Ins(f"ds_read_b128 {vr(MXI)}, v{vK0}"))
    for i in range(60, 65):
        a.add(Gs[i].items())
        if L2: stamp(a, 8+i-60, True)
    stamp(a, 7)
    a(f"v_or_b32 v{MXI}, v{MXI}, v{MXI+1}"); a(f"v_or3_b32 v{MXI}, v{MXI}, v{MXI+2}, v{MXI+3}"); a("s_nop 0")
    a(f"v_readfirstlane_b32 s{sT}, v{MXI}")
    a(f"s_cmp_eq_u32 s{sT}, 0"); a("s_cbranch_scc1 K_epi")
    a(f"s_cmp_eq_u32 s{sPass}, 0"); a("s_cbranch_scc1 K_fb")

    e = Prog()
    e("K_epi:")
    if OPT.get('lst') == 2: stamp(e, 13, True)
    phase_c(e)
    if OPT['stamp']: e("s_waitcnt vmcnt(0)")
    stamp(e, 16); stamp_out(e)
    e("K_end:")
    e("s_endpgm")

    fb = Prog()
    fb("K_fb:")
    fb(f"s_mov_b32 s{sPass}, 1");  fb(f"s_mov_b32 s{sKo}, 0"); fb(f"s_mov_b32 s{sCnt}, 64")
    fb(f"v_xor_b32 v{vK0}, 64, v{vK0+1}")
    for qt in range(4): fb(f"v_mov_b32 v{MXI+qt}, 0xff800000")
    fb("s_waitcnt vmcnt(0)"); fb("s_barrier")
    fb("K_fbl:")
    fb.loop_begin("K_fbl", 2)
    for mi, d in k_dma(1000, sKo, 4):
        fb.add(mi); fb("s_nop 0"); fb.add(d)
    fb(f"s_add_u32 s{sKo}, s{sKo}, {SLOT}")
    fb("s_waitcnt vmcnt(0)"); fb("s_barrier")
    for f in range(12): fb.add(kfrag_read(f, 1000, 4))
    fb("s_waitcnt lgkmcnt(0)"); fb.add(qk_mfmas(999, czero=True))
    fb("s_nop 7")
    for qt in range(4):
        for kt in range(2):
            s0 = SR + (kt*4+qt)*4
            fb(f"v_max3_f32 v{MXI+qt}, v{s0}, v{s0+1}, v{MXI+qt}")
            fb(f"v_max3_f32 v{MXI+qt}, v{s0+2}, v{s0+3}, v{MXI+qt}")
    fb("s_barrier")
    fb(f"s_sub_u32 s{sCnt}, s{sCnt}, 1"); fb(f"s_cmp_lg_u32 s{sCnt}, 0"); fb("s_cbranch_scc1 K_fbl")
    fb.loop_end()
    for tl in range(4):
        fb(f"s_mov_b32 s{sKo}, {tl*SLOT}")
        for mi, d in k_dma(tl, sKo): fb.add(mi); fb("s_nop 0"); fb.add(d)
    fb(f"s_mov_b32 s{sVo}, 0")
    for mi, d in u_dma(1, sVo) + u_dma(2, sVo): fb.add(mi); fb("s_nop 0"); fb.add(d)
    fb("s_waitcnt vmcnt(0)")
    fb("s_branch K_attn")
    fb("K_codeend:")

    out = Prog(); out.items += head + ln + c0 + odd0 + c1 + ev1 + od1 + pa + a.items + e.items + fb.items
    res = Prog(); res.items += skip_retry(head + ln + c0 + c1 + ev1 + pa + a.items + e.items); res.resolve()
    chk1 = Prog(); chk1.items += skip_retry(head + ln + c0 + c1 + ev1 + pa + a.items + fb.items + a.items + e.items)
    chk2 = Prog(); chk2.items += head + c0 + odd0 + c1 + od1 + pa[:900]
    return out, [chk1, chk2]

def skip_retry(items):
    out = []; skipping = None
    for k, x in enumerate(items):
        if isinstance(x, Ins):
            if x.text.startswith("s_branch") and x.text.endswith("_chk"):
                skipping = x.text.split()[1] + ":"
            elif skipping and x.text == skipping: skipping = None
            elif skipping: continue
        out.append(x)
    return out

HDR = open('recurrent_scan__mha_block_cached__swiglu_ffn__prompt.s.ref').read().split('; Override launch')[0]
def main():
    out = [HDR.rstrip(), "; @launch grid=(256,1,1) block=(256,1,1) lds=163840", '.amdgcn_target "amdgcn-amd-amdhsa--gfx950"', ".text"]
    prog, chks = kernel()
    ok = all([c.check("k") for c in chks])
    out += [f".globl {NAME}", ".p2align 8", f".type {NAME},@function", f"{NAME}:"] + prog.emit()
    out += ['.section .rodata,"a"', ".p2align 6", f".amdhsa_kernel {NAME}", "  .amdhsa_next_free_vgpr 512", "  .amdhsa_next_free_sgpr 102",
            "  .amdhsa_accum_offset 256", "  .amdhsa_group_segment_fixed_size 0", "  .amdhsa_kernarg_size 96",
            "  .amdhsa_user_sgpr_count 2", "  .amdhsa_user_sgpr_kernarg_segment_ptr 1", "  .amdhsa_system_sgpr_workgroup_id_x 1", ".end_amdhsa_kernel"]
    print("\n".join(out))
    if not ok: sys.stderr.write("CHECK FAILED\n"); sys.exit(1)
main()
```

```python
import sys, struct
from asmlib import *

OPT = dict(stamp=0, look=5, barg=80, slp=2, fpub=0, warm=1, sigst=4, early=1, td=4, pair=1, pf0=14, pfi=1, cdiv=2, wt=0, hv=0, hord=0, ndef=4, dsp=40, pc=6, fc=24, cu=12, cst=12, fv=5, ncv=3, pubst=7, pubn=6, fsig=16, xst=26, ctouch=2, ct0=0, g0=27, span=88, dcap=0, bcap=1, lcap=1, dstep=7, noex=0, lnfirst=0, chain=6, nb=3, kg=3, vg=1, strict=0, pk0=1, bs=24, bl=28, lookg=20, vsp=4, phs=24, phl=40, lnsh=7, lslp=8, e0=60, esp=4)
for a in sys.argv[1:]:
    k, v = a.split('='); OPT[k] = int(v, 0)
NAME = "recurrent_scan__mha_block_cached__swiglu_ffn__prompt_kernel"

WS_XN = 0x0;        SZ_XN = 2048 * 640 * 2
WS_WP = 0x400000;   SZ_WP = 7680 * 640 * 2
WS_OF = 0x1000000;  SZ_OF = 2048 * 7680 * 2
XBW = 2560; WS_XB = 0x3000000;  SZ_XB = 64*4*3*2*4*XBW
WS_FL = 0x5000000;  SZ_FL = 32768
FL_LN = 24576; FL_H = 2048; FL_O = 4096; FL_X = 8192; FL_F = 16384
def f32(x): return "0x%08x" % struct.unpack('<I', struct.pack('<f', x))[0]
MF = "v_mfma_f32_16x16x32_bf16"
SC1 = " sc1"
def vr(b, n=4): return f"v[{b}:{b+n-1}]"
def ar(b, n=4): return f"a[{b}:{b+n-1}]"
LOG2E = 1.4426950408889634
QSCALE = LOG2E / (192 ** 0.5)

sW = 28; sH = 29; sKb = 30; sVb = 31; sKo = 32; sVo = 33; sCnt = 34; sPass = 35; sWQm = 36; sGUm = 37; sI = 38; cC = 39; sT = 40
cWo = 50; cBo = 51; cM = 52; cXO = 53; cXB = 54; cTile = 55; sFL = 56; sNON = 66; cW1 = 68; sFO = 46; sFH = 47; sFX = 48; sVOTE = 49; sX10 = 3; sOb = 100; sWPo = 101; sHo = 64 if not OPT['stamp'] else 35; sHS = 78
kX = 72; kK = 74; kV = 76; kWQ = 78; kWO = 80; kWG = 84; kWU = 86; kWD = 88; kOUT = 90; kWS = 94
vL1K = 1; vLANE = 2; vL16 = 3; vK0 = 4; vV = 6; vDK = 10; vDV = 11
vWQ = 12; vGU = 13; vAQ = 14; vAG = [18, 50]
cvA = 12; cvB = 15; cvH = 20; vL8 = 22
vSIG = 25; vNON = 26; vP4 = 60; vP8 = 61; vSTAMP = 62; vCT = 63
vT = 28; vPOLL = 248; vX = 248; vDV2 = 23
QACC = 64; QF = 64; SR = 160; PR = 192; MR = 224; LR = 240; MXI = 244
XB = 128; RING = 192; ARING = 224
A_STAGE = 40960
K_RING = 114688; V_RING = 65536; SLOT = 12288
VOTE = 114688 + 4096

def srd(p, d, lo, size, add=None):
    if add is None: p(f"s_mov_b32 s{d}, s{lo}"); p(f"s_mov_b32 s{d+1}, s{lo+1}")
    else: p(f"s_add_u32 s{d}, s{lo}, {add}"); p(f"s_addc_u32 s{d+1}, s{lo+1}, 0")
    if size is not None: p(f"s_mov_b32 s{d+2}, {size}")
    p(f"s_mov_b32 s{d+3}, 0x20000")

def xlane(p, op, a, t):
    p(f"v_mov_b32 v{t}, v{a}"); p("s_nop 1")
    p(f"v_permlane32_swap_b32 v{a}, v{t}"); p("s_nop 1")
    p(f"{op} v{a}, v{a}, v{t}")
    p(f"v_mov_b32 v{t}, v{a}"); p("s_nop 1")
    p(f"v_permlane16_swap_b32 v{a}, v{t}"); p("s_nop 1")
    p(f"{op} v{a}, v{a}, v{t}")
def xlane4(p, op, regs, t):
    for sw in ("v_permlane32_swap_b32", "v_permlane16_swap_b32"):
        for i, a in enumerate(regs): p(f"v_mov_b32 v{t+i}, v{a}")
        p("s_nop 0")
        for i, a in enumerate(regs): p(f"{sw} v{a}, v{t+i}")
        for i, a in enumerate(regs): p(f"{op} v{a}, v{a}, v{t+i}")

NST = [0]
def stamp(p, idx, alt=False):
    if OPT.get('lst') in (2, 3) and not alt and idx not in (0,): return
    if OPT['stamp']:
        p("s_memtime s[64:65]" if OPT.get("clk") else "s_memrealtime s[64:65]"); p("s_waitcnt lgkmcnt(0)")
        p(f"v_writelane_b32 v{vSTAMP}, s64, {idx}")
def stamp_out(p):
    if not OPT['stamp']: return
    if OPT['stamp'] == 2:
        p(f"s_cmp_lg_u32 s2, {OPT.get('dwg', 1)}"); p("s_cbranch_scc1 K_so")
        p(f"s_cmp_lg_u32 s{sW}, 0"); p("s_cbranch_scc1 K_so")
        p("s_mov_b32 s4, s92"); p("s_mov_b32 s5, s93"); p("s_mov_b32 s6, 128"); p("s_mov_b32 s7, 0x20000")
        p(f"v_readlane_b32 s64, v{vSTAMP}, 0"); p(f"v_lshlrev_b32 v4, 2, v{vLANE}"); p("v_subrev_u32 v4, 4, v4"); p("s_nop 1")
        p(f"v_subrev_u32 v5, s64, v{vSTAMP}")
        p(f"buffer_store_dword v5, v4, s[4:7], 0 offen"); p("s_waitcnt vmcnt(0)")
        p("K_so:")
        return
    p("s_cmp_ge_u32 s2, 64"); p("s_cbranch_scc1 K_so")
    p(f"s_cmp_lg_u32 s{sW}, 0"); p("s_cbranch_scc1 K_so")
    p(f"s_add_u32 s4, s{kWS}, {0xF000000}"); p(f"s_addc_u32 s5, s{kWS+1}, 0"); p("s_mov_b32 s6, 8192"); p("s_mov_b32 s7, 0x20000")
    p("s_lshl_b32 s64, s2, 7"); p(f"v_lshlrev_b32 v4, 2, v{vLANE}"); p("s_mov_b64 exec, 0xffffffff")
    p(f"buffer_store_dword v{vSTAMP}, v4, s[4:7], s64 offen"); p("s_waitcnt vmcnt(0)")
    p("K_so:")

def signal(soff): return Ins(f"buffer_store_dwordx2 {vr(vNON,2)}, v{vSIG}, s[{sFL}:{sFL+3}], s{soff} offen{SC1}")
def poll_load(voff, soff): return Ins(f"buffer_load_dwordx2 {vr(vPOLL,2)}, v{voff}, s[{sFL}:{sFL+3}], s{soff} offen{SC1}", tag=('pl', 0))
def poll(p, lab, voff, soff, pre=False, slp=None):
    p(f"s_mov_b32 s{sT+2}, 0")
    if pre: p(f"s_branch {lab}_chk")
    p(f"{lab}:")
    p.add(poll_load(voff, soff)); p("s_waitcnt vmcnt(0)")
    p(f"{lab}_chk:")
    p(f"v_cmp_ne_u64 vcc, {vr(vNON,2)}, {vr(vPOLL,2)}"); p("s_nop 4")
    p(f"s_cbranch_vccz {lab}_ok")
    p(f"s_sleep {OPT['slp'] if slp is None else slp}")
    p(f"s_add_u32 s{sT+2}, s{sT+2}, 1"); p(f"s_cmp_lt_u32 s{sT+2}, 0x40000"); p(f"s_cbranch_scc1 {lab}")
    p(f"{lab}_ok:")
def hpoll_loads(so="0", tag=('hp', 99)):
    return [Ins(f"buffer_load_dwordx4 {vr(vPOLL+4*j)}, v{vL16}, s[{sFL}:{sFL+3}], {so} offen offset:{FL_H+1024*j}{SC1}", tag=tag) for j in range(2)]
def hpoll(p, lab):
    p(f"s_mov_b32 s{sT+2}, 0"); p(f"s_branch {lab}_chk")
    p(f"{lab}:")
    p.add(hpoll_loads()); p("s_waitcnt vmcnt(0)")
    p(f"{lab}_chk:")
    p(f"v_cmp_ne_u64 s[{sT}:{sT+1}], {vr(vNON,2)}, {vr(vPOLL,2)}")
    for j in range(1, 4):
        p(f"v_cmp_ne_u64 vcc, {vr(vNON,2)}, {vr(vPOLL+2*j,2)}"); p(f"s_or_b64 s[{sT}:{sT+1}], s[{sT}:{sT+1}], vcc")
    p(f"s_cbranch_scc0 {lab}_ok")
    p(f"s_sleep 8")
    p(f"s_add_u32 s{sT+2}, s{sT+2}, 1"); p(f"s_cmp_lt_u32 s{sT+2}, 0x40000"); p(f"s_cbranch_scc1 {lab}")
    p(f"{lab}_ok:")

PB = [192, 208, 28, 44]
NR = 16
def slen(i): return 112 if i & 1 else 80
def fbase(i): return 4 if i == 64 else (20 if i & 1 else 0)
def k_dma(tile, soff, stride=0):
    slot = tile % 4
    return [(Ins(f"s_add_u32 m0, s{sKb}, {slot*SLOT + blk*4096 - blk*128}"),
             Ins(f"buffer_load_dwordx4 v{vDK}, s[4:7], s{soff} offen offset:{blk*128} lds", tag=('K', tile, stride), slot=('K', slot), gen=(tile, stride))) for blk in range(3)]
def u_dma(e, soff, stride=0):
    j = (e-1) >> 1; ps = j & 1; blks = (0, 1) if e & 1 else (2,)
    return [(Ins(f"s_add_u32 m0, s{sVb}, {ps*24576 + blk*8192 + hf*4096 - blk*128}"),
             Ins(f"buffer_load_dwordx4 v{vDV2 if hf else vDV}, s[8:11], s{soff} offen offset:{blk*128} lds", tag=('U', e, stride), slot=('U', e % 4), gen=(e, stride)))
            for blk in blks for hf in range(2)]
def kfrag_read(f, tile, stride=0):
    kt, ks = divmod(f, 6); slot = tile % 4; rs = (fbase(tile-1) + f) % NR
    return Ins(f"ds_read_b128 {ar(RING+4*rs)}, v{vK0 + (ks&1)} offset:{slot*SLOT + (ks>>1)*4096 + kt*2048}",
               tag=('kf', tile*12+f, stride*12), slot=('K', slot), gen=(tile, stride))
def vfrag_read(f, rd, e, stride=0):
    j = (e-1) >> 1; ps = j & 1; dt = (0 if e & 1 else 8) + (f >> 1); hf = f & 1; rs = (fbase(e) + 12 + f) % NR
    return Ins(f"ds_read_b64_tr_b16 {ar(RING+4*rs+2*rd,2)}, v{vV + (dt&3)} offset:{ps*24576 + (dt>>2)*8192 + hf*4096 + rd*2048}",
               tag=('vf', e*16+f, stride*16), slot=('U', e % 4), gen=(e, stride))
def qk_seq():
    ch = OPT['chain']; seq = []
    for kt in range(2):
        for k0 in range(0, 6, ch):
            for qt in range(4):
                r = list(range(k0, k0+ch))
                if qt & 1: r.reverse()
                seq += [(kt, ks, qt) for ks in r]
    return seq
def qk_mfmas(step, czero=False):
    M = []; seen = set()
    for kt, ks, qt in qk_seq():
        s = SR + (kt*4+qt)*4
        c = vr(s) if (kt, qt) in seen else ("0" if czero else vr(MR+4*qt)); seen.add((kt, qt))
        M.append(Ins(f"{MF} {vr(s)}, {ar(RING+4*((fbase(step)+kt*6+ks)%NR))}, {vr(QF+(ks*4+qt)*4)}, {c}"))
    return M
def pv_mfmas(e, czero=False):
    M = []; j = (e-1) >> 1; d0, nd = (0, 8) if e & 1 else (8, 4)
    for dl in range(nd):
        for qt in range(4):
            o = ((d0+dl)*4+qt)*4
            for k, hf in enumerate((0, 1) if qt % 2 == 0 else (1, 0)):
                M.append(Ins(f"{MF} {ar(o)}, {ar(RING+4*((fbase(e)+12+2*dl+hf)%NR))}, {vr(PB[(2*j+hf)%4]+4*qt)}, {'0' if (czero and k == 0) else ar(o)}"))
    return M
def softmax_items(t):
    pb = PB[t % 4]; it = []
    seq = [(kt, qt, r) for kt in range(2) for qt in range(4) for r in range(4)]
    def reg(e): return SR + (e[0]*4+e[1])*4 + e[2]
    def post(e):
        o = [(1, f"v_add_f32 v{LR+e[1]}, v{LR+e[1]}, v{reg(e)}", e[0], e[1])]
        if e[2] & 1: o.append((1, f"v_cvt_pk_bf16_f32 v{pb+4*e[1]+2*e[0]+(e[2]>>1)}, v{reg(e)-1}, v{reg(e)}", e[0], e[1]))
        return o
    for i, e in enumerate(seq):
        it.append((2, f"v_exp_f32 v{reg(e)}, v{reg(e)}", e[0], e[1]))
        if i >= 2: it += post(seq[i-2])
    it += post(seq[-2]) + post(seq[-1])
    return it
def plan_macro():
    N = 192; st0 = [0, 80]; bar = [80 - OPT['bs'], 192 - OPT['bl']]
    qs = qk_seq()
    kfirst = {}; klast = {}; sfirst = {}; slast = {}
    for g, (kt, ks, qt) in enumerate(qs):
        kfirst.setdefault(kt*6+ks, g); klast[kt*6+ks] = g; sfirst.setdefault((kt, qt), g); slast[(kt, qt)] = g
    fr = []
    for par in range(2):
        for f in range(12): fr.append((par, 'k', f, st0[par]+kfirst[f], st0[par]+klast[f]))
        for f in range(16 if par else 8): fr.append((par, 'v', f, st0[par]+48+8*(f >> 1), st0[par]+48+8*(f >> 1)+7))
    mem = {}; pos = {}
    g = bar[1] - N
    for ph, (par, kind, f, first, last) in enumerate(fr):
        prev = fr[(ph - NR) % 48]; pl = prev[4] - (N if ph < NR else 0)
        lo = pl + 1
        if kind == 'k': lo = max(lo, (bar[1]-N if par == 0 else bar[0]) + 1)
        tgt = first - OPT['lookg']
        if kind == 'v':
            nleft = (16 if par else 8) - f
            tgt = min(tgt, bar[par] - 7 - OPT['vsp']*nleft)
        for rd in range(1 if kind == 'k' else 2):
            g = max(g+1, lo, tgt)
            while (g % N) in mem or (g % N) in bar: g += 1
            mem[g % N] = (kind, par, f, rd, g < st0[par]); pos[(par, kind, f)] = g
            assert g <= first - 6, (par, kind, f, g, first)
            if kind == 'v': assert g < bar[par] - 5, (par, f, g)
            if kind == 'k': g += 1
    for ep in range(2):
        n = 7 if ep == 0 else 5
        g = (bar[1] - N if ep == 0 else bar[0]) + 3
        for k in range(n):
            while (g % N) in mem or ((g-1) % N) in bar or (g % N) in bar or ((g+1) % N) in bar or (g % N) in (0, 80): g += 1
            mem[g % N] = ('dma', ep, k, 0, g < st0[ep]); g += OPT['dstep']
        assert g - OPT['dstep'] < bar[ep] - 2
    cap = [2 - (1 if i in mem else 0) for i in range(N)]
    for g_, m_ in mem.items():
        if m_[0] == 'dma' and OPT['dcap'] <= 0: cap[g_] = 0
        if m_[0] == 'dma' and OPT['dcap'] == -1: cap[(g_+1) % N] = min(cap[(g_+1) % N], 1)
    if OPT['bcap'] == 0:
        for b_ in bar: cap[b_] = 0
    vpos = []
    items = softmax_items(0); tot = sum(x[0] for x in items)
    phi = [OPT['phs'], 80 + OPT['phl']]; span = [phi[1]-phi[0]-2, phi[0]+N-phi[1]-2]
    g = phi[0]
    for par in range(2):
        p_ = [None]*len(items); acc = 0; pend = list(range(len(items))); n = slen(par)
        while pend:
            g = max(g, phi[par] + int(acc*span[par]/tot)); placed = False
            for j in range(min(2, len(pend))):
                c, t, kt, qt = items[pend[j]]
                if j > 0 and not (c == 1 and items[pend[0]][0] == 2): continue
                if c <= cap[g % N] and g >= st0[par] + slast[(kt, qt)] + 7:
                    p_[pend[j]] = g - st0[par]; cap[g % N] -= c; acc += c; pend.pop(j); placed = True
                    assert g - st0[par] < n + sfirst[(kt, qt)] - 1, (par, g, t)
                    if par == 0: assert g < 80 + 46
                    break
            if not placed: g += 1
        vpos.append(p_)
    return dict(mem=mem, vpos=vpos, bar=bar, kfirst=kfirst, pos=pos)
PLAN = plan_macro()

def attn_step(i, stride, qk=True, pv=True, czero=False):
    par = i & 1; n = slen(i); s0 = 80*par; BARG = PLAN['bar'][par] - s0
    ex = lambda t, mx: stride != 0 or t <= mx
    M = (qk_mfmas(i) if qk else [None]*48) + (pv_mfmas(i, czero) if pv else [None]*(n-48))
    G = Gaps(M); G.barg = BARG
    for gg, m in sorted(PLAN['mem'].items()):
        g = gg - s0
        if not 0 <= g < n: continue
        kind, mp, f, rd, early = m
        step = i+1 if early else i
        if kind == 'v':
            if step >= 1 and ex(step, 63): G.mem(g, vfrag_read(f, rd, step, stride))
        elif kind == 'k':
            if ex(step+1, 63): G.mem(g, kfrag_read(f, step+1, stride))
        else:
            if f < 3:
                if not ex(step+4, 63): continue
                mi, d = k_dma(step+4, sKo, stride)[f]; post = f"s_add_u32 s{sKo}, s{sKo}, {SLOT}" if f == 2 else None
            else:
                if not ex(step+3, 64): continue
                l = u_dma(step+3, sVo, stride); mi, d = l[f-3]; post = f"s_add_u32 s{sVo}, s{sVo}, {2*SLOT}" if (f-3 == len(l)-1 and (step+3) % 2 == 0) else None
            G.sc(g-1, mi); G.mem(g, d)
            if post: G.sc(g+1, Ins(post))
    kf = PLAN['kfirst']
    KG = OPT['kg']
    for f0 in range(0, 12, KG):
        fs = range(f0, f0+KG); g = min(kf[f] for f in fs) - 1
        if g < 0:
            if ex(i+2, 63): G.sc(n-1, Wait(lgkm=[('kf', (i+2)*12+f, stride*12) for f in fs]))
        elif qk: G.sc(g, Wait(lgkm=[('kf', (i+1)*12+f, stride*12) for f in fs]))
    if pv:
        VG = OPT['vg']
        for dl in range(0, 8 if par else 4, VG):
            g = 48 + 8*dl - 1
            if g < BARG-1: G.sc(g, Wait(lgkm=[('vf', i*16+2*(dl+VG)-1, stride*16)]))
    need = []
    if ex(i+2, 63): need.append(('K', i+2, stride))
    if ex(i+1, 64): need.append(('U', i+1, stride))
    if need: G.sc(BARG-1, Wait(vm=need, lgkm='all')); G.sc(BARG, Ins("s_barrier"))
    else: G.sc(BARG-1, Wait(lgkm='all'))
    if ex(i, 63):
        pn = slen(i-1)
        for (c, t, kt, qt), g in zip(softmax_items(i), PLAN['vpos'][1-par]):
            if g >= pn: G.valu(g-pn, Ins(t), c)
    if qk:
        for (c, t, kt, qt), g in zip(softmax_items(i+1), PLAN['vpos'][par]):
            if g < n: G.valu(g, Ins(t), c)
    return G

C_STAGE = 20480; C_NS = 8; C_LA = 6; C_D = 6
cS = 0; cF = 80; cRING = 160
CB = [('v', 224), ('v', 192), ('v', 208), ('v', 160), ('v', 176), ('v', 44), ('a', 224), ('a', 240)]
CA = [0, 1, 2, 3, 6, 7, 4, 5]
def cb(n, o):
    if 6 <= n < 9:
        ks, qs = divmod(o//4, 2); return vr(64 + 4*(4*(2*(n-6)+ks) + qs))
    c, b = CB[n % C_NS]
    return f"{c}[{b+o}:{b+o+3}]"
def c_wloads(n, stride=0):
    sl = n % C_NS; out = []
    for j in range(5):
        if j in (0, 4): w = Ins(f"s_add_u32 m0, s{cM}, {CA[sl]*C_STAGE + (1024 if j == 4 else 0)}")
        out.append(([w] if j in (0, 4) else [], Ins(f"buffer_load_dwordx4 v{vL16 if j < 4 else vL1K}, s[12:15], s{cWo} offen offset:{min(j,3)*1024}{SC1} lds",
                            tag=('cw', n, stride), slot=('C', sl), gen=(n, stride), m0reuse=True, m0w=w)))
    po = [Ins(f"s_add_u32 s{cWo}, s{cWo}, 10240")]
    if n >= 6 and n % 3 == 2: po = [Ins(f"s_mul_i32 s{cWo}, s{sHS+(n-8)//3}, {6*5120}"), Ins(f"s_add_u32 s{cWo}, s{cWo}, s{cW1}")]
    return out, po
def cb2(n, o):
    c, b = CB[n % C_NS]
    return f"{c}[{b+o}:{b+o+1}]"
def c_bloads(n, stride=0):
    out = []
    for ks in range(2):
        for qs in range(2):
            if True:
                out.append(([], Ins(f"buffer_load_dwordx4 {cb(n,(ks*2+qs)*4)}, v{cvB+2*ks+qs}, s[24:27], s{cBo} offen{SC1}", tag=('cb', n, stride))))
    po = [Ins(f"s_add_u32 s{cBo}, s{cBo}, 8192")]
    if n >= 6 and n % 3 == 2: po = [Ins(f"s_mul_i32 s{cBo}, s{sHS+(n-8)//3}, {6*4096}")]
    return out, po
def c_aread(n, f, stride=0):
    sl = n % C_NS; ks, t = ((f & 1, f >> 1) if OPT['pair'] else divmod(f, 10)); sh, tt = divmod(t, 5)
    return Ins(f"ds_read_b128 {ar(cRING+4*(f%10))}, v{cvA + CA[sl]//3} offset:{(CA[sl]%3)*C_STAGE + sh*10240 + ks*5120 + tt*1024}",
               tag=('caf', n*20+f, stride*20), slot=('C', sl), gen=(n, stride))
def c_stage(n, acc, L, VQ, czero=False, nxt=True, wtags=(), after=(), cap=50, red=False):
    M = []; first = {}
    for t in range(10):
        for qs in range(2):
            if red and t < 5 and qs == 0: continue
            for k, ks in enumerate((0, 1) if qs == 0 else (1, 0)):
                d = ar(acc + (t*2+qs)*4); first.setdefault(t, len(M))
                M.append(Ins(f"{MF} {d}, {ar(cRING+4*((2*t+ks)%10))}, {cb(n,(ks*2+qs)*4)}, {'0' if (czero and k==0) else d}"))
    G = Gaps(M); n_ = len(M)
    def rpos(f):
        t, e = divmod(f - C_LA, 2); w = (first[t+1] if t < 9 else n_) - first[t]
        return first[t] + e*(w//2)
    BG = rpos(20) - 1
    for f in range(C_LA, 20): G.mem(rpos(f), c_aread(n, f))
    if nxt:
        for f in range(C_LA): G.mem(rpos(20+f), c_aread(n+1, f))
        G.sc(BG-1, Wait(vm=[('cw', n+1)] + list(wtags), cap=cap)); G.sc(BG, Ins("s_barrier"))
        G.sc(n_-1, Wait(vm=[('cb', n+1)], cap=cap))
    for t in range(1, 10):
        g = first[t] - (2 if first[t] - first[t-1] > 2 else 1)
        if g == BG-1: g -= 1
        G.sc(g, Wait(lgkm=('caf', n*20+2*t+1)))
    if nxt: G.sc(n_-2, Wait(lgkm=('caf', (n+1)*20+1)))
    for m in after: G.mem(BG+2, m)
    nm = sum(1 for sc, m in L if m is not None)
    free = [g for g in range(1, n_-2) if not G.N[g] and g != BG]
    if nm > len(free): free = [g for g in range(1, n_-2) if G.cap[g] >= 1 and g != BG]
    assert nm <= len(free), (n, nm, len(free))
    slots = [free[min(len(free)-1, int((k+0.5)*len(free)/max(nm,1)))] for k in range(nm)] + [n_-1]
    k = 0; lo = 0
    for sc, m in L:
        g = max(slots[k] - 1, lo); pos = []
        for s_ in reversed(sc):
            while g > lo and not G.sc_free(g): g -= 1
            pos.append((g, s_))
            if g > lo: g -= 1
        for g_, s_ in reversed(pos): G.sc(g_, s_)
        if pos: lo = max(lo, max(x[0] for x in pos))
        if m is not None:
            G.N[slots[k]].append(m); G.cap[slots[k]] -= 1; lo = min(slots[k] + 1, n_-1); k += 1
    for g in range(n_):
        while VQ and G.cap[g] >= VQ[0][0]:
            c, t = VQ.pop(0); G.valu(g, Ins(t), c)
            if c == 2: break
    return G
def c_deferred(ns):
    seq = [(t, n, ks) for t in range(5) for n in ns for ks in range(2)]
    def rd(i):
        t, n, ks = seq[i]; x = c_aread(n, 2*t+ks); sl = n % C_NS
        return Ins(f"ds_read_b128 {ar(cRING+4*(i%10))}, " + x.text.split(", ", 1)[1], tag=('df', i), slot=x.meta['slot'], gen=x.meta['gen'])
    pre = [rd(i) for i in range(8)]
    G = Gaps([Ins(f"{MF} {ar(cS+t*8)}, {ar(cRING+4*(i%10))}, {cb(n, ks*8)}, {ar(cS+t*8)}") for i, (t, n, ks) in enumerate(seq)])
    for i in range(8, len(seq)): G.mem(i-8, rd(i))
    for i in range(2, len(seq), 2): G.sc(i-1, Wait(lgkm=('df', i+1)))
    k = min(OPT['dsp'], len(seq))
    return pre, [Wait(lgkm=('df', 1))] + G.items(0, k), G.items(k)
def o_store(j, qt, reg):
    return ([Ins(f"s_xor_b32 s{sT+3}, s{sOb}, {qt*1024}")] + ([Ins(f"s_add_u32 s{sT+3}, s{sT+3}, {j*4096}")] if j else []),
            Ins(f"buffer_store_dwordx4 {vr(reg)}, v{vL16}, s[24:27], s{sT+3} offen{SC1}", tag=('O', 0)))
EARLY = [(0, 2), (0, 3), (1, 2), (1, 3), (2, 2), (2, 3)]
def pmap(dst):
    if dst == 'sp': return lambda sg, k: ((112, 148)[sg] + k) if sg < 2 else (240 + k if k < 8 else 122 + k - 8)
    if dst == 'alt': return lambda sg, k: (72 + 16*sg + k) if k < 8 else (120 + 16*sg + k - 8)
    return lambda sg, k: dst + 12*sg + k
def c_cvt(p, acc, dst, tmp):
    rm = pmap(dst)
    for sg in range(1, 4):
        qs, sh = sg & 1, sg >> 1
        for tt in range(5):
            t = tmp + 4*(tt & 1)
            for r in range(4): p(f"v_accvgpr_read_b32 v{t+r}, a{acc+((sh*5+tt)*2+qs)*4+r}")
            d = rm(sg-1, 2*tt)
            p(f"v_cvt_pk_bf16_f32 v{d}, v{t}, v{t+1}"); p(f"v_cvt_pk_bf16_f32 v{d+1}, v{t+2}, v{t+3}")
def xb_ops(op, dst, sg, soff, tag):
    rm = pmap(dst)
    return [Ins(f"buffer_{op}_dwordx4 {vr(rm(sg,0))}, v{vL16}, s[20:23], s{soff} offen{SC1}", tag=tag),
            Ins(f"buffer_{op}_dwordx4 {vr(rm(sg,4))}, v{vL16}, s[20:23], s{soff} offen offset:1024{SC1}", tag=tag),
            Ins(f"buffer_{op}_dwordx2 {vr(rm(sg,8),2)}, v{vL8}, s[20:23], s{soff} offen offset:2048{SC1}", tag=tag)]
def c_pub(src, kind):
    out = []
    for sg in range(1, 4):
        sc = [f"s_xor_b32 s{sT}, s{cC}, {sg}", f"s_mul_i32 s{sT}, s{sT}, {3*2*4*XBW}", f"s_add_u32 s{sT}, s{sT}, s{cXB}", f"s_add_u32 s{sT}, s{sT}, {((sg-1)*2+kind)*4*XBW}"]
        for k, m in enumerate(xb_ops('store', src, sg-1, sT, ('pub', kind))):
            out.append(([Ins(x) for x in sc] if k == 0 else [], m))
    return out
def c_get(p, dst, kind, extra=None):
    p(f"s_mul_i32 s{sT}, s{cC}, {3*2*4*XBW}"); p(f"s_add_u32 s{sT}, s{sT}, s{cXB}")
    if kind: p(f"s_add_u32 s{sT}, s{sT}, {4*XBW}")
    if extra: p(f"s_add_u32 s{sT}, s{sT}, s{extra}")
    for sg in range(3):
        p.add(xb_ops('load', dst, sg, sT, ('get', kind)))
        if sg < 2: p(f"s_add_u32 s{sT}, s{sT}, {2*4*XBW}")
def c_sum(p, R, src, tmp):
    for sg in range(3):
        for i in range(10):
            t = tmp + 2*(i & 1); q = src + 12*sg + i
            p(f"v_lshlrev_b32 v{t}, 16, v{q}"); p(f"v_and_b32 v{t+1}, 0xffff0000, v{q}")
            p(f"v_pk_add_f32 {vr(R+2*i,2)}, {vr(R+2*i,2)}, {vr(t,2)}")
def c_setup(p):
    p(f"s_lshr_b32 s{cC}, s{sH}, 3")
    p(f"s_and_b32 s{sT}, s{sW}, 1"); p(f"s_mul_i32 s{cW1}, s{sT}, 5120")
    p(f"s_lshr_b32 s{sT+4}, s{sX10}, 10")
    p(f"s_lshr_b32 s{sT+1}, s{sW}, 1")
    p(f"s_lshl_b32 s{sT+2}, s{sI}, 2"); p(f"s_add_u32 s{sT+3}, s{sW}, s{sT+2}")
    p(f"s_mul_i32 s{sOb}, s{sH}, {6*4096}"); p(f"s_add_u32 s{sOb}, s{sOb}, s{sX10}")
    p(f"s_lshr_b32 s{sT}, s{cC}, 1"); p(f"s_xor_b32 s{sT}, s{sT}, s{sT+1}"); p(f"s_and_b32 s{sT+2}, s{sH}, 3"); p(f"s_lshl_b32 s{sT+5}, s{sT+2}, 1"); p(f"s_add_u32 s{sT}, s{sT}, s{sT+5}")
    p(f"s_mul_i32 s{sT}, s{sT}, {240*5120}"); p(f"s_add_u32 s{sWPo}, s{sT}, {WS_WP}")
    p(f"s_mul_i32 s{cM}, s{sW}, 5120")
    p(f"s_lshl_b32 s{sT+3}, s{sT+3}, 2"); p(f"s_add_u32 s{sT+3}, s{sT+3}, s{sT+4}"); p(f"s_mul_i32 s{cXO}, s{sT+3}, 20480")
    p(f"s_mul_i32 s{sT+2}, s{sT+2}, 320"); p(f"s_add_u32 s{cXO}, s{cXO}, s{sT+2}")
    p(f"s_lshr_b32 s{sT}, s{cC}, 1"); p(f"s_mul_i32 s{sT}, s{sT}, 160"); p(f"s_add_u32 s{cXO}, s{cXO}, s{sT}")
    p(f"s_lshl_b32 s{cTile}, s{sI}, 3"); p(f"s_and_b32 s{sT}, s{sH}, 7"); p(f"s_add_u32 s{cTile}, s{cTile}, s{sT}")
    p(f"s_mul_i32 s{cXB}, s{cTile}, {4*3*2*4*XBW}"); p(f"s_mul_i32 s{sT}, s{sW}, {XBW}"); p(f"s_add_u32 s{cXB}, s{cXB}, s{sT}")
    p(f"s_lshl_b32 s{sVOTE}, s{sW}, 2"); p(f"s_add_u32 s{sVOTE}, s{sVOTE}, {VOTE}")
    p(f"s_and_b32 s{sT}, s{sH}, 28"); p(f"s_xor_b32 s{sT+1}, s{sT}, 4")
    own = [sHS+4+k for k in range(3)] if OPT['hord'] == 0 else [sHS+k for k in range(3)]
    oth = [sHS+k for k in range(4)] if OPT['hord'] == 0 else [sHS+3+k for k in range(4)]
    for k in range(4): p(f"s_add_u32 s{oth[k]}, s{sT+1}, {k}")
    for k in range(3):
        p(f"s_add_u32 s{own[k]}, s{sT}, {k}"); p(f"s_cmp_ge_u32 s{own[k]}, s{sH}"); p(f"s_addc_u32 s{own[k]}, s{own[k]}, 0")
    p(f"s_mov_b32 s{sHS+7}, 0")
    p(f"s_lshl_b32 s{sFO}, s{sI}, 2"); p(f"s_add_u32 s{sFO}, s{sFO}, s{cC}"); p(f"s_lshl_b32 s{sFO}, s{sFO}, 7"); p(f"s_add_u32 s{sFO}, s{sFO}, {FL_O}")
    p(f"s_lshl_b32 s{sFH}, s{sI}, 5"); p(f"s_add_u32 s{sFH}, s{sFH}, s{sH}"); p(f"s_lshl_b32 s{sFH}, s{sFH}, 3"); p(f"s_add_u32 s{sFH}, s{sFH}, {FL_H}")
    p(f"s_lshl_b32 s{sFX}, s{cTile}, 7"); p(f"s_add_u32 s{sFX}, s{sFX}, {FL_X}")
def c_setup2(p):
    p(f"v_mov_b32 v{cvA}, v{vL16}"); p(f"v_add_u32 v{cvA+1}, {3*C_STAGE}, v{vL16}"); p(f"v_add_u32 v{cvA+2}, {6*C_STAGE}, v{vL16}")
    p(f"v_add_u32 v{cvB}, s{sX10}, v{vL16}"); p(f"v_xor_b32 v{cvB+1}, 1024, v{cvB}")
    p(f"v_add_u32 v{cvB+2}, 4096, v{cvB}"); p(f"v_add_u32 v{cvB+3}, 4096, v{cvB+1}")
    p(f"v_lshlrev_b32 v{vL8}, 3, v{vLANE}")
    srd(p, 12, kWS, 240*5120, f"s{sWPo}"); srd(p, 20, kWS, SZ_XB, WS_XB)
def c_fcursors():
    return [Ins(x) for x in (f"s_mul_i32 s{cWo}, s{cC}, 12", f"s_add_u32 s{cWo}, s{cWo}, 192", f"s_lshl_b32 s{cBo}, s{cWo}, 12",
                             f"s_mul_i32 s{cWo}, s{cWo}, 5120", f"s_add_u32 s{cWo}, s{cWo}, s{cW1}")]
def flat_loads(ns):
    pf = []
    for n in ns:
        for l, po in (c_wloads(n), c_bloads(n)):
            for sc, m in l: pf.append([list(sc), m, []])
            pf[-1][2].append(po)
    return pf

class Rec:
    def __init__(self): self.q = []
    def __call__(self, t): self.q.append((2 if t.startswith(TRANS) else 1, t))

def phase_c(p):
    p.wait(vm=('cw', 3))
    def unit(l, po): return [(list(sc), m) for sc, m in l] + [(list(po), None)]
    pf = []
    for n in range(OPT['nb'], 6): pf += unit(*c_bloads(n))
    for qt in range(4): p(f"v_mov_b32 v{4+2*qt}, v{LR+qt}"); p(f"v_mov_b32 v{4+2*qt+1}, v{LR+qt}")
    def emit(x):
        p.add(x[0])
        if x[1] is not None: p.add(x[1])
    order = [x for x in EARLY[OPT['ncv']:]] + [(j, qt) for j in range(6) for qt in range(4) if (j, qt) not in EARLY]
    stores = []
    for n, (j, qt) in enumerate(order):
        b = 28 + 8*(n % 2); d = 64 + 4*(4*j+qt)
        for _ in range(OPT['pfi']):
            if pf: emit(pf.pop(0))
            if pf and pf[0][1] is None: emit(pf.pop(0))
        for ee in range(2):
            for r in range(4): p(f"v_accvgpr_read_b32 v{b+4*ee+r}, a{((2*j+ee)*4+qt)*4+r}")
        for h in range(4): p(f"v_pk_mul_f32 {vr(b+2*h,2)}, {vr(b+2*h,2)}, {vr(4+2*qt,2)}")
        for h in range(4): p(f"v_cvt_pk_bf16_f32 v{d+h}, v{b+2*h}, v{b+2*h+1}")
        stores.append(o_store(j, qt, d))
        if n % OPT['cdiv'] == 0: emit(stores.pop(0))
    stamp(p, 8)
    if OPT.get('lst') == 3: stamp(p, 1, True)
    p.wait(vm=[('cw', 0), ('cb', 0)]); p("s_barrier")
    for f in range(C_LA): p.add(c_aread(0, f))
    srd(p, 4, kX, SZ_XN); srd(p, 8, kOUT, SZ_XN)
    sSO, sSX, sSF, sPF = 16, 17, 18, 19
    p(f"s_and_b32 s{sT}, s{sH}, 7"); p(f"s_lshl_b32 s{sSO}, s{sT}, 3"); p(f"s_add_u32 s{sSO}, s{sSO}, s{sFO}")
    p(f"s_lshl_b32 s{sSX}, s{cC}, 3"); p(f"s_add_u32 s{sSX}, s{sSX}, s{sFX}")
    p(f"s_add_u32 s{sSF}, s{sSX}, {FL_F-FL_X}"); p(f"s_add_u32 s{sPF}, s{sFX}, {FL_F-FL_X}")
    p(f"s_mul_i32 s{cWo}, s{sH}, {6*5120}"); p(f"s_add_u32 s{cWo}, s{cWo}, s{cW1}")
    p.wait(lgkm=('caf', 1))
    swB = [Ins(f"s_mul_i32 s{cBo}, s{sHS}, {6*4096}")]
    SG = OPT['sigst']; PC = OPT['pc']; FC = OPT['fc']
    R = 200; F = 128+0; T = 28; GF = 64
    Q0 = stores + pf
    wn = 6; bn = 9; pub = []; VQ = []
    for n in range(30):
        L = []; cnt = 0
        capn = OPT['fv'] if n <= SG else (OPT['cu'] if n <= PC + 6 else 11)
        while Q0 and (cnt < capn or Q0[0][1] is None):
            x = Q0.pop(0); L.append(x); cnt += x[1] is not None
        while True:
            wok = wn < 30 and wn <= n + 6; bok = bn < 30 and n > PC and bn <= n + 7
            must = wok and wn <= n + 2
            if bok and (bn <= wn or not wok) and cnt + 4 <= capn: L += unit(*c_bloads(bn)); bn += 1; cnt += 4
            elif wok and (must or (not Q0 and cnt + 5 <= capn)): L += unit(*c_wloads(wn)); wn += 1; cnt += 5
            else: break
        if n == PC: L.insert(0, ([], poll_load(vP8, sFO)))
        if n == 6:
            r = Rec(); r("v_nop"); r("v_nop"); r("v_nop"); r("v_nop"); c_cvt(r, cF, 'alt', 28); VQ = r.q; pub = c_pub('alt', 1); rest = True
        if n > 8 and rest and not pub:
            assert not VQ
            r = Rec(); rest = False
            for tt in range(5):
                for k in range(4): r(f"v_accvgpr_read_b32 v{F+tt*4+k}, a{cF+(tt*2)*4+k}")
            r(f"v_and_b32 v4, 15, v{vLANE}"); r(f"v_lshrrev_b32 v5, 4, v{vLANE}"); r("v_mul_u32_u24 v4, 1280, v4"); r("v_lshl_add_u32 v4, v5, 3, v4")
            VQ = r.q
        if pub and n >= OPT['pubst']:
            done = 3 - (-(-len(VQ)//30))
            k = min(OPT['pubn'], 3*done - (9 - len(pub)))
            L += pub[:k]; pub = pub[k:]
        if n == OPT['xst']:
            for t in range(5): L.append(([], Ins(f"buffer_load_dwordx2 {vr(100+2*t,2)}, v4, s[4:7], s{cXO} offen offset:{32*t}")))
        if n == FC: L.insert(0, ([], poll_load(vP4, sPF)))
        if n == FC + 1:
            q = Prog(); c_get(q, GF, 1, extra=sSF); sc = []
            for x in q.items:
                if x.kind == 'vm': L.append((sc, x)); sc = []
                else: sc.append(x)
        wt = []; af = []
        if n == SG: wt = [('O', 0)]; af = [signal(sSO)]; assert not any(x[1] is not None and x[1].meta.get('tag') == ('O', 0) for x in L)
        if n == OPT['fsig']: wt = [('pub', 1)]; af = [signal(sSF)]; assert not pub
        G = c_stage(n, cF if n < 6 else cS, L, VQ, czero=(n in (0, 6)), nxt=(n < 29), wtags=wt, after=af, cap=63-OPT['cu']-3, red=(n >= 30-OPT['ndef']))
        p.add(G.items())
        if n == SG: stamp(p, 9)
        if OPT.get('lst') == 3 and n % 2 == 1: stamp(p, 2 + n//2, True)
        if n == PC:
            stamp(p, 10); p.wait(vm=('pl', 0)); poll(p, "C_po", vP8, sFO, pre=True); p.add(swB); stamp(p, 11)
        if n == FC:
            p.wait(vm=('pl', 0)); p(f"v_cmp_ne_u64 vcc, {vr(vNON,2)}, {vr(vPOLL,2)}"); p("s_cmp_eq_u64 vcc, 0"); p(f"s_cselect_b32 s{sSF}, 0, 0x10000000")
    assert wn == 30 and bn == 30 and not Q0
    stamp(p, 12)
    ND = OPT['ndef']
    pre, dbody, dbody2 = c_deferred(range(30-ND, 30)) if ND else ([], [], [])
    p.add(pre)
    if not ND: p("s_nop 6")
    SP = 'sp'
    pb = c_pub(SP, 0)
    for sg in range(3):
        r = Prog(); c_cvt(r, cS, SP, 28); k = len(r.items)//3
        p.add(r.items[sg*k:(sg+1)*k])
        for sc, m in pb[3*sg:3*sg+3]: p.add(sc); p.add(m)
    p.add(dbody)
    p("s_waitcnt vmcnt(0)"); p("s_barrier")
    p.add(signal(sSX))
    stamp(p, 13)
    p.add(poll_load(vP4, sFX))
    p.add(dbody2)
    for tt in range(5):
        for k in range(4): p(f"v_accvgpr_read_b32 v{R+tt*4+k}, a{cS+(tt*2)*4+k}")
    SP = 160
    p(f"s_cmp_eq_u32 s2, 0"); p(f"s_cselect_b32 s{sT+1}, 0, 0x10000000")
    p.add(signal(sT+1))
    p("s_waitcnt vmcnt(0)")
    p(f"s_mov_b32 s{sT+2}, 0"); p(f"s_cmp_eq_u32 s{sSF}, 0"); p("s_cbranch_scc1 C_px_chk")
    poll(p, "C_pf", vP4, sPF, slp=6)
    c_get(p, GF, 1)
    poll(p, "C_px", vP4, sFX)
    stamp(p, 14)
    c_get(p, SP, 0)
    c_sum(p, F, GF, 28)
    p(f"s_mov_b32 s{sT}, {f32(-LOG2E)}")
    for i in range(20): p(f"v_mul_f32 v{T+i}, s{sT}, v{F+i}")
    for i in range(20): p(f"v_exp_f32 v{T+i}, v{T+i}")
    for i in range(20): p(f"v_add_f32 v{T+i}, 1.0, v{T+i}")
    for i in range(20): p(f"v_rcp_f32 v{T+i}, v{T+i}")
    for i in range(20): p(f"v_mul_f32 v{F+i}, v{F+i}, v{T+i}")
    for i in range(10):
        p(f"v_lshlrev_b32 v{T+2*i}, 16, v{100+i}"); p(f"v_and_b32 v{T+2*i+1}, 0xffff0000, v{100+i}")
    p("s_waitcnt vmcnt(0)")
    stamp(p, 15)
    c_sum(p, R, SP, 52)
    for i in range(0, 20, 2): p(f"v_pk_fma_f32 {vr(R+i,2)}, {vr(R+i,2)}, {vr(F+i,2)}, {vr(T+i,2)}")
    for i in range(10): p(f"v_cvt_pk_bf16_f32 v{F+i}, v{R+2*i}, v{R+2*i+1}")
    for t in range(5): p(f"buffer_store_dwordx2 {vr(F+2*t,2)}, v4, s[8:11], s{cXO} offen offset:{32*t}")

def a_wloads(it):
    st = it % 3; out = []
    for j in range(2):
        for blk in range(3):
            sc = [Ins(f"s_add_u32 m0, s{sWQm}, {st*A_STAGE + blk*8192 + j*1024 - blk*128}")]
            if blk == 0: sc.insert(0, Ins(f"s_mov_b32 s{sT}, {(it*64 + j*16)*12288}"))
            out.append((sc, Ins(f"buffer_load_dwordx4 v{vWQ}, s[12:15], s{sT} offen offset:{blk*128} lds", tag=('A', it), slot=[('A', st)], gen=(it, 0))))
    for j in range(4):
        sc = [Ins(f"s_mov_b32 s{sT}, {(it*64 + 16*(j&1) + 4*(j>>1))*3072}"), Ins(f"s_add_u32 m0, s{sGUm}, {st*A_STAGE + 24576 + j*1024}")]
        out.append((sc, Ins(f"buffer_load_dwordx4 v{vGU}, s[16:19], s{sT} offen lds", tag=('A', it), slot=[('G', st)], gen=(it, 0))))
    return out
vTA = 44; vTB = 45; vTD = 46
def touch_setup(p):
    t = vT
    p(f"s_lshl_b32 s{sT}, s{sI}, 3"); p(f"s_lshl_b32 s{sT+1}, s{sW}, 1"); p(f"s_add_u32 s{sT+1}, s{sT+1}, s{sT}")
    p(f"v_and_b32 v{t}, 1, v{vLANE}"); p(f"v_lshrrev_b32 v{t+1}, 1, v{vLANE}")
    p(f"v_add_u32 v{t+2}, s{sT+1}, v{t}"); p(f"v_mul_u32_u24 v{t+2}, 12288, v{t+2}"); p(f"v_lshl_add_u32 v{t+2}, v{t+1}, 7, v{t+2}")
    p(f"v_mov_b32 v{t+3}, 0x10000000"); p(f"v_cmp_gt_u32 vcc, 6, v{vLANE}"); p("s_nop 1"); p(f"v_cndmask_b32 v{vTA}, v{t+3}, v{t+2}, vcc")
    p(f"s_and_b32 s{sT+1}, s{sW}, 1"); p(f"s_lshl_b32 s{sT+1}, s{sT+1}, 2"); p(f"s_add_u32 s{sT+1}, s{sT+1}, s{sT}")
    p(f"v_add_u32 v{t+2}, s{sT+1}, v{t+1}"); p(f"v_mul_u32_u24 v{t+2}, 3072, v{t+2}"); p(f"v_mul_u32_u24 v{t}, 60, v{t}"); p(f"v_add_u32 v{t+2}, v{t+2}, v{t}")
    p(f"v_cmp_gt_u32 vcc, 8, v{vLANE}"); p("s_nop 1"); p(f"v_cndmask_b32 v{vTB}, v{t+3}, v{t+2}, vcc")
def touch(it):
    if not OPT['warm'] or it > 9: return []
    d = vTD + 2*(it % 2)
    return [([Ins(f"s_mov_b32 s{sT}, {it*64*12288}")], Ins(f"buffer_load_dword v{d}, v{vTA}, s[12:15], s{sT} offen", junk=True)),
            ([Ins(f"s_mov_b32 s{sT}, {it*64*3072}")], Ins(f"buffer_load_dword v{d+1}, v{vTB}, s[16:19], s{sT} offen", junk=True))]
def a_xloads(it):
    st = it % 3; out = []
    for ks in range(2):
        for qt in range(4):
            sc = [Ins(f"s_xor_b32 s{sT+1}, s{sX10}, {(it*2+ks)*4096 + qt*1024}")]
            out.append((sc, Ins(f"buffer_load_dwordx4 {ar(XB+32*st+(ks*4+qt)*4)}, v{vL16}, s[20:23], s{sT+1} offen{SC1}", tag=('A', it))))
    return out
def areg(rs): return ARING+4*rs if rs < 8 else 160+4*(rs-8)
def a_read(it, nt, ks, rs, tag, NG=4):
    st = it % 3; o = []; hi = 1 if st == 2 else 0; base = 0 if st == 2 else st*A_STAGE
    for rd in range(2):
        if nt < 12:
            j = nt >> 1; e = nt & 1
            a = vAQ + 2*hi + (j & 1); off = base + (j >> 1)*8192 + ks*4096 + rd*2048 + 8*e; sl = ('A', st)
        else:
            mtx, tt = divmod(nt-12, NG)
            a = vAG[hi] + tt; off = base + mtx*8192 + ks*4096 + rd*2048; sl = ('G', st)
        o.append(Ins(f"ds_read_b64_tr_b16 {ar(areg(rs)+2*rd,2)}, v{a} offset:{off}", tag=('af', tag), slot=sl, gen=(it, 0)))
    return o

def gu_group(r, NG, tt, qt, b, o, pk):
    for k in range(4): r(f"v_accvgpr_read_b32 v{b+k}, a{(tt*4+qt)*4+k}")
    for k in range(4): r(f"v_mul_f32 v{b+8+k}, s{sT+4}, v{b+k}")
    for k in range(4): r(f"v_exp_f32 v{b+8+k}, v{b+8+k}")
    for k in range(4): r(f"v_accvgpr_read_b32 v{b+4+k}, a{16*NG+(tt*4+qt)*4+k}")
    for k in range(4): r(f"v_add_f32 v{b+8+k}, 1.0, v{b+8+k}")
    for k in range(4): r(f"v_rcp_f32 v{b+8+k}, v{b+8+k}")
    if pk:
        for k in range(0, 4, 2): r(f"v_pk_mul_f32 {vr(b+k,2)}, {vr(b+k,2)}, {vr(b+4+k,2)}")
        for k in range(0, 4, 2): r(f"v_pk_mul_f32 {vr(b+k,2)}, {vr(b+k,2)}, {vr(b+8+k,2)}")
    else:
        for k in range(4): r(f"v_mul_f32 v{b+k}, v{b+k}, v{b+4+k}")
        for k in range(4): r(f"v_mul_f32 v{b+k}, v{b+k}, v{b+8+k}")
    r(f"v_cvt_pk_bf16_f32 v{o}, v{b}, v{b+1}"); r(f"v_cvt_pk_bf16_f32 v{o+1}, v{b+2}, v{b+3}")

def phase_a(NG):
    p = Prog(); NT = 12 + 2*NG; NF = 2*NT; LA = 4
    def acc(nt, qt): return vr(QACC + (nt*4+qt)*4) if nt < 12 else ar(((nt-12)*4+qt)*4)
    def xb(it, ks, qt): return ar(XB+32*(it % 3)+(ks*4+qt)*4)
    def place(G, L, g, step, hi):
        for sc, m in L:
            while G.N[g] or not all(G.sc_free(g-1-k) for k in range(len(sc))): g += 1
            for k, s_ in enumerate(reversed(sc)): G.sc(g-1-k, s_)
            G.mem(g, m); g += step
        assert g - step < hi, (g, hi)
    fin = [(8, nt, ks) for nt in range(12, NT) for ks in range(2)] + [(9, nt, ks) for nt in range(12, NT) for ks in range(2)] + \
          [(it, nt, ks) for nt in range(12) for it in (8, 9) for ks in range(2)]
    for it in range(8):
        M = []
        for nt in range(NT):
            for qt in range(4):
                for k, ks in enumerate((0, 1) if qt % 2 == 0 else (1, 0)):
                    M.append(Ins(f"{MF} {acc(nt,qt)}, {ar(ARING+4*((2*nt+ks)%8))}, {xb(it,ks,qt)}, {'0' if (it == 0 and k == 0) else acc(nt,qt)}"))
        G = Gaps(M); n = len(M); BG = 4*(NF-LA)
        for f in range(LA, NF):
            r = a_read(it, f >> 1, f & 1, f % 8, it*64+f, NG); g = 4*(f-LA) - (2 if f >= NF-6 else 0)
            g = G.mem_from(g, r[0]); G.mem_from(g+1, r[1])
        G.sc(BG-1, Wait(vm=[('A', it+1)] + ([('pk', 0)] if it == 4 else []), lgkm='all')); G.sc(BG, Ins("s_barrier"))
        g = BG+1
        for f in range(LA):
            r = a_read(it+1, f >> 1, f & 1, f % 8, (it+1)*64+f, NG) if it < 7 else a_read(*fin[f], f % 8, 512+f, NG)
            g = max(g, 4*((NF+f-8)|1)+4)
            g = G.mem_from(g, r[0]); g = G.mem_from(g+1, r[1]) + 1
        G.sc(n-1, Wait(lgkm=('af', (it+1)*64+1)))
        for f in range(2, NF, 2):
            if 4*f-1 < BG-1: G.sc(4*f-1, Wait(lgkm=('af', it*64+f+1)))
        L = touch(it+OPT['td']) + a_wloads(it+2) + a_xloads(it+2)
        P0 = OPT['pk0']
        if it in (P0, P0+1): L = L + pack_dmas()[5*(it-P0):5*(it-P0)+5]
        place(G, L, 3, 4, BG-2)
        if it == 4:
            q = Prog(); srd(q, 60, kWS, SZ_WP, WS_WP); g = free_sc(G, BG+1, 4)
            for k, x in enumerate(q.items): G.sc(g+k, x)
        if it in (5, 6, 7):
            ts = [(0, 1, 2, 3), (4, 5, 6), (7, 8, 9)][it-5]
            g = 2
            for t in ts:
                for sc, m in pack_reads(t): g = G.mem_from(g, m) + 4
            place(G, [pack_store(t) for t in ts], BG-34, 7, BG-2)
        p.add(G.items())
    M = []; first = []; last = []
    nG = 4*NG
    for blk, it in enumerate((8, 9)):
        for t in range(2*NG):
            d0 = len(M)
            for qt in range(4):
                for ks in ((0, 1) if qt % 2 == 0 else (1, 0)):
                    M.append(Ins(f"{MF} {acc(12+t,qt)}, {ar(areg((blk*nG+2*t+ks)%16))}, {xb(it,ks,qt)}, {acc(12+t,qt)}"))
            first += [d0, d0]; last += [len(M)-1]*2
    q0 = len(M)
    for nt in range(12):
        d0 = len(M)
        for qt in range(4):
            ch = [(8, 0), (8, 1), (9, 0), (9, 1)]
            idx = list(range(4)) if qt % 2 == 0 else [3, 2, 1, 0]
            for k in idx:
                M.append(Ins(f"{MF} {acc(nt,qt)}, {ar(areg((2*nG+4*nt+k)%16))}, {xb(ch[k][0],ch[k][1],qt)}, {acc(nt,qt)}"))
        first += [d0]*4; last += [len(M)-1]*4
    G = Gaps(M); n = len(M)
    MB = 4*(nG-LA)
    G.sc(MB-1, Wait(vm=[('A', 9)], lgkm='all')); G.sc(MB, Ins("s_barrier"))
    g = -2
    for f in range(LA, len(fin)):
        lo = last[f-16]+1 if f >= 16 else 0
        if f >= nG: lo = max(lo, MB+1)
        tgt = 4*f - 28 if f >= nG else 4*f - 24
        r = a_read(*fin[f], f % 16, 512+f, NG)
        d = 2 if (g + 2 <= tgt and f >= 2*nG) else 1
        g = G.mem_from(max(g+d, lo, tgt), r[0]); g = G.mem_from(g+d, r[1])
        assert g < first[f] - 4, (f, g, first[f])
        if f < nG: assert g < MB - 3
    prev = None
    for f in range(2, len(fin)):
        if first[f] != prev and first[f]-1 != MB-1 and not (f < nG and first[f] > MB):
            fl = max(k for k in range(len(fin)) if first[k] == first[f]); G.sc(first[f]-1, Wait(lgkm=('af', 512+fl)))
        prev = first[f]
    L = []
    for tl in range(4):
        for b, (mi, d) in enumerate(k_dma(tl, sKo)):
            d.meta['slot'] = [d.meta['slot'], ('G', 2)]
            L.append((([Ins(f"s_mov_b32 s{sKo}, {tl*SLOT}")] if b == 0 else []) + [mi], d))
    for b, (mi, d) in enumerate(u_dma(1, sVo)):
        d.meta['slot'] = [d.meta['slot'], ('A', 1), ('G', 1)]
        L.append((([Ins(f"s_mov_b32 s{sVo}, 0")] if b == 0 else []) + [mi], d))
    place(G, L, MB+4, 7, n-2)
    G.sc(free_sc(G, 1), Ins(f"s_mov_b32 s{sT+4}, {f32(-LOG2E)}"))
    frags = [(pp, qt) for pp in range(NG//2) for qt in range(4)]
    def hstore(pp, qt, o):
        return [Ins(f"s_xor_b32 s{sT+2}, s{sHo}, {pp*4096 + qt*1024}")], Ins(f"buffer_store_dwordx4 {vr(o)}, v{vL16}, s[24:27], s{sT+2} offen{SC1}", tag=('H', 0))
    g = q0 + 6; k = 0
    while frags:
        pp, qt = frags[0]; o = 40 if k & 1 else 56
        st = []
        for e in range(2):
            r = Rec(); gu_group(r, NG, 2*pp+e, qt, (vT, 44)[e], o+2*e, False); st.append(list(r.q))
        cap = list(G.cap); gg = g; pos = []; nplaced = [0, 0]
        while (st[0] or st[1]) and gg < n:
            cand = [e for e in range(2) if st[e] and st[e][0][0] <= cap[gg]]
            if not cand: gg += 1; continue
            cand.sort(key=lambda e: (-st[e][0][0], (nplaced[e] - (8 if e == 0 else 0))))
            e = cand[0]; c, t = st[e].pop(0); cap[gg] -= c; pos.append((gg, c, t)); nplaced[e] += 1
        gs = gg + 1
        while gs < n and (G.N[gs] or cap[gs] < 1): gs += 1
        if gs >= n: break
        for g_, c, t in pos: G.valu(g_, Ins(t), c)
        sc, m = hstore(pp, qt, o); G.sc(gs, sc[0]); G.mem(gs, m)
        g = gg; frags.pop(0); k += 1
    sys.stderr.write(f"NG={NG}: {k} H frags hidden\n")
    p.add(G.items())
    stamp(p, 5)
    for pp, qt in frags:
        o = 40 if k & 1 else 56; k += 1
        for e in range(2): gu_group(p, NG, 2*pp+e, qt, vT, o+2*e, True)
        sc, m = hstore(pp, qt, o); p.add(sc); p.add(m)
    return p.items

SCR = 81920
def side_issue(p):
    p(f"s_and_b32 s{sT}, s{sH}, 1"); p(f"s_cmp_eq_u32 s{sT}, 1"); p("s_cbranch_scc1 S_o0")
    srd(p, 4, kX, SZ_XN)
    p(f"v_and_b32 v64, 15, v{vLANE}"); p(f"v_lshrrev_b32 v65, 4, v{vLANE}")
    p("v_mul_u32_u24 v66, 1280, v64"); p("v_lshl_add_u32 v66, v65, 4, v66")
    p(f"s_lshl_b32 s{sT+5}, s{sI}, 4"); p(f"s_lshr_b32 s{sT}, s{sH}, 1"); p(f"s_add_u32 s{sT+5}, s{sT+5}, s{sT}")
    p(f"s_mul_i32 s{sT}, s{sT+5}, 20480"); p(f"s_mul_i32 s{sT+1}, s{sW}, 320"); p(f"s_add_u32 s{sT}, s{sT}, s{sT+1}")
    for j in range(5): p(f"buffer_load_dwordx4 {vr(80+4*j)}, v66, s[4:7], s{sT} offen offset:{64*j}")
    wsrds(p)
    p("s_branch S_c0")
    p("S_o0:")
    wsrds(p)
    if OPT['ctouch']: p(f"buffer_load_dword v200, v{vCT}, s[96:99], 0 offen")
    p("S_c0:")

def wsrds(p):
    p(f"s_mul_i32 s{sT+2}, s{sH}, 384")
    srd(p, 12, kWQ, None, f"s{sT+2}"); p(f"s_sub_u32 s14, {640*12288}, s{sT+2}")
    p(f"s_cmp_lt_u32 s{sW}, 2"); p(f"s_cselect_b32 s16, s{kWG}, s{kWU}"); p(f"s_cselect_b32 s17, s{kWG+1}, s{kWU+1}")
    p(f"s_and_b32 s{sT+2}, s{sH}, 3"); p(f"s_lshl_b32 s{sT+3}, s{sT+2}, 7"); p(f"s_lshl_b32 s{sT+2}, s{sT+2}, 6"); p(f"s_add_u32 s{sT+2}, s{sT+2}, 512")
    p(f"s_bitcmp{OPT['hv']}_b32 s{sH}, 2"); p(f"s_cselect_b32 s{sT+2}, s{sT+3}, s{sT+2}")
    p(f"s_lshr_b32 s{sT+3}, s{sH}, 3"); p(f"s_mul_i32 s{sT+3}, s{sT+3}, 768"); p(f"s_add_u32 s{sT+2}, s{sT+2}, s{sT+3}")
    p(f"s_lshl_b32 s{sHo}, s{sT+2}, 6"); p(f"s_add_u32 s{sHo}, s{sHo}, {192*4096}"); p(f"s_add_u32 s{sHo}, s{sHo}, s{sX10}")
    srd(p, 16, 16, None, f"s{sT+2}"); p(f"s_sub_u32 s18, {640*3072}, s{sT+2}")

sPKs = 70; sPKm = 71; sPKd = 69
vPKs = 54; vPK = 55; vPK2 = 59
PKL = 122880
def pack_setup(p):
    t = vT
    p(f"s_lshl_b32 s{sT+3}, s{sI}, 5"); p(f"s_add_u32 s{sT+3}, s{sT+3}, s{sH}")
    p(f"s_cmp_lt_u32 s{sT+3}, 192")
    p(f"s_cselect_b32 s60, s{kWO}, s{kWD}"); p(f"s_cselect_b32 s61, s{kWO+1}, s{kWD+1}")
    p(f"s_mov_b32 s{sT}, {6144*1280}"); p(f"s_cselect_b32 s62, s{sT}, {1536*1280}"); p("s_mov_b32 s63, 0x20000")
    p(f"s_cselect_b32 s{sT}, 0, 192"); p(f"s_sub_u32 s{sT}, s{sT+3}, s{sT}"); p(f"s_mul_i32 s{sT}, s{sT}, 40960")
    p(f"s_mul_i32 s{sPKm}, s{sW}, 10240"); p(f"s_add_u32 s{sPKs}, s{sT}, s{sPKm}"); p(f"s_add_u32 s{sPKm}, s{sPKm}, {PKL}")
    p(f"s_mul_i32 s{sPKd}, s{sW}, 480"); p(f"s_add_u32 s{sPKd}, s{sPKd}, s{sT+3}"); p(f"s_mul_i32 s{sPKd}, s{sPKd}, 5120")
    p(f"s_cmp_lt_u32 s{sT+3}, 240"); p(f"s_cselect_b32 s{sPKd}, s{sPKd}, 0x10000000")
    p(f"v_lshrrev_b32 v{t}, 3, v{vLANE}"); p(f"v_mul_u32_u24 v{t}, 1280, v{t}")
    p(f"v_bfe_u32 v{t+1}, v{vLANE}, 4, 2"); p(f"v_lshlrev_b32 v{t+1}, 1, v{t+1}"); p(f"v_and_b32 v{t+2}, 7, v{vLANE}"); p(f"v_xor_b32 v{t+1}, v{t+1}, v{t+2}")
    p(f"v_lshl_add_u32 v{vPKs}, v{t+1}, 4, v{t}")
    p(f"v_lshrrev_b32 v{t}, 5, v{vLANE}"); p(f"v_mul_u32_u24 v{t}, 10240, v{t}")
    p(f"v_bfe_u32 v{t+1}, v{vLANE}, 2, 3"); p(f"v_lshl_add_u32 v{t}, v{t+1}, 7, v{t}")
    p(f"v_and_b32 v{t+1}, 3, v{vLANE}"); p(f"v_lshl_add_u32 v{t}, v{t+1}, 3, v{t}")
    p(f"v_bfe_u32 v{t+1}, v{vLANE}, 3, 2")
    p(f"s_mul_i32 s{sT}, s{sW}, 10")
    for k in range(4):
        p(f"s_add_u32 s{sT+1}, s{sT}, {k}"); p(f"s_and_b32 s{sT+2}, s{sT+1}, 3"); p(f"s_lshr_b32 s{sT+1}, s{sT+1}, 2"); p(f"s_lshl_b32 s{sT+1}, s{sT+1}, 10"); p(f"s_add_u32 s{sT+1}, s{sT+1}, {PKL}")
        p(f"v_xor_b32 v{t+2}, s{sT+2}, v{t+1}"); p(f"v_lshl_add_u32 v{t+2}, v{t+2}, 5, v{t}"); p(f"v_add_u32 v{vPK+k}, s{sT+1}, v{t+2}")
    p(f"v_add_u32 v{vPK2}, {240*5120-1024}, v{vL16}")
def pack_dmas():
    return [([Ins(f"s_add_u32 m0, s{sPKm}, {1024*j - 128*j}")],
             Ins(f"buffer_load_dwordx4 v{vPKs}, s[60:63], s{sPKs} offen offset:{128*j} lds", tag=('pk', 0), slot=[('K', k) for k in range(4)], gen=(99, 0))) for j in range(10)]
def pack_reads(t):
    return [([], Ins(f"ds_read_b64_tr_b16 {vr(28+4*(t%4)+2*rd,2)}, v{vPK+(t&3)} offset:{(t>>2)*1024 + rd*20480}", slot=[('K', k) for k in range(4)], tag=('pr', t))) for rd in range(2)]
def pack_store(t):
    sc = [Ins(f"s_add_u32 s{sPKd}, s{sPKd}, 1024")] if t in (5, 9) else []
    v, o = (vL16, t*1024) if t < 4 else ((vL1K, 3072) if t == 4 else (vPK2, min(t-5, 3)*1024))
    return (sc, Ins(f"buffer_store_dwordx4 {vr(28+4*(t%4))}, v{v}, s[60:63], s{sPKd} offen offset:{o}{SC1}", tag=('H', 0)))
def has_m0(G, g): return any(isinstance(x, Ins) and ('s', 'm0') in x.wr for x in G.S[g % G.n])
def has_dma(G, g): return any(x.meta.get('dma') for x in G.N[g % G.n])
def fill(G, lst, g0, g1, step, cnt=999, strict=False):
    BARG = G.barg; g = g0
    while lst and g < g1 and cnt > 0:
        sc, m, po = lst[0]
        ok = G.cap[g] >= 1 and not (BARG-2 <= g <= BARG+1)
        if strict: ok = ok and not G.N[g] and (m.kind == 'ds' or G.cap[g] == 2)
        if m.meta.get('dma') and sc: ok = ok and not (has_m0(G, g-2) or has_m0(G, g-1) or has_m0(G, g) or has_dma(G, g-1) or has_dma(G, g))
        if ok:
            lst.pop(0); cnt -= 1
            for s_ in sc: G.sc(g-1, s_)
            G.N[g].append(m); G.cap[g] -= 1
            for s_ in po: G.sc(g+1, s_)
            g += step
        else: g += 1
def free_valu(G, g):
    while G.cap[g] < 1: g += 1
    return g
def free_sc(G, g, n=1):
    while not all(G.sc_free(g+k) for k in range(n)): g += 1
    return g

def side_work(p, nyoung):
    p(f"s_and_b32 s{sT}, s{sH}, 1"); p(f"s_cmp_eq_u32 s{sT}, 1"); p("s_cbranch_scc1 S_pk1")
    ln = Prog(); q = ln
    srd(q, 4, kWS, SZ_XN)
    q(f"v_lshlrev_b32 v67, 4, v64"); q(f"v_add_u32 v67, {SCR}, v67")
    q(f"s_lshl_b32 s{sT}, s{sW}, 2"); q(f"v_add_u32 v68, s{sT}, v67")
    q(f"s_waitcnt vmcnt({nyoung})")
    X = 80; U = 104
    for i in range(20):
        q(f"v_lshlrev_b32 v{U+2*i}, 16, v{X+i}"); q(f"v_and_b32 v{U+2*i+1}, 0xffff0000, v{X+i}")
    q(f"v_pk_add_f32 v[70:71], {vr(U,2)}, {vr(U+2,2)}"); q(f"v_pk_add_f32 v[72:73], {vr(U+4,2)}, {vr(U+6,2)}")
    for i in range(8, 40, 4):
        q(f"v_pk_add_f32 v[70:71], v[70:71], {vr(U+i,2)}"); q(f"v_pk_add_f32 v[72:73], v[72:73], {vr(U+i+2,2)}")
    q("v_pk_add_f32 v[70:71], v[70:71], v[72:73]"); q("v_add_f32 v70, v70, v71")
    xlane(q, "v_add_f32", 70, 71)
    q(f"v_mul_f32 v70, {f32(-1/160)}, v70"); q("v_mov_b32 v71, v70")
    q(f"v_pk_add_f32 v[74:75], {vr(U,2)}, v[70:71]"); q(f"v_pk_add_f32 v[76:77], {vr(U+2,2)}, v[70:71]")
    q("v_pk_mul_f32 v[72:73], v[74:75], v[74:75]"); q("v_pk_mul_f32 v[78:79], v[76:77], v[76:77]")
    for i in range(4, 40, 4):
        q(f"v_pk_add_f32 v[74:75], {vr(U+i,2)}, v[70:71]"); q(f"v_pk_add_f32 v[76:77], {vr(U+i+2,2)}, v[70:71]")
        q("v_pk_fma_f32 v[72:73], v[74:75], v[74:75], v[72:73]"); q("v_pk_fma_f32 v[78:79], v[76:77], v[76:77], v[78:79]")
    q("v_pk_add_f32 v[72:73], v[72:73], v[78:79]"); q("v_add_f32 v71, v72, v73")
    xlane(q, "v_add_f32", 71, 72)
    q("ds_write_b32 v68, v70"); q("ds_write_b32 v68, v71 offset:256"); q("s_waitcnt lgkmcnt(0)"); q("s_barrier")
    q("ds_read_b128 v[72:75], v67"); q("ds_read_b128 v[76:79], v67 offset:256"); q("s_waitcnt lgkmcnt(0)")
    q("v_add_f32 v70, v72, v73"); q("v_add_f32 v71, v74, v75"); q("v_add_f32 v70, v70, v71"); q("v_mul_f32 v71, -0.25, v70".replace("-0.25", f32(-0.25)))
    q("v_add_f32 v76, v76, v77"); q("v_add_f32 v78, v78, v79"); q("v_add_f32 v76, v76, v78")
    for k in range(4): q(f"v_add_f32 v{72+k}, v{72+k}, v71")
    q("v_mul_f32 v72, v72, v72"); q("v_fmac_f32 v72, v73, v73"); q("v_fmac_f32 v72, v74, v74"); q("v_fmac_f32 v72, v75, v75")
    q(f"v_mul_f32 v76, {f32(1/640)}, v76"); q(f"v_fmac_f32 v76, {f32(0.25)}, v72"); q("v_mov_b32 v72, v76")
    q("v_cvt_pk_bf16_f32 v73, v71, v72")
    q("v_lshlrev_b32 v71, 16, v73"); q("v_and_b32 v72, 0xffff0000, v73")
    q(f"v_add_f32 v72, {f32(1e-5)}, v72")
    q("v_cvt_pk_bf16_f32 v72, v72, v72"); q("v_lshlrev_b32 v72, 16, v72")
    q("v_sqrt_f32 v72, v72"); q("s_nop 0")
    q("v_cvt_pk_bf16_f32 v72, v72, v72"); q("v_lshlrev_b32 v72, 16, v72")
    q("v_rcp_f32 v72, v72")
    q(f"s_lshr_b32 s{sT}, s{sT+5}, 2"); q(f"s_mul_i32 s{sT}, s{sT}, 81920")
    q(f"s_and_b32 s{sT+1}, s{sT+5}, 3"); q(f"s_lshl_b32 s{sT+1}, s{sT+1}, 10"); q(f"s_add_u32 s{sT}, s{sT}, s{sT+1}")
    q(f"s_mul_i32 s{sT+1}, s{sW}, 20480"); q(f"s_add_u32 s{sT}, s{sT}, s{sT+1}")
    q("v_sub_f32 v70, 0, v71"); q("v_mov_b32 v71, v70"); q("v_mov_b32 v73, v72")
    for i in range(20):
        t = 74 + 2*(i & 1)
        q(f"v_pk_add_f32 {vr(t,2)}, {vr(U+2*i,2)}, v[70:71]")
        q(f"v_cvt_pk_bf16_f32 v{t}, v{t}, v{t+1}")
        q(f"v_and_b32 v{t+1}, 0xffff0000, v{t}"); q(f"v_lshlrev_b32 v{t}, 16, v{t}")
        q(f"v_pk_mul_f32 {vr(t,2)}, {vr(t,2)}, v[72:73]")
        q(f"v_cvt_pk_bf16_f32 v{X+i}, v{t}, v{t+1}")
        if i % 4 == 3:
            q(f"buffer_store_dwordx4 {vr(X+i-3)}, v{vL16}, s[4:7], s{sT} offen{SC1}"); q(f"s_add_u32 s{sT}, s{sT}, 4096")
    q(f"s_lshr_b32 s{sT+1}, s{sT+5}, 2"); q(f"s_lshl_b32 s{sT+1}, s{sT+1}, {OPT['lnsh']}"); q(f"s_and_b32 s{sT}, s{sT+5}, 3"); q(f"s_lshl_b32 s{sT}, s{sT}, 3"); q(f"s_add_u32 s{sT+1}, s{sT+1}, s{sT}"); q(f"s_add_u32 s{sT+1}, s{sT+1}, {FL_LN}")
    q("s_waitcnt vmcnt(0)"); q("s_barrier")
    q.add(signal(sT+1))
    stamp(q, 17)
    q("S_pk1:")
    return ln.items

def kernel():
    p = Prog()
    p("s_cmp_ge_u32 s2, 256"); p("s_cbranch_scc1 K_end")
    p(f"s_load_dwordx16 s[72:87], s[0:1], 0"); p(f"s_load_dwordx8 s[88:95], s[0:1], 64")
    p("s_getpc_b64 s[96:97]"); p("K_pc:"); p("s_mov_b32 s98, K_codeend-K_pc"); p("s_mov_b32 s99, 0x20000")
    if OPT['ct0']:
        p(f"v_lshlrev_b32 v{vCT}, {OPT['ct0']+4}, v0"); p(f"buffer_load_dword v201, v{vCT}, s[96:99], 0 offen")
    p(f"v_lshrrev_b32 v1, 6, v0"); p(f"v_and_b32 v{vLANE}, 63, v0")
    p(f"v_readfirstlane_b32 s{sW}, v1")
    p(f"s_and_b32 s{sH}, s2, 7"); p(f"s_lshl_b32 s{sH}, s{sH}, 2"); p(f"s_bfe_u32 s{sT}, s2, 0x20003"); p(f"s_add_u32 s{sH}, s{sH}, s{sT}")
    p(f"s_lshr_b32 s{sI}, s2, 5")
    p(f"s_bfe_u32 s{sX10}, s{sH}, 0x10002"); p(f"s_lshl_b32 s{sX10}, s{sX10}, 1"); p(f"s_bfe_u32 s{sT}, s{sH}, 0x10003"); p(f"s_add_u32 s{sX10}, s{sX10}, s{sT}"); p(f"s_lshl_b32 s{sX10}, s{sX10}, 10")
    p(f"v_lshlrev_b32 v{vL16}, 4, v{vLANE}"); p(f"v_add_u32 v{vL1K}, 1024, v{vL16}")
    if OPT['stamp']: p(f"v_mov_b32 v{vSTAMP}, 0")
    p(f"s_lshr_b32 s{sT}, s2, 4"); p(f"s_lshl_b32 s{sT}, s{sT}, 2"); p(f"s_add_u32 s{sT}, s{sT}, s{sW}"); p(f"s_and_b32 s{sT}, s{sT}, 15"); p(f"s_lshl_b32 s{sT}, s{sT}, 13")
    p(f"v_lshlrev_b32 v{vCT}, 7, v{vLANE}"); p(f"v_add_u32 v{vCT}, s{sT}, v{vCT}")
    stamp(p, 0)
    p("s_waitcnt lgkmcnt(0)")
    side_issue(p)
    srd(p, sFL, kWS, SZ_FL, WS_FL)
    p(f"s_load_dwordx2 s[{sNON}:{sNON+1}], s[{sFL}:{sFL+1}], 0")
    t = vT
    p(f"v_lshrrev_b32 v{t}, 3, v2"); p(f"v_and_b32 v{t+1}, 7, v2"); p(f"v_bfe_u32 v{t+2}, v2, 4, 2")
    p(f"v_lshlrev_b32 v{t+3}, 1, v{t+2}"); p(f"v_xor_b32 v{t+3}, v{t+3}, v{t+1}"); p(f"v_lshlrev_b32 v{t+3}, 4, v{t+3}")
    p(f"v_lshrrev_b32 v{t+4}, 2, v{t}"); p(f"v_lshlrev_b32 v{t+4}, 3, v{t+4}")
    p(f"v_and_b32 v{t+5}, 3, v{t}"); p(f"v_add_u32 v{t+4}, v{t+4}, v{t+5}")
    p(f"s_lshr_b32 s{sT+2}, s{sW}, 1"); p(f"s_lshl_b32 s{sT+2}, s{sT+2}, 5")
    p(f"s_and_b32 s{sT+3}, s{sW}, 1"); p(f"s_lshl_b32 s{sT+3}, s{sT+3}, 2"); p(f"s_add_u32 s{sT+2}, s{sT+2}, s{sT+3}")
    p(f"v_add_u32 v{t+4}, s{sT+2}, v{t+4}")
    p(f"v_mul_u32_u24 v{t+4}, 12288, v{t+4}"); p(f"v_add_u32 v{vWQ}, v{t+4}, v{t+3}")
    p(f"s_lshl_b32 s{sT+2}, s{sW}, 3"); p(f"v_add_u32 v{t+4}, s{sT+2}, v{t}")
    p(f"v_mul_u32_u24 v{t+5}, 384, v{t+4}"); p(f"v_add_u32 v{vDV}, v{t+5}, v{t+3}")
    p(f"v_bfe_u32 v{t+6}, v{t+4}, 1, 3"); p(f"v_xor_b32 v{t+6}, v{t+6}, v{t+1}")
    p(f"v_lshl_add_u32 v{vDK}, v{t+6}, 4, v{t+5}")
    p(f"s_and_b32 s{sT+3}, s{sW}, 1"); p(f"s_lshl_b32 s{sT+3}, s{sT+3}, 5")
    p(f"v_lshrrev_b32 v{t+4}, 2, v{t}"); p(f"v_lshlrev_b32 v{t+4}, 3, v{t+4}"); p(f"v_and_b32 v{t+5}, 3, v{t}"); p(f"v_add3_u32 v{t+4}, v{t+4}, v{t+5}, s{sT+3}")
    p(f"v_mul_u32_u24 v{t+4}, 3072, v{t+4}"); p(f"v_add_u32 v{t+4}, v{t+4}, v{t+3}")
    p(f"s_bitcmp{OPT['hv']}_b32 s{sH}, 2"); p(f"s_cselect_b32 s{sT+3}, 128, 64")
    p(f"v_mov_b32 v{t+5}, 0x10000000"); p(f"v_cmp_gt_u32 vcc, s{sT+3}, v{t+3}"); p("s_nop 1"); p(f"v_cndmask_b32 v{vGU}, v{t+5}, v{t+4}, vcc")
    p(f"s_lshl_b32 s{sWQm}, s{sW}, 11"); p(f"s_lshl_b32 s{sGUm}, s{sW}, 12")
    ny = 0
    if not OPT['lnfirst']:
        for sc, m in a_wloads(0):
            p.add(sc); p("s_nop 0"); p.add(m); ny += 1
    p(f"v_mov_b32 v{t}, 0x10000000"); p("v_cmp_eq_u32 vcc, 0, v0"); p("s_nop 1"); p(f"v_cndmask_b32 v{vSIG}, v{t}, v0, vcc")
    p("s_waitcnt lgkmcnt(0)")
    p(f"s_add_u32 s{sNON}, s{sNON}, 0x7f4a7c15"); p(f"s_addc_u32 s{sNON+1}, s{sNON+1}, 0x9e3779b9")
    p(f"v_mov_b32 v{vNON}, s{sNON}"); p(f"v_mov_b32 v{vNON+1}, s{sNON+1}")
    stamp(p, 1)
    head = p.items
    ln = side_work(p, ny)
    p = Prog()
    touch_setup(p)
    pack_setup(p)
    c_setup(p)
    p(f"v_lshrrev_b32 v{t}, 2, v2"); p(f"v_and_b32 v{t+1}, 3, v2"); p(f"v_bfe_u32 v{t+2}, v2, 3, 2")
    p(f"v_lshlrev_b32 v{t+3}, 7, v{t}")
    p(f"v_lshlrev_b32 v{t+4}, 1, v{t+2}"); p(f"v_xor_b32 v{t+4}, v{t+4}, v{t+1}")
    p(f"v_lshl_add_u32 v{vAQ}, v{t+4}, 4, v{t+3}"); p(f"v_xor_b32 v{vAQ+1}, 64, v{vAQ}")
    for j in range(2): p(f"v_add_u32 v{vAQ+2+j}, {2*A_STAGE}, v{vAQ+j}")
    p(f"v_lshl_add_u32 v{t+4}, v{t+2}, 5, v{t+3}"); p(f"v_lshl_add_u32 v{t+4}, v{t+1}, 3, v{t+4}")
    p(f"v_add_u32 v{vV}, {V_RING}, v{t+4}")
    for u in range(1, 4): p(f"v_xor_b32 v{vV+u}, {32*u}, v{vV}")
    for u in range(4):
        p(f"v_subrev_u32 v{vAG[0]+u}, {V_RING-24576}, v{vV+u}"); p(f"v_add_u32 v{vAG[1]+u}, {2*A_STAGE+24576-V_RING}, v{vV+u}")
    p(f"v_add_u32 v{vDV2}, {SLOT}, v{vDV}")
    p(f"v_lshlrev_b32 v{vP4}, 3, v{t+1}")
    p(f"v_and_b32 v{t}, 15, v2"); p(f"v_lshrrev_b32 v{t+1}, 4, v2"); p(f"v_bfe_u32 v{t+2}, v2, 1, 3")
    p(f"v_xor_b32 v{t+1}, v{t+1}, v{t+2}"); p(f"v_lshlrev_b32 v{t}, 7, v{t}"); p(f"v_lshl_add_u32 v{t}, v{t+1}, 4, v{t}")
    p(f"v_add_u32 v{vK0}, {K_RING}, v{t}"); p(f"v_xor_b32 v{vK0+1}, 64, v{vK0}")
    p(f"v_and_b32 v{vP8}, 7, v2"); p(f"v_lshlrev_b32 v{vP8}, 3, v{vP8}")
    p(f"s_lshl_b32 s{sT+1}, s{sI}, 2"); p(f"s_add_u32 s{sT+1}, s{sT+1}, s{sW}")
    p(f"s_mul_i32 s{sT+2}, s{sT+1}, 81920"); srd(p, 20, kWS, 81920, f"s{sT+2}")
    p(f"s_mul_i32 s{sT+2}, s{sT+1}, {240*4096}"); p(f"s_add_u32 s{sT+2}, s{sT+2}, {WS_OF}"); srd(p, 24, kWS, 240*4096, f"s{sT+2}")
    p(f"s_lshl_b32 s{sT+4}, s{sT+1}, {OPT['lnsh']}"); p(f"s_add_u32 s{sT+4}, s{sT+4}, {FL_LN}")
    p(f"s_lshl_b32 s{sT+2}, s{sW}, 10")
    p(f"s_add_u32 s{sKb}, s{sT+2}, {K_RING}"); p(f"s_add_u32 s{sVb}, s{sT+2}, {V_RING}")
    p(f"s_mul_i32 s{sT+2}, s{sH}, 786432")
    srd(p, 4, kK, 786432, f"s{sT+2}"); srd(p, 8, kV, 786432, f"s{sT+2}")
    def w1(q):
        n = 0
        for it in range(2, OPT['td']):
            for sc, m in touch(it): q.add(sc); q.add(m); n += 1
        for sc, m in a_wloads(1):
            q.add(sc); q("s_nop 0"); q.add(m); n += 1
        return n
    p(f"s_bitcmp0_b32 s{sH}, 0"); p("s_cbranch_scc1 S_e0")
    c0 = p.items; p = Prog(); w1(p); odd0 = p.items; p = Prog()
    p("S_e0:")
    stamp(p, 2)
    poll(p, "A_pl", vP4, sT+4, slp=OPT["lslp"])
    stamp(p, 3)
    for it in range(2):
        for sc, m in a_xloads(it): p.add(sc); p.add(m)
    p("s_barrier")
    LA = 4
    for f in range(LA): p.add(a_read(0, f >> 1, f & 1, f, f))
    p(f"s_bitcmp1_b32 s{sH}, 0"); p("s_cbranch_scc1 S_o1")
    c1 = p.items; p = Prog(); n1 = w1(p); p(f"s_waitcnt vmcnt({8+n1})"); p("s_branch S_c2"); ev1 = p.items
    p = Prog(); p("S_o1:"); p("s_waitcnt vmcnt(8)"); od1 = p.items
    p = Prog(); p("S_c2:")
    p.wait(lgkm=('af', 1))
    stamp(p, 4)
    p(f"s_bitcmp{1-OPT['hv']}_b32 s{sH}, 2"); p("s_cbranch_scc1 A_light")
    c2 = p.items
    hvy = phase_a(4) + [Ins("s_branch A_done")]
    lgt = [Ins("A_light:")] + phase_a(2)
    p = Prog(); p("A_done:")
    c_setup2(p)
    p(f"s_mov_b32 s{sPass}, 0")
    p(f"s_mov_b32 s{sT+4}, {f32(QSCALE)}"); p(f"s_mov_b32 s{sT+5}, s{sT+4}")
    for ks in range(6):
        for qt in range(4):
            d = QF + (ks*4+qt)*4
            for e in range(2):
                s = QACC + ((2*ks+e)*4+qt)*4
                p(f"v_pk_mul_f32 {vr(s,2)}, {vr(s,2)}, s[{sT+4}:{sT+5}]")
                p(f"v_pk_mul_f32 {vr(s+2,2)}, {vr(s+2,2)}, s[{sT+4}:{sT+5}]")
                p(f"v_cvt_pk_bf16_f32 v{d+2*e}, v{s}, v{s+1}"); p(f"v_cvt_pk_bf16_f32 v{d+2*e+1}, v{s+2}, v{s+3}")
    for qt in range(4): p(f"v_mov_b32 v{MXI+qt}, 0xff800000")
    pa = p.items

    a = Prog()
    L2 = OPT.get('lst') == 2
    a("K_attn:")
    a(f"s_mov_b32 s{sKo}, {4*SLOT}"); a(f"s_mov_b32 s{sVo}, 0")
    a.wait(vm=[('K', 0), ('K', 1)]); a("s_barrier")
    stamp(a, 6)
    if L2: stamp(a, 1, True)
    for f in range(6): a.add(kfrag_read(f, 0))
    G = Gaps(qk_mfmas(-1, czero=True))
    a.wait(lgkm=('kf', 2)); G.sc(1, Wait(lgkm=('kf', 5)))
    for f in range(6, 12): G.mem(2*(f-6)+2, kfrag_read(f, 0))
    G.sc(23, Wait(lgkm=('kf', 11)))
    for k, (mi, d) in enumerate(u_dma(2, sVo)):
        d.meta['slot'] = [d.meta['slot'], ('A', 2)]; G.sc(16+8*k, mi); G.mem(17+8*k, d)
    G.sc(30, Ins(f"s_mov_b32 s{sVo}, {2*SLOT}"))
    a.add(G.items())
    a("s_barrier")
    for g, m in sorted(PLAN['mem'].items()):
        kind, mp, f, rd, early = m
        if g > PLAN['bar'][1] and early:
            if kind == 'k': a.add(kfrag_read(f, 1))
            elif kind == 'dma':
                mi, d = k_dma(4, sKo)[f] if f < 3 else u_dma(3, sVo)[f-3]
                a.add(mi); a("s_nop 0"); a.add(d)
                if f == 2: a(f"s_add_u32 s{sKo}, s{sKo}, {SLOT}")
    for qt in range(4):
        s0 = SR + qt*4; s1 = SR + 16 + qt*4; m = vX + qt
        a(f"v_max3_f32 v{m}, v{s0}, v{s0+1}, v{MXI+qt}")
        a(f"v_max3_f32 v{m}, v{s0+2}, v{s0+3}, v{m}")
        a(f"v_max3_f32 v{m}, v{s1}, v{s1+1}, v{m}")
        a(f"v_max3_f32 v{m}, v{s1+2}, v{s1+3}, v{m}")
    xlane4(a, "v_max_f32", [vX+q for q in range(4)], vX+4)
    for qt in range(4):
        for r in range(4): a(f"v_sub_f32 v{MR+4*qt+r}, 0, v{vX+qt}")
        a(f"v_mov_b32 v{LR+qt}, 0")
        for kt in range(2):
            for r in range(0, 4, 2):
                s = SR + (kt*4+qt)*4 + r
                a(f"v_pk_add_f32 {vr(s,2)}, {vr(s,2)}, {vr(MR+4*qt,2)}")
    for (c, t_, kt, qt), g in sorted(zip(softmax_items(0), PLAN['vpos'][1]), key=lambda x: x[1]):
        if g < 112: a(t_)
    a.wait(lgkm=[('kf', 12+f) for f in range(OPT['kg'])])
    a("s_nop 1")
    if L2: stamp(a, 2, True)
    for i in range(4):
        G = attn_step(i, 0, pv=(i > 0), czero=(i in (1, 2)))
        if i == 2:
            G.S[G.barg-1][-1].vm.append(('H', 0))
            l = [[[], signal(sFH), []]]; fill(G, l, G.barg+2, G.n-1, 1); assert not l
        a.add(G.items())
        if L2: stamp(a, 3+i, True)
    body = []
    for i in range(4, 8):
        G = attn_step(i, 4)
        if i == 7:
            G.sc(free_sc(G, 30), Ins(f"s_sub_u32 s{sCnt}, s{sCnt}, 1"))
            G.sc(G.n-1, Ins(f"s_cmp_gt_i32 s{sCnt}, 0"))
        body += G.items()
    body.append(Ins("s_cbranch_scc1 K_loop"))
    a(f"s_mov_b32 s{sCnt}, 13")
    a(".p2align 6"); a("K_loop:")
    mid = [Ins(f"s_cmp_lt_i32 s{sCnt}, 0"), Ins("s_cbranch_scc1 K_lx")] + hpoll_loads("0", ('hp', 13)) + \
          [Ins(f"buffer_load_dword v0, v{vCT}, s[96:99], 0 offen"), Ins("s_branch K_loop"), Ins("K_lx:")]
    a.add(Loop("K_loop", 14, body, mid=(12, mid)))
    if L2: stamp(a, 7, True)
    def wl(ns, extra_slots):
        out = []
        for n in ns:
            l, po = c_wloads(n)
            for sc, m in l:
                m.meta['slot'] = [m.meta['slot']] + extra_slots
                out.append([list(sc), m, []])
            out[-1][2].extend(po)
        return out
    def bl(ns):
        out = []
        for n in ns:
            l, po = c_bloads(n)
            for sc, m in l: out.append([list(sc), m, []])
            out[-1][2].extend(po)
        return out
    w012 = wl(range(3), [('A', 0)]); w34 = wl([3], [('U', 61 % 4)]) + wl([4], [('K', 0), ('K', 1), ('K', 2)]); w5 = wl([5], [('K', 2), ('K', 3)])
    b0 = bl([0]); b12 = bl(range(1, OPT['nb']))
    a.wait(vm=('hp', 13)); hpoll(a, "C_ph"); a.add(c_fcursors())
    if OPT['wt']:
        a(f"v_lshlrev_b32 v{vCT}, 7, v{vLANE}")
        a(f"s_mul_i32 s{sT}, s{cC}, 245760"); a(f"s_mul_i32 s{sT+1}, s{sI}, 30720"); a(f"s_add_u32 s{sT}, s{sT}, s{sT+1}")
        a(f"s_mul_i32 s{sT+1}, s{cW1}, 3"); a(f"s_add_u32 s{sT}, s{sT}, s{sT+1}"); a(f"s_add_u32 s{sT+1}, s{sT}, 7680")
    Gs = {}
    for i in range(60, 65):
        G = attn_step(i, 0, qk=(i < 63)); BARG = G.barg; Gs[i] = G
        if i == OPT['wt']:
            l = [[[], Ins(f"buffer_load_dword v{vX+k}, v{vCT}, s[12:15], s{sT+k} offen{SC1}"), []] for k in range(2)]
            fill(G, l, 30, G.n-1, 16); assert not l
        if i == 61: fill(G, w012, max(g for g in range(G.n) if has_dma(G, g))+3, G.n-1, OPT['esp']); w34 = w012 + w34
        if i == 62:
            fill(G, w34, 2, BARG-2, 4); w5 = w34 + w5
            fill(G, w5, BARG+2, G.n-1, 3)
        if i == 63:
            for k in range(16): G.mem(BARG+2+k+(k//2)//2, vfrag_read(k//2, k % 2, 64))
    def loc(g): return (Gs[63], 48+g) if g < 64 else (Gs[64], g-16)
    cur = [0]
    def put(text, cost=1, ming=0, gapafter=0, kind='v', **meta):
        g = max(cur[0], ming)
        while True:
            G, lg = loc(g)
            if kind == 's': break
            if G.cap[lg] >= cost and not (kind == 'm' and (G.N[lg] or G.V[lg])): break
            g += 1
        x = Ins(text, **meta)
        if kind == 'v': G.valu(lg, x, cost)
        elif kind == 'm': G.mem(lg, x)
        else: G.V[lg].append(x)
        cur[0] = g + gapafter
        return g
    L_ = [LR+q for q in range(4)]
    for sw in ("v_permlane32_swap_b32", "v_permlane16_swap_b32"):
        for k, r in enumerate(L_): put(f"v_mov_b32 v{vX+k}, v{r}", gapafter=(1 if k == 3 else 0))
        for k, r in enumerate(L_): put(f"{sw} v{r}, v{vX+k}", 2)
        for k, r in enumerate(L_): put(f"v_add_f32 v{r}, v{r}, v{vX+k}")
    put(f"s_mov_b32 s{sT}, 0x5d800000", kind='s')
    put(f"v_cmp_nle_f32 s[{sT+2}:{sT+3}], v{LR}, s{sT}")
    for qt in range(1, 4):
        put(f"v_cmp_nle_f32 vcc, v{LR+qt}, s{sT}", gapafter=1); put(f"s_or_b64 s[{sT+2}:{sT+3}], s[{sT+2}:{sT+3}], vcc", kind='s')
    put(f"s_or_b32 s{sT+2}, s{sT+2}, s{sT+3}", kind='s', gapafter=1)
    put(f"v_mov_b32 v{vX}, s{sT+2}"); put(f"v_mov_b32 v{vX+1}, s{sVOTE}", gapafter=1)
    g = put(f"ds_write_b32 v{vX+1}, v{vX}", kind='m', gapafter=1)
    assert g < Gs[63].barg - 48 - 3, g
    for qt in range(4): put(f"v_rcp_f32 v{LR+qt}, v{LR+qt}", 2)
    put(f"v_mov_b32 v{vK0}, {VOTE}", gapafter=1)
    for j, qt in EARLY[:OPT['ncv']]:
        for ee in range(2):
            for r in range(4): put(f"v_accvgpr_read_b32 v{vX+4*ee+r}, a{((2*j+ee)*4+qt)*4+r}", ming=16*j+8*ee+2*qt+1+6)
        sc, m = o_store(j, qt, vX)
        for x in sc: put(x.text, kind='s', gapafter=1)
        for r in range(8): put(f"v_mul_f32 v{vX+r}, v{vX+r}, v{LR+qt}")
        for h in range(4): put(f"v_cvt_pk_bf16_f32 v{vX+h}, v{vX+2*h}, v{vX+2*h+1}", gapafter=(1 if h == 3 else 0))
        put(m.text, kind='m', gapafter=2, tag=('O', 0))
    sys.stderr.write(f"final block: last gap {cur[0]}\n")
    l = w5 + b0 + b12
    fill(Gs[63], l, 30, 111, 3); fill(Gs[64], l, 49, 79, 3); assert not l, len(l)
    Gs[64].N[50].append(Ins(f"ds_read_b128 {vr(MXI)}, v{vK0}"))
    for i in range(60, 65):
        a.add(Gs[i].items())
        if L2: stamp(a, 8+i-60, True)
    stamp(a, 7)
    a(f"v_or_b32 v{MXI}, v{MXI}, v{MXI+1}"); a(f"v_or3_b32 v{MXI}, v{MXI}, v{MXI+2}, v{MXI+3}"); a("s_nop 0")
    a(f"v_readfirstlane_b32 s{sT}, v{MXI}")
    a(f"s_cmp_eq_u32 s{sT}, 0"); a("s_cbranch_scc1 K_epi")
    a(f"s_cmp_eq_u32 s{sPass}, 0"); a("s_cbranch_scc1 K_fb")

    e = Prog()
    e("K_epi:")
    if OPT.get('lst') == 2: stamp(e, 13, True)
    phase_c(e)
    if OPT['stamp']: e("s_waitcnt vmcnt(0)")
    stamp(e, 16); stamp_out(e)
    e("K_end:")
    e("s_endpgm")

    fb = Prog()
    fb("K_fb:")
    fb(f"s_mov_b32 s{sPass}, 1");  fb(f"s_mov_b32 s{sKo}, 0"); fb(f"s_mov_b32 s{sCnt}, 64")
    fb(f"v_xor_b32 v{vK0}, 64, v{vK0+1}")
    for qt in range(4): fb(f"v_mov_b32 v{MXI+qt}, 0xff800000")
    fb("s_waitcnt vmcnt(0)"); fb("s_barrier")
    fb("K_fbl:")
    fb.loop_begin("K_fbl", 2)
    for mi, d in k_dma(1000, sKo, 4):
        fb.add(mi); fb("s_nop 0"); fb.add(d)
    fb(f"s_add_u32 s{sKo}, s{sKo}, {SLOT}")
    fb("s_waitcnt vmcnt(0)"); fb("s_barrier")
    for f in range(12): fb.add(kfrag_read(f, 1000, 4))
    fb("s_waitcnt lgkmcnt(0)"); fb.add(qk_mfmas(999, czero=True))
    fb("s_nop 7")
    for qt in range(4):
        for kt in range(2):
            s0 = SR + (kt*4+qt)*4
            fb(f"v_max3_f32 v{MXI+qt}, v{s0}, v{s0+1}, v{MXI+qt}")
            fb(f"v_max3_f32 v{MXI+qt}, v{s0+2}, v{s0+3}, v{MXI+qt}")
    fb("s_barrier")
    fb(f"s_sub_u32 s{sCnt}, s{sCnt}, 1"); fb(f"s_cmp_lg_u32 s{sCnt}, 0"); fb("s_cbranch_scc1 K_fbl")
    fb.loop_end()
    for tl in range(4):
        fb(f"s_mov_b32 s{sKo}, {tl*SLOT}")
        for mi, d in k_dma(tl, sKo): fb.add(mi); fb("s_nop 0"); fb.add(d)
    fb(f"s_mov_b32 s{sVo}, 0")
    for mi, d in u_dma(1, sVo): fb.add(mi); fb("s_nop 0"); fb.add(d)
    fb("s_waitcnt vmcnt(0)")
    fb("s_branch K_attn")
    fb("K_codeend:")

    out = Prog(); out.items += head + ln + c0 + odd0 + c1 + ev1 + od1 + c2 + hvy + lgt + pa + a.items + e.items + fb.items
    chks = []
    for mid in (hvy, lgt):
        res = Prog(); res.items += skip_retry(head + ln + c0 + c1 + ev1 + c2 + mid + pa + a.items + e.items); res.resolve()
    for mid in (hvy, lgt):
        c = Prog(); c.items += skip_retry(head + ln + c0 + c1 + ev1 + c2 + mid + pa + a.items + fb.items + a.items + e.items); chks.append(c)
        c = Prog(); c.items += head + c0 + odd0 + c1 + od1 + c2 + mid[:900]; chks.append(c)
    return out, chks

def skip_retry(items):
    out = []; skipping = None
    for k, x in enumerate(items):
        if isinstance(x, Ins):
            if x.text.startswith("s_branch") and x.text.endswith("_chk"):
                skipping = x.text.split()[1] + ":"
            elif skipping and x.text == skipping: skipping = None
            elif skipping: continue
        out.append(x)
    return out

HDR = open('recurrent_scan__mha_block_cached__swiglu_ffn__prompt.s.ref').read().split('; Override launch')[0]
def main():
    out = [HDR.rstrip(), "; @launch grid=(256,1,1) block=(256,1,1) lds=163840", '.amdgcn_target "amdgcn-amd-amdhsa--gfx950"', ".text"]
    prog, chks = kernel()
    ok = all([c.check("k") for c in chks])
    out += [f".globl {NAME}", ".p2align 8", f".type {NAME},@function", f"{NAME}:"] + prog.emit()
    out += ['.section .rodata,"a"', ".p2align 6", f".amdhsa_kernel {NAME}", "  .amdhsa_next_free_vgpr 512", "  .amdhsa_next_free_sgpr 102",
            "  .amdhsa_accum_offset 256", "  .amdhsa_group_segment_fixed_size 0", "  .amdhsa_kernarg_size 96",
            "  .amdhsa_user_sgpr_count 2", "  .amdhsa_user_sgpr_kernarg_segment_ptr 1", "  .amdhsa_system_sgpr_workgroup_id_x 1", ".end_amdhsa_kernel"]
    print("\n".join(out))
    if not ok: sys.stderr.write("CHECK FAILED\n"); sys.exit(1)
main()
```

```python
import sys, struct
from asmlib import *

OPT = dict(stamp=0, look=5, barg=80, slp=2, fpub=0, warm=1, sigst=4, early=1, td=4, pair=1, pf0=14, pfi=1, cdiv=2, wt=0, hv=0, hord=0, ndef=4, dsp=40, pc=6, fc=24, cu=12, cst=12, fv=5, ncv=3, pubst=7, pubn=6, fsig=16, xst=26, ctouch=2, ct0=0, g0=27, span=88, dcap=0, bcap=1, lcap=1, dstep=7, noex=0, lnfirst=0, chain=6, nb=3, kg=3, vg=1, strict=0, pk0=1, bs=24, bl=28, lookg=20, vsp=4, phs=24, phl=40, lnsh=7, lslp=8, e0=60, esp=4)
for a in sys.argv[1:]:
    k, v = a.split('='); OPT[k] = int(v, 0)
NAME = "recurrent_scan__mha_block_cached__swiglu_ffn__prompt_kernel"

WS_XN = 0x0;        SZ_XN = 2048 * 640 * 2
WS_WP = 0x400000;   SZ_WP = 7680 * 640 * 2
WS_OF = 0x1000000;  SZ_OF = 2048 * 7680 * 2
XBW = 2560; WS_XB = 0x3000000;  SZ_XB = 64*4*3*2*4*XBW
WS_FL = 0x5000000;  SZ_FL = 32768
FL_LN = 24576; FL_H = 2048; FL_O = 4096; FL_X = 8192; FL_F = 16384
def f32(x): return "0x%08x" % struct.unpack('<I', struct.pack('<f', x))[0]
MF = "v_mfma_f32_16x16x32_bf16"
SC1 = " sc1"
def vr(b, n=4): return f"v[{b}:{b+n-1}]"
def ar(b, n=4): return f"a[{b}:{b+n-1}]"
LOG2E = 1.4426950408889634
QSCALE = LOG2E / (192 ** 0.5)

sW = 28; sH = 29; sKb = 30; sVb = 31; sKo = 32; sVo = 33; sCnt = 34; sPass = 35; sWQm = 36; sGUm = 37; sI = 38; cC = 39; sT = 40
cWo = 50; cBo = 51; cM = 52; cXO = 53; cXB = 54; cTile = 55; sFL = 56; sNON = 66; cW1 = 68; sFO = 46; sFH = 47; sFX = 48; sVOTE = 49; sX10 = 3; sOb = 100; sWPo = 101; sROLE = 65 if not OPT['stamp'] else 34; sHo = 64 if not OPT['stamp'] else 35; HS = [78, 79, 80, 81, 84, 85, 86, 87]; sPRED = 33; vGU0 = 24
kX = 72; kK = 74; kV = 76; kWQ = 78; kWO = 80; kWG = 84; kWU = 86; kWD = 88; kOUT = 90; kWS = 94
vL1K = 1; vLANE = 2; vL16 = 3; vK0 = 4; vV = 6; vDK = 10; vDV = 11
vWQ = 12; vGU = 13; vAQ = 14; vAG = [18, 50]
cvA = 12; cvB = 15; cvH = 20; vL8 = 22
vSIG = 25; vNON = 26; vP4 = 60; vP8 = 61; vSTAMP = 62; vCT = 63
vT = 28; vPOLL = 248; vX = 248; vDV2 = 23
QACC = 64; QF = 64; SR = 160; PR = 192; MR = 224; LR = 240; MXI = 244
XB = 128; RING = 192; ARING = 224
A_STAGE = 40960
K_RING = 114688; V_RING = 65536; SLOT = 12288
VOTE = 114688 + 4096

def srd(p, d, lo, size, add=None):
    if add is None: p(f"s_mov_b32 s{d}, s{lo}"); p(f"s_mov_b32 s{d+1}, s{lo+1}")
    else: p(f"s_add_u32 s{d}, s{lo}, {add}"); p(f"s_addc_u32 s{d+1}, s{lo+1}, 0")
    if size is not None: p(f"s_mov_b32 s{d+2}, {size}")
    p(f"s_mov_b32 s{d+3}, 0x20000")

def xlane(p, op, a, t):
    p(f"v_mov_b32 v{t}, v{a}"); p("s_nop 1")
    p(f"v_permlane32_swap_b32 v{a}, v{t}"); p("s_nop 1")
    p(f"{op} v{a}, v{a}, v{t}")
    p(f"v_mov_b32 v{t}, v{a}"); p("s_nop 1")
    p(f"v_permlane16_swap_b32 v{a}, v{t}"); p("s_nop 1")
    p(f"{op} v{a}, v{a}, v{t}")
def xlane4(p, op, regs, t):
    for sw in ("v_permlane32_swap_b32", "v_permlane16_swap_b32"):
        for i, a in enumerate(regs): p(f"v_mov_b32 v{t+i}, v{a}")
        p("s_nop 0")
        for i, a in enumerate(regs): p(f"{sw} v{a}, v{t+i}")
        for i, a in enumerate(regs): p(f"{op} v{a}, v{a}, v{t+i}")

NST = [0]
def stamp(p, idx, alt=False):
    if OPT.get('lst') in (2, 3) and not alt and idx not in (0,): return
    if OPT['stamp']:
        p("s_memtime s[64:65]" if OPT.get("clk") else "s_memrealtime s[64:65]"); p("s_waitcnt lgkmcnt(0)")
        p(f"v_writelane_b32 v{vSTAMP}, s64, {idx}")
def stamp_out(p):
    if not OPT['stamp']: return
    if OPT['stamp'] == 2:
        p(f"s_cmp_lg_u32 s2, {OPT.get('dwg', 1)}"); p("s_cbranch_scc1 K_so")
        p(f"s_cmp_lg_u32 s{sW}, 0"); p("s_cbranch_scc1 K_so")
        p("s_mov_b32 s4, s92"); p("s_mov_b32 s5, s93"); p("s_mov_b32 s6, 128"); p("s_mov_b32 s7, 0x20000")
        p(f"v_readlane_b32 s64, v{vSTAMP}, 0"); p(f"v_lshlrev_b32 v4, 2, v{vLANE}"); p("v_subrev_u32 v4, 4, v4"); p("s_nop 1")
        p(f"v_subrev_u32 v5, s64, v{vSTAMP}")
        p(f"buffer_store_dword v5, v4, s[4:7], 0 offen"); p("s_waitcnt vmcnt(0)")
        p("K_so:")
        return
    p("s_cmp_ge_u32 s2, 64"); p("s_cbranch_scc1 K_so")
    p(f"s_cmp_lg_u32 s{sW}, 0"); p("s_cbranch_scc1 K_so")
    p(f"s_add_u32 s4, s{kWS}, {0xF000000}"); p(f"s_addc_u32 s5, s{kWS+1}, 0"); p("s_mov_b32 s6, 8192"); p("s_mov_b32 s7, 0x20000")
    p("s_lshl_b32 s64, s2, 7"); p(f"v_lshlrev_b32 v4, 2, v{vLANE}"); p("s_mov_b64 exec, 0xffffffff")
    p(f"buffer_store_dword v{vSTAMP}, v4, s[4:7], s64 offen"); p("s_waitcnt vmcnt(0)")
    p("K_so:")

def signal(soff): return Ins(f"buffer_store_dwordx2 {vr(vNON,2)}, v{vSIG}, s[{sFL}:{sFL+3}], s{soff} offen{SC1}")
def poll_load(voff, soff): return Ins(f"buffer_load_dwordx2 {vr(vPOLL,2)}, v{voff}, s[{sFL}:{sFL+3}], s{soff} offen{SC1}", tag=('pl', 0))
def poll(p, lab, voff, soff, pre=False, slp=None, role=False):
    p(f"s_mov_b32 s{sT+2}, 0")
    if pre: p(f"s_branch {lab}_chk")
    p(f"{lab}:")
    p.add(poll_load(voff, soff)); p("s_waitcnt vmcnt(0)")
    p(f"{lab}_chk:")
    if role: p(f"v_readlane_b32 s{sROLE}, v{vPOLL}, 4"); p(f"v_or_b32 v{vPOLL}, 1, v{vPOLL}")
    p(f"v_cmp_ne_u64 vcc, {vr(vNON,2)}, {vr(vPOLL,2)}"); p("s_nop 4")
    p(f"s_cbranch_vccz {lab}_ok")
    p(f"s_sleep {OPT['slp'] if slp is None else slp}")
    p(f"s_add_u32 s{sT+2}, s{sT+2}, 1"); p(f"s_cmp_lt_u32 s{sT+2}, 0x40000"); p(f"s_cbranch_scc1 {lab}")
    p(f"{lab}_ok:")
def hpoll_loads(so="0", tag=('hp', 99)):
    return [Ins(f"buffer_load_dwordx4 {vr(vPOLL+4*j)}, v{vL16}, s[{sFL}:{sFL+3}], {so} offen offset:{FL_H+1024*j}{SC1}", tag=tag) for j in range(2)]
def hpoll(p, lab):
    p(f"s_mov_b32 s{sT+2}, 0"); p(f"s_branch {lab}_chk")
    p(f"{lab}:")
    p.add(hpoll_loads()); p("s_waitcnt vmcnt(0)")
    p(f"{lab}_chk:")
    p(f"v_cmp_ne_u64 s[{sT}:{sT+1}], {vr(vNON,2)}, {vr(vPOLL,2)}")
    for j in range(1, 4):
        p(f"v_cmp_ne_u64 vcc, {vr(vNON,2)}, {vr(vPOLL+2*j,2)}"); p(f"s_or_b64 s[{sT}:{sT+1}], s[{sT}:{sT+1}], vcc")
    p(f"s_cbranch_scc0 {lab}_ok")
    p(f"s_sleep 8")
    p(f"s_add_u32 s{sT+2}, s{sT+2}, 1"); p(f"s_cmp_lt_u32 s{sT+2}, 0x40000"); p(f"s_cbranch_scc1 {lab}")
    p(f"{lab}_ok:")

PB = [192, 208, 28, 44]
NR = 16
def slen(i): return 112 if i & 1 else 80
def fbase(i): return 4 if i == 64 else (20 if i & 1 else 0)
def k_dma(tile, soff, stride=0):
    slot = tile % 4
    return [(Ins(f"s_add_u32 m0, s{sKb}, {slot*SLOT + blk*4096 - blk*128}"),
             Ins(f"buffer_load_dwordx4 v{vDK}, s[4:7], s{soff} offen offset:{blk*128} lds", tag=('K', tile, stride), slot=('K', slot), gen=(tile, stride))) for blk in range(3)]
def u_dma(e, soff, stride=0):
    j = (e-1) >> 1; ps = j & 1; blks = (0, 1) if e & 1 else (2,)
    return [(Ins(f"s_add_u32 m0, s{sVb}, {ps*24576 + blk*8192 + hf*4096 - blk*128}"),
             Ins(f"buffer_load_dwordx4 v{vDV2 if hf else vDV}, s[8:11], s{soff} offen offset:{blk*128} lds", tag=('U', e, stride), slot=('U', e % 4), gen=(e, stride)))
            for blk in blks for hf in range(2)]
def kfrag_read(f, tile, stride=0):
    kt, ks = divmod(f, 6); slot = tile % 4; rs = (fbase(tile-1) + f) % NR
    return Ins(f"ds_read_b128 {ar(RING+4*rs)}, v{vK0 + (ks&1)} offset:{slot*SLOT + (ks>>1)*4096 + kt*2048}",
               tag=('kf', tile*12+f, stride*12), slot=('K', slot), gen=(tile, stride))
def vfrag_read(f, rd, e, stride=0):
    j = (e-1) >> 1; ps = j & 1; dt = (0 if e & 1 else 8) + (f >> 1); hf = f & 1; rs = (fbase(e) + 12 + f) % NR
    return Ins(f"ds_read_b64_tr_b16 {ar(RING+4*rs+2*rd,2)}, v{vV + (dt&3)} offset:{ps*24576 + (dt>>2)*8192 + hf*4096 + rd*2048}",
               tag=('vf', e*16+f, stride*16), slot=('U', e % 4), gen=(e, stride))
def qk_seq():
    ch = OPT['chain']; seq = []
    for kt in range(2):
        for k0 in range(0, 6, ch):
            for qt in range(4):
                r = list(range(k0, k0+ch))
                if qt & 1: r.reverse()
                seq += [(kt, ks, qt) for ks in r]
    return seq
def qk_mfmas(step, czero=False):
    M = []; seen = set()
    for kt, ks, qt in qk_seq():
        s = SR + (kt*4+qt)*4
        c = vr(s) if (kt, qt) in seen else ("0" if czero else vr(MR+4*qt)); seen.add((kt, qt))
        M.append(Ins(f"{MF} {vr(s)}, {ar(RING+4*((fbase(step)+kt*6+ks)%NR))}, {vr(QF+(ks*4+qt)*4)}, {c}"))
    return M
def pv_mfmas(e, czero=False):
    M = []; j = (e-1) >> 1; d0, nd = (0, 8) if e & 1 else (8, 4)
    for dl in range(nd):
        for qt in range(4):
            o = ((d0+dl)*4+qt)*4
            for k, hf in enumerate((0, 1) if qt % 2 == 0 else (1, 0)):
                M.append(Ins(f"{MF} {ar(o)}, {ar(RING+4*((fbase(e)+12+2*dl+hf)%NR))}, {vr(PB[(2*j+hf)%4]+4*qt)}, {'0' if (czero and k == 0) else ar(o)}"))
    return M
def softmax_items(t):
    pb = PB[t % 4]; it = []
    seq = [(kt, qt, r) for kt in range(2) for qt in range(4) for r in range(4)]
    def reg(e): return SR + (e[0]*4+e[1])*4 + e[2]
    def post(e):
        o = [(1, f"v_add_f32 v{LR+e[1]}, v{LR+e[1]}, v{reg(e)}", e[0], e[1])]
        if e[2] & 1: o.append((1, f"v_cvt_pk_bf16_f32 v{pb+4*e[1]+2*e[0]+(e[2]>>1)}, v{reg(e)-1}, v{reg(e)}", e[0], e[1]))
        return o
    for i, e in enumerate(seq):
        it.append((2, f"v_exp_f32 v{reg(e)}, v{reg(e)}", e[0], e[1]))
        if i >= 2: it += post(seq[i-2])
    it += post(seq[-2]) + post(seq[-1])
    return it
def plan_macro():
    N = 192; st0 = [0, 80]; bar = [80 - OPT['bs'], 192 - OPT['bl']]
    qs = qk_seq()
    kfirst = {}; klast = {}; sfirst = {}; slast = {}
    for g, (kt, ks, qt) in enumerate(qs):
        kfirst.setdefault(kt*6+ks, g); klast[kt*6+ks] = g; sfirst.setdefault((kt, qt), g); slast[(kt, qt)] = g
    fr = []
    for par in range(2):
        for f in range(12): fr.append((par, 'k', f, st0[par]+kfirst[f], st0[par]+klast[f]))
        for f in range(16 if par else 8): fr.append((par, 'v', f, st0[par]+48+8*(f >> 1), st0[par]+48+8*(f >> 1)+7))
    mem = {}; pos = {}
    g = bar[1] - N
    for ph, (par, kind, f, first, last) in enumerate(fr):
        prev = fr[(ph - NR) % 48]; pl = prev[4] - (N if ph < NR else 0)
        lo = pl + 1
        if kind == 'k': lo = max(lo, (bar[1]-N if par == 0 else bar[0]) + 1)
        tgt = first - OPT['lookg']
        if kind == 'v':
            nleft = (16 if par else 8) - f
            tgt = min(tgt, bar[par] - 7 - OPT['vsp']*nleft)
        for rd in range(1 if kind == 'k' else 2):
            g = max(g+1, lo, tgt)
            while (g % N) in mem or (g % N) in bar: g += 1
            mem[g % N] = (kind, par, f, rd, g < st0[par]); pos[(par, kind, f)] = g
            assert g <= first - 6, (par, kind, f, g, first)
            if kind == 'v': assert g < bar[par] - 5, (par, f, g)
            if kind == 'k': g += 1
    for ep in range(2):
        n = 7 if ep == 0 else 5
        g = (bar[1] - N if ep == 0 else bar[0]) + 3
        for k in range(n):
            while (g % N) in mem or ((g-1) % N) in bar or (g % N) in bar or ((g+1) % N) in bar or (g % N) in (0, 80): g += 1
            mem[g % N] = ('dma', ep, k, 0, g < st0[ep]); g += OPT['dstep']
        assert g - OPT['dstep'] < bar[ep] - 2
    cap = [2 - (1 if i in mem else 0) for i in range(N)]
    for g_, m_ in mem.items():
        if m_[0] == 'dma' and OPT['dcap'] <= 0: cap[g_] = 0
        if m_[0] == 'dma' and OPT['dcap'] == -1: cap[(g_+1) % N] = min(cap[(g_+1) % N], 1)
    if OPT['bcap'] == 0:
        for b_ in bar: cap[b_] = 0
    vpos = []
    items = softmax_items(0); tot = sum(x[0] for x in items)
    phi = [OPT['phs'], 80 + OPT['phl']]; span = [phi[1]-phi[0]-2, phi[0]+N-phi[1]-2]
    g = phi[0]
    for par in range(2):
        p_ = [None]*len(items); acc = 0; pend = list(range(len(items))); n = slen(par)
        while pend:
            g = max(g, phi[par] + int(acc*span[par]/tot)); placed = False
            for j in range(min(2, len(pend))):
                c, t, kt, qt = items[pend[j]]
                if j > 0 and not (c == 1 and items[pend[0]][0] == 2): continue
                if c <= cap[g % N] and g >= st0[par] + slast[(kt, qt)] + 7:
                    p_[pend[j]] = g - st0[par]; cap[g % N] -= c; acc += c; pend.pop(j); placed = True
                    assert g - st0[par] < n + sfirst[(kt, qt)] - 1, (par, g, t)
                    if par == 0: assert g < 80 + 46
                    break
            if not placed: g += 1
        vpos.append(p_)
    return dict(mem=mem, vpos=vpos, bar=bar, kfirst=kfirst, pos=pos)
PLAN = plan_macro()

def attn_step(i, stride, qk=True, pv=True, czero=False):
    par = i & 1; n = slen(i); s0 = 80*par; BARG = PLAN['bar'][par] - s0
    ex = lambda t, mx: stride != 0 or t <= mx
    M = (qk_mfmas(i) if qk else [None]*48) + (pv_mfmas(i, czero) if pv else [None]*(n-48))
    G = Gaps(M); G.barg = BARG
    for gg, m in sorted(PLAN['mem'].items()):
        g = gg - s0
        if not 0 <= g < n: continue
        kind, mp, f, rd, early = m
        step = i+1 if early else i
        if kind == 'v':
            if step >= 1 and ex(step, 63): G.mem(g, vfrag_read(f, rd, step, stride))
        elif kind == 'k':
            if ex(step+1, 63): G.mem(g, kfrag_read(f, step+1, stride))
        else:
            if f < 3:
                if not ex(step+4, 63): continue
                mi, d = k_dma(step+4, sKo, stride)[f]; post = f"s_add_u32 s{sKo}, s{sKo}, {SLOT}" if f == 2 else None
            else:
                if not ex(step+3, 64): continue
                l = u_dma(step+3, sVo, stride); mi, d = l[f-3]; post = f"s_add_u32 s{sVo}, s{sVo}, {2*SLOT}" if (f-3 == len(l)-1 and (step+3) % 2 == 0) else None
            G.sc(g-1, mi); G.mem(g, d)
            if post: G.sc(g+1, Ins(post))
    kf = PLAN['kfirst']
    KG = OPT['kg']
    for f0 in range(0, 12, KG):
        fs = range(f0, f0+KG); g = min(kf[f] for f in fs) - 1
        if g < 0:
            if ex(i+2, 63): G.sc(n-1, Wait(lgkm=[('kf', (i+2)*12+f, stride*12) for f in fs]))
        elif qk: G.sc(g, Wait(lgkm=[('kf', (i+1)*12+f, stride*12) for f in fs]))
    if pv:
        VG = OPT['vg']
        for dl in range(0, 8 if par else 4, VG):
            g = 48 + 8*dl - 1
            if g < BARG-1: G.sc(g, Wait(lgkm=[('vf', i*16+2*(dl+VG)-1, stride*16)]))
    need = []
    if ex(i+2, 63): need.append(('K', i+2, stride))
    if ex(i+1, 64): need.append(('U', i+1, stride))
    if need: G.sc(BARG-1, Wait(vm=need, lgkm='all')); G.sc(BARG, Ins("s_barrier"))
    else: G.sc(BARG-1, Wait(lgkm='all'))
    if ex(i, 63):
        pn = slen(i-1)
        for (c, t, kt, qt), g in zip(softmax_items(i), PLAN['vpos'][1-par]):
            if g >= pn: G.valu(g-pn, Ins(t), c)
    if qk:
        for (c, t, kt, qt), g in zip(softmax_items(i+1), PLAN['vpos'][par]):
            if g < n: G.valu(g, Ins(t), c)
    return G

C_STAGE = 20480; C_NS = 8; C_LA = 6; C_D = 6
cS = 0; cF = 80; cRING = 160
CB = [('v', 224), ('v', 192), ('v', 208), ('v', 160), ('v', 176), ('v', 44), ('a', 224), ('a', 240)]
CA = [0, 1, 2, 3, 6, 7, 4, 5]
def cb(n, o):
    if 6 <= n < 9:
        ks, qs = divmod(o//4, 2); return vr(64 + 4*(4*(2*(n-6)+ks) + qs))
    c, b = CB[n % C_NS]
    return f"{c}[{b+o}:{b+o+3}]"
def c_wloads(n, stride=0):
    sl = n % C_NS; out = []
    for j in range(5):
        if j in (0, 4): w = Ins(f"s_add_u32 m0, s{cM}, {CA[sl]*C_STAGE + (1024 if j == 4 else 0)}")
        out.append(([w] if j in (0, 4) else [], Ins(f"buffer_load_dwordx4 v{vL16 if j < 4 else vL1K}, s[12:15], s{cWo} offen offset:{min(j,3)*1024}{SC1} lds",
                            tag=('cw', n, stride), slot=('C', sl), gen=(n, stride), m0reuse=True, m0w=w)))
    po = [Ins(f"s_add_u32 s{cWo}, s{cWo}, 10240")]
    if n >= 6 and n % 3 == 2: po = [Ins(f"s_mul_i32 s{cWo}, s{HS[(n-8)//3]}, {6*5120}"), Ins(f"s_add_u32 s{cWo}, s{cWo}, s{cW1}")]
    return out, po
def cb2(n, o):
    c, b = CB[n % C_NS]
    return f"{c}[{b+o}:{b+o+1}]"
def c_bloads(n, stride=0):
    out = []
    for ks in range(2):
        for qs in range(2):
            if True:
                out.append(([], Ins(f"buffer_load_dwordx4 {cb(n,(ks*2+qs)*4)}, v{cvB+2*ks+qs}, s[24:27], s{cBo} offen{SC1}", tag=('cb', n, stride))))
    po = [Ins(f"s_add_u32 s{cBo}, s{cBo}, 8192")]
    if n >= 6 and n % 3 == 2: po = [Ins(f"s_mul_i32 s{cBo}, s{HS[(n-8)//3]}, {6*4096}")]
    return out, po
def c_aread(n, f, stride=0):
    sl = n % C_NS; ks, t = ((f & 1, f >> 1) if OPT['pair'] else divmod(f, 10)); sh, tt = divmod(t, 5)
    return Ins(f"ds_read_b128 {ar(cRING+4*(f%10))}, v{cvA + CA[sl]//3} offset:{(CA[sl]%3)*C_STAGE + sh*10240 + ks*5120 + tt*1024}",
               tag=('caf', n*20+f, stride*20), slot=('C', sl), gen=(n, stride))
def c_stage(n, acc, L, VQ, czero=False, nxt=True, wtags=(), after=(), cap=50, red=False):
    M = []; first = {}
    for t in range(10):
        for qs in range(2):
            if red and t < 5 and qs == 0: continue
            for k, ks in enumerate((0, 1) if qs == 0 else (1, 0)):
                d = ar(acc + (t*2+qs)*4); first.setdefault(t, len(M))
                M.append(Ins(f"{MF} {d}, {ar(cRING+4*((2*t+ks)%10))}, {cb(n,(ks*2+qs)*4)}, {'0' if (czero and k==0) else d}"))
    G = Gaps(M); n_ = len(M)
    def rpos(f):
        t, e = divmod(f - C_LA, 2); w = (first[t+1] if t < 9 else n_) - first[t]
        return first[t] + e*(w//2)
    BG = rpos(20) - 1
    for f in range(C_LA, 20): G.mem(rpos(f), c_aread(n, f))
    if nxt:
        for f in range(C_LA): G.mem(rpos(20+f), c_aread(n+1, f))
        G.sc(BG-1, Wait(vm=[('cw', n+1)] + list(wtags), cap=cap)); G.sc(BG, Ins("s_barrier"))
        G.sc(n_-1, Wait(vm=[('cb', n+1)], cap=cap))
    for t in range(1, 10):
        g = first[t] - (2 if first[t] - first[t-1] > 2 else 1)
        if g == BG-1: g -= 1
        G.sc(g, Wait(lgkm=('caf', n*20+2*t+1)))
    if nxt: G.sc(n_-2, Wait(lgkm=('caf', (n+1)*20+1)))
    for m in after: G.mem(BG+2, m)
    nm = sum(1 for sc, m in L if m is not None)
    free = [g for g in range(1, n_-2) if not G.N[g] and g != BG]
    if nm > len(free): free = [g for g in range(1, n_-2) if G.cap[g] >= 1 and g != BG]
    assert nm <= len(free), (n, nm, len(free))
    slots = [free[min(len(free)-1, int((k+0.5)*len(free)/max(nm,1)))] for k in range(nm)] + [n_-1]
    k = 0; lo = 0
    for sc, m in L:
        g = max(slots[k] - 1, lo); pos = []
        for s_ in reversed(sc):
            while g > lo and not G.sc_free(g): g -= 1
            pos.append((g, s_))
            if g > lo: g -= 1
        for g_, s_ in reversed(pos): G.sc(g_, s_)
        if pos: lo = max(lo, max(x[0] for x in pos))
        if m is not None:
            G.N[slots[k]].append(m); G.cap[slots[k]] -= 1; lo = min(slots[k] + 1, n_-1); k += 1
    for g in range(n_):
        while VQ and G.cap[g] >= VQ[0][0]:
            c, t = VQ.pop(0); G.valu(g, Ins(t), c)
            if c == 2: break
    return G
def c_deferred(ns):
    seq = [(t, n, ks) for t in range(5) for n in ns for ks in range(2)]
    def rd(i):
        t, n, ks = seq[i]; x = c_aread(n, 2*t+ks); sl = n % C_NS
        return Ins(f"ds_read_b128 {ar(cRING+4*(i%10))}, " + x.text.split(", ", 1)[1], tag=('df', i), slot=x.meta['slot'], gen=x.meta['gen'])
    pre = [rd(i) for i in range(8)]
    G = Gaps([Ins(f"{MF} {ar(cS+t*8)}, {ar(cRING+4*(i%10))}, {cb(n, ks*8)}, {ar(cS+t*8)}") for i, (t, n, ks) in enumerate(seq)])
    for i in range(8, len(seq)): G.mem(i-8, rd(i))
    for i in range(2, len(seq), 2): G.sc(i-1, Wait(lgkm=('df', i+1)))
    k = min(OPT['dsp'], len(seq))
    return pre, [Wait(lgkm=('df', 1))] + G.items(0, k), G.items(k)
def o_store(j, qt, reg):
    return ([Ins(f"s_xor_b32 s{sT+3}, s{sOb}, {qt*1024}")] + ([Ins(f"s_add_u32 s{sT+3}, s{sT+3}, {j*4096}")] if j else []),
            Ins(f"buffer_store_dwordx4 {vr(reg)}, v{vL16}, s[24:27], s{sT+3} offen{SC1}", tag=('O', 0)))
EARLY = [(0, 2), (0, 3), (1, 2), (1, 3), (2, 2), (2, 3)]
def pmap(dst):
    if dst == 'sp': return lambda sg, k: ((112, 148)[sg] + k) if sg < 2 else (240 + k if k < 8 else 122 + k - 8)
    if dst == 'alt': return lambda sg, k: (72 + 16*sg + k) if k < 8 else (120 + 16*sg + k - 8)
    return lambda sg, k: dst + 12*sg + k
def c_cvt(p, acc, dst, tmp):
    rm = pmap(dst)
    for sg in range(1, 4):
        qs, sh = sg & 1, sg >> 1
        for tt in range(5):
            t = tmp + 4*(tt & 1)
            for r in range(4): p(f"v_accvgpr_read_b32 v{t+r}, a{acc+((sh*5+tt)*2+qs)*4+r}")
            d = rm(sg-1, 2*tt)
            p(f"v_cvt_pk_bf16_f32 v{d}, v{t}, v{t+1}"); p(f"v_cvt_pk_bf16_f32 v{d+1}, v{t+2}, v{t+3}")
def xb_ops(op, dst, sg, soff, tag):
    rm = pmap(dst)
    return [Ins(f"buffer_{op}_dwordx4 {vr(rm(sg,0))}, v{vL16}, s[20:23], s{soff} offen{SC1}", tag=tag),
            Ins(f"buffer_{op}_dwordx4 {vr(rm(sg,4))}, v{vL16}, s[20:23], s{soff} offen offset:1024{SC1}", tag=tag),
            Ins(f"buffer_{op}_dwordx2 {vr(rm(sg,8),2)}, v{vL8}, s[20:23], s{soff} offen offset:2048{SC1}", tag=tag)]
def c_pub(src, kind):
    out = []
    for sg in range(1, 4):
        sc = [f"s_xor_b32 s{sT}, s{cC}, {sg}", f"s_mul_i32 s{sT}, s{sT}, {3*2*4*XBW}", f"s_add_u32 s{sT}, s{sT}, s{cXB}", f"s_add_u32 s{sT}, s{sT}, {((sg-1)*2+kind)*4*XBW}"]
        for k, m in enumerate(xb_ops('store', src, sg-1, sT, ('pub', kind))):
            out.append(([Ins(x) for x in sc] if k == 0 else [], m))
    return out
def c_get(p, dst, kind, extra=None):
    p(f"s_mul_i32 s{sT}, s{cC}, {3*2*4*XBW}"); p(f"s_add_u32 s{sT}, s{sT}, s{cXB}")
    if kind: p(f"s_add_u32 s{sT}, s{sT}, {4*XBW}")
    if extra: p(f"s_add_u32 s{sT}, s{sT}, s{extra}")
    for sg in range(3):
        p.add(xb_ops('load', dst, sg, sT, ('get', kind)))
        if sg < 2: p(f"s_add_u32 s{sT}, s{sT}, {2*4*XBW}")
def c_sum(p, R, src, tmp):
    for sg in range(3):
        for i in range(10):
            t = tmp + 2*(i & 1); q = src + 12*sg + i
            p(f"v_lshlrev_b32 v{t}, 16, v{q}"); p(f"v_and_b32 v{t+1}, 0xffff0000, v{q}")
            p(f"v_pk_add_f32 {vr(R+2*i,2)}, {vr(R+2*i,2)}, {vr(t,2)}")
def c_setup(p):
    p(f"s_lshr_b32 s{cC}, s{sH}, 3")
    p(f"s_and_b32 s{sT}, s{sW}, 1"); p(f"s_mul_i32 s{cW1}, s{sT}, 5120")
    p(f"s_lshr_b32 s{sT+4}, s{sX10}, 10")
    p(f"s_lshr_b32 s{sT+1}, s{sW}, 1")
    p(f"s_lshl_b32 s{sT+2}, s{sI}, 2"); p(f"s_add_u32 s{sT+3}, s{sW}, s{sT+2}")
    p(f"s_mul_i32 s{sOb}, s{sH}, {6*4096}"); p(f"s_add_u32 s{sOb}, s{sOb}, s{sX10}")
    p(f"s_lshr_b32 s{sT}, s{cC}, 1"); p(f"s_xor_b32 s{sT}, s{sT}, s{sT+1}"); p(f"s_and_b32 s{sT+2}, s{sH}, 3"); p(f"s_lshl_b32 s{sT+5}, s{sT+2}, 1"); p(f"s_add_u32 s{sT}, s{sT}, s{sT+5}")
    p(f"s_mul_i32 s{sT}, s{sT}, {240*5120}"); p(f"s_add_u32 s{sWPo}, s{sT}, {WS_WP}")
    p(f"s_mul_i32 s{cM}, s{sW}, 5120")
    p(f"s_lshl_b32 s{sT+3}, s{sT+3}, 2"); p(f"s_add_u32 s{sT+3}, s{sT+3}, s{sT+4}"); p(f"s_mul_i32 s{cXO}, s{sT+3}, 20480")
    p(f"s_mul_i32 s{sT+2}, s{sT+2}, 320"); p(f"s_add_u32 s{cXO}, s{cXO}, s{sT+2}")
    p(f"s_lshr_b32 s{sT}, s{cC}, 1"); p(f"s_mul_i32 s{sT}, s{sT}, 160"); p(f"s_add_u32 s{cXO}, s{cXO}, s{sT}")
    p(f"s_lshl_b32 s{cTile}, s{sI}, 3"); p(f"s_and_b32 s{sT}, s{sH}, 7"); p(f"s_add_u32 s{cTile}, s{cTile}, s{sT}")
    p(f"s_mul_i32 s{cXB}, s{cTile}, {4*3*2*4*XBW}"); p(f"s_mul_i32 s{sT}, s{sW}, {XBW}"); p(f"s_add_u32 s{cXB}, s{cXB}, s{sT}")
    p(f"s_lshl_b32 s{sVOTE}, s{sW}, 2"); p(f"s_add_u32 s{sVOTE}, s{sVOTE}, {VOTE}")
    p(f"s_and_b32 s{sT}, s{sH}, 28"); p(f"s_xor_b32 s{sT+1}, s{sT}, 4")
    own = HS[4:7] if OPT['hord'] == 0 else HS[0:3]
    oth = HS[0:4] if OPT['hord'] == 0 else HS[3:7]
    for k in range(4): p(f"s_add_u32 s{oth[k]}, s{sT+1}, {k}")
    for k in range(3):
        p(f"s_add_u32 s{own[k]}, s{sT}, {k}"); p(f"s_cmp_ge_u32 s{own[k]}, s{sH}"); p(f"s_addc_u32 s{own[k]}, s{own[k]}, 0")
    p(f"s_mov_b32 s{HS[7]}, 0")
    p(f"s_lshl_b32 s{sFO}, s{sI}, 2"); p(f"s_add_u32 s{sFO}, s{sFO}, s{cC}"); p(f"s_lshl_b32 s{sFO}, s{sFO}, 7"); p(f"s_add_u32 s{sFO}, s{sFO}, {FL_O}")
    p(f"s_lshl_b32 s{sFH}, s{sI}, 5"); p(f"s_add_u32 s{sFH}, s{sFH}, s{sH}"); p(f"s_lshl_b32 s{sFH}, s{sFH}, 3"); p(f"s_add_u32 s{sFH}, s{sFH}, {FL_H}")
    p(f"s_lshl_b32 s{sFX}, s{cTile}, 7"); p(f"s_add_u32 s{sFX}, s{sFX}, {FL_X}")
def c_setup2(p):
    p(f"v_mov_b32 v{cvA}, v{vL16}"); p(f"v_add_u32 v{cvA+1}, {3*C_STAGE}, v{vL16}"); p(f"v_add_u32 v{cvA+2}, {6*C_STAGE}, v{vL16}")
    p(f"v_add_u32 v{cvB}, s{sX10}, v{vL16}"); p(f"v_xor_b32 v{cvB+1}, 1024, v{cvB}")
    p(f"v_add_u32 v{cvB+2}, 4096, v{cvB}"); p(f"v_add_u32 v{cvB+3}, 4096, v{cvB+1}")
    p(f"v_lshlrev_b32 v{vL8}, 3, v{vLANE}")
    srd(p, 12, kWS, 240*5120, f"s{sWPo}"); srd(p, 20, kWS, SZ_XB, WS_XB)
def c_fcursors():
    return [Ins(x) for x in (f"s_mul_i32 s{cWo}, s{cC}, 12", f"s_add_u32 s{cWo}, s{cWo}, 192", f"s_lshl_b32 s{cBo}, s{cWo}, 12",
                             f"s_mul_i32 s{cWo}, s{cWo}, 5120", f"s_add_u32 s{cWo}, s{cWo}, s{cW1}")]
def flat_loads(ns):
    pf = []
    for n in ns:
        for l, po in (c_wloads(n), c_bloads(n)):
            for sc, m in l: pf.append([list(sc), m, []])
            pf[-1][2].append(po)
    return pf

class Rec:
    def __init__(self): self.q = []
    def __call__(self, t): self.q.append((2 if t.startswith(TRANS) else 1, t))

def phase_c(p):
    p.wait(vm=('cw', 3))
    def unit(l, po): return [(list(sc), m) for sc, m in l] + [(list(po), None)]
    pf = []
    for n in range(OPT['nb'], 6): pf += unit(*c_bloads(n))
    for qt in range(4): p(f"v_mov_b32 v{4+2*qt}, v{LR+qt}"); p(f"v_mov_b32 v{4+2*qt+1}, v{LR+qt}")
    def emit(x):
        p.add(x[0])
        if x[1] is not None: p.add(x[1])
    order = [x for x in EARLY[OPT['ncv']:]] + [(j, qt) for j in range(6) for qt in range(4) if (j, qt) not in EARLY]
    stores = []
    for n, (j, qt) in enumerate(order):
        b = 28 + 8*(n % 2); d = 64 + 4*(4*j+qt)
        for _ in range(OPT['pfi']):
            if pf: emit(pf.pop(0))
            if pf and pf[0][1] is None: emit(pf.pop(0))
        for ee in range(2):
            for r in range(4): p(f"v_accvgpr_read_b32 v{b+4*ee+r}, a{((2*j+ee)*4+qt)*4+r}")
        for h in range(4): p(f"v_pk_mul_f32 {vr(b+2*h,2)}, {vr(b+2*h,2)}, {vr(4+2*qt,2)}")
        for h in range(4): p(f"v_cvt_pk_bf16_f32 v{d+h}, v{b+2*h}, v{b+2*h+1}")
        stores.append(o_store(j, qt, d))
        if n % OPT['cdiv'] == 0: emit(stores.pop(0))
    stamp(p, 8)
    if OPT.get('lst') == 3: stamp(p, 1, True)
    p.wait(vm=[('cw', 0), ('cb', 0)]); p("s_barrier")
    for f in range(C_LA): p.add(c_aread(0, f))
    srd(p, 4, kX, SZ_XN); srd(p, 8, kOUT, SZ_XN)
    sSO, sSX, sSF, sPF = 16, 17, 18, 19
    p(f"s_and_b32 s{sT}, s{sH}, 7"); p(f"s_lshl_b32 s{sSO}, s{sT}, 3"); p(f"s_add_u32 s{sSO}, s{sSO}, s{sFO}")
    p(f"s_lshl_b32 s{sSX}, s{cC}, 3"); p(f"s_add_u32 s{sSX}, s{sSX}, s{sFX}")
    p(f"s_add_u32 s{sSF}, s{sSX}, {FL_F-FL_X}"); p(f"s_add_u32 s{sPF}, s{sFX}, {FL_F-FL_X}")
    p(f"s_mul_i32 s{cWo}, s{sH}, {6*5120}"); p(f"s_add_u32 s{cWo}, s{cWo}, s{cW1}")
    p.wait(lgkm=('caf', 1))
    swB = [Ins(f"s_mul_i32 s{cBo}, s{HS[0]}, {6*4096}")]
    SG = OPT['sigst']; PC = OPT['pc']; FC = OPT['fc']
    R = 200; F = 128+0; T = 28; GF = 64
    Q0 = stores + pf
    wn = 6; bn = 9; pub = []; VQ = []
    for n in range(30):
        L = []; cnt = 0
        capn = OPT['fv'] if n <= SG else (OPT['cu'] if n <= PC + 6 else 11)
        while Q0 and (cnt < capn or Q0[0][1] is None):
            x = Q0.pop(0); L.append(x); cnt += x[1] is not None
        while True:
            wok = wn < 30 and wn <= n + 6; bok = bn < 30 and n > PC and bn <= n + 7
            must = wok and wn <= n + 2
            if bok and (bn <= wn or not wok) and cnt + 4 <= capn: L += unit(*c_bloads(bn)); bn += 1; cnt += 4
            elif wok and (must or (not Q0 and cnt + 5 <= capn)): L += unit(*c_wloads(wn)); wn += 1; cnt += 5
            else: break
        if n == PC: L.insert(0, ([], poll_load(vP8, sFO)))
        if n == 6:
            r = Rec(); r("v_nop"); r("v_nop"); r("v_nop"); r("v_nop"); c_cvt(r, cF, 'alt', 28); VQ = r.q; pub = c_pub('alt', 1); rest = True
        if n > 8 and rest and not pub:
            assert not VQ
            r = Rec(); rest = False
            for tt in range(5):
                for k in range(4): r(f"v_accvgpr_read_b32 v{F+tt*4+k}, a{cF+(tt*2)*4+k}")
            r(f"v_and_b32 v4, 15, v{vLANE}"); r(f"v_lshrrev_b32 v5, 4, v{vLANE}"); r("v_mul_u32_u24 v4, 1280, v4"); r("v_lshl_add_u32 v4, v5, 3, v4")
            VQ = r.q
        if pub and n >= OPT['pubst']:
            done = 3 - (-(-len(VQ)//30))
            k = min(OPT['pubn'], 3*done - (9 - len(pub)))
            L += pub[:k]; pub = pub[k:]
        if n == OPT['xst']:
            for t in range(5): L.append(([], Ins(f"buffer_load_dwordx2 {vr(100+2*t,2)}, v4, s[4:7], s{cXO} offen offset:{32*t}")))
        if n == FC: L.insert(0, ([], poll_load(vP4, sPF)))
        if n == FC + 1:
            q = Prog(); c_get(q, GF, 1, extra=sSF); sc = []
            for x in q.items:
                if x.kind == 'vm': L.append((sc, x)); sc = []
                else: sc.append(x)
        wt = []; af = []
        if n == SG: wt = [('O', 0)]; af = [signal(sSO)]; assert not any(x[1] is not None and x[1].meta.get('tag') == ('O', 0) for x in L)
        if n == OPT['fsig']: wt = [('pub', 1)]; af = [signal(sSF)]; assert not pub
        G = c_stage(n, cF if n < 6 else cS, L, VQ, czero=(n in (0, 6)), nxt=(n < 29), wtags=wt, after=af, cap=63-OPT['cu']-3, red=(n >= 30-OPT['ndef']))
        p.add(G.items())
        if n == SG: stamp(p, 9)
        if OPT.get('lst') == 3 and n % 2 == 1: stamp(p, 2 + n//2, True)
        if n == PC:
            stamp(p, 10); p.wait(vm=('pl', 0)); poll(p, "C_po", vP8, sFO, pre=True); p.add(swB); stamp(p, 11)
        if n == FC:
            p.wait(vm=('pl', 0)); p(f"v_cmp_ne_u64 vcc, {vr(vNON,2)}, {vr(vPOLL,2)}"); p("s_cmp_eq_u64 vcc, 0"); p(f"s_cselect_b32 s{sSF}, 0, 0x10000000")
    assert wn == 30 and bn == 30 and not Q0
    stamp(p, 12)
    ND = OPT['ndef']
    pre, dbody, dbody2 = c_deferred(range(30-ND, 30)) if ND else ([], [], [])
    p.add(pre)
    if not ND: p("s_nop 6")
    SP = 'sp'
    pb = c_pub(SP, 0)
    for sg in range(3):
        r = Prog(); c_cvt(r, cS, SP, 28); k = len(r.items)//3
        p.add(r.items[sg*k:(sg+1)*k])
        for sc, m in pb[3*sg:3*sg+3]: p.add(sc); p.add(m)
    p.add(dbody)
    p("s_waitcnt vmcnt(0)"); p("s_barrier")
    p.add(signal(sSX))
    stamp(p, 13)
    p.add(poll_load(vP4, sFX))
    p.add(dbody2)
    for tt in range(5):
        for k in range(4): p(f"v_accvgpr_read_b32 v{R+tt*4+k}, a{cS+(tt*2)*4+k}")
    SP = 160
    p(f"s_cmp_eq_u32 s2, 0"); p(f"s_cselect_b32 s{sT+1}, 0, 0x10000000")
    p.add(signal(sT+1))
    p("s_waitcnt vmcnt(0)")
    p(f"s_mov_b32 s{sT+2}, 0"); p(f"s_cmp_eq_u32 s{sSF}, 0"); p("s_cbranch_scc1 C_px_chk")
    poll(p, "C_pf", vP4, sPF, slp=6)
    c_get(p, GF, 1)
    poll(p, "C_px", vP4, sFX)
    stamp(p, 14)
    c_get(p, SP, 0)
    c_sum(p, F, GF, 28)
    p(f"s_mov_b32 s{sT}, {f32(-LOG2E)}")
    for i in range(20): p(f"v_mul_f32 v{T+i}, s{sT}, v{F+i}")
    for i in range(20): p(f"v_exp_f32 v{T+i}, v{T+i}")
    for i in range(20): p(f"v_add_f32 v{T+i}, 1.0, v{T+i}")
    for i in range(20): p(f"v_rcp_f32 v{T+i}, v{T+i}")
    for i in range(20): p(f"v_mul_f32 v{F+i}, v{F+i}, v{T+i}")
    for i in range(10):
        p(f"v_lshlrev_b32 v{T+2*i}, 16, v{100+i}"); p(f"v_and_b32 v{T+2*i+1}, 0xffff0000, v{100+i}")
    p("s_waitcnt vmcnt(0)")
    stamp(p, 15)
    c_sum(p, R, SP, 52)
    for i in range(0, 20, 2): p(f"v_pk_fma_f32 {vr(R+i,2)}, {vr(R+i,2)}, {vr(F+i,2)}, {vr(T+i,2)}")
    for i in range(10): p(f"v_cvt_pk_bf16_f32 v{F+i}, v{R+2*i}, v{R+2*i+1}")
    for t in range(5): p(f"buffer_store_dwordx2 {vr(F+2*t,2)}, v4, s[8:11], s{cXO} offen offset:{32*t}")

def a_wloads(it, part=3):
    st = it % 3; out = []
    for j in range(2 if part & 1 else 0):
        for blk in range(3):
            sc = [Ins(f"s_add_u32 m0, s{sWQm}, {st*A_STAGE + blk*8192 + j*1024 - blk*128}")]
            if blk == 0: sc.insert(0, Ins(f"s_mov_b32 s{sT}, {(it*64 + j*16)*12288}"))
            out.append((sc, Ins(f"buffer_load_dwordx4 v{vWQ}, s[12:15], s{sT} offen offset:{blk*128} lds", tag=('A', it), slot=[('A', st)], gen=(it, 0))))
    for j in range(4 if part & 2 else 0):
        sc = [Ins(f"s_mov_b32 s{sT}, {(it*64 + 16*(j&1) + 4*(j>>1))*3072}"), Ins(f"s_add_u32 m0, s{sGUm}, {st*A_STAGE + 24576 + j*1024}")]
        out.append((sc, Ins(f"buffer_load_dwordx4 v{vGU}, s[16:19], s{sT} offen lds", tag=('A', it), slot=[('G', st)], gen=(it, 0))))
    return out
vTA = 44; vTB = 45; vTD = 46
def touch_setup(p):
    t = vT
    p(f"s_lshl_b32 s{sT}, s{sI}, 3"); p(f"s_lshl_b32 s{sT+1}, s{sW}, 1"); p(f"s_add_u32 s{sT+1}, s{sT+1}, s{sT}")
    p(f"v_and_b32 v{t}, 1, v{vLANE}"); p(f"v_lshrrev_b32 v{t+1}, 1, v{vLANE}")
    p(f"v_add_u32 v{t+2}, s{sT+1}, v{t}"); p(f"v_mul_u32_u24 v{t+2}, 12288, v{t+2}"); p(f"v_lshl_add_u32 v{t+2}, v{t+1}, 7, v{t+2}")
    p(f"v_mov_b32 v{t+3}, 0x10000000"); p(f"v_cmp_gt_u32 vcc, 6, v{vLANE}"); p("s_nop 1"); p(f"v_cndmask_b32 v{vTA}, v{t+3}, v{t+2}, vcc")
    p(f"s_and_b32 s{sT+1}, s{sW}, 1"); p(f"s_lshl_b32 s{sT+1}, s{sT+1}, 2"); p(f"s_add_u32 s{sT+1}, s{sT+1}, s{sT}")
    p(f"v_add_u32 v{t+2}, s{sT+1}, v{t+1}"); p(f"v_mul_u32_u24 v{t+2}, 3072, v{t+2}"); p(f"v_mul_u32_u24 v{t}, 60, v{t}"); p(f"v_add_u32 v{t+2}, v{t+2}, v{t}")
    p(f"v_cmp_gt_u32 vcc, 8, v{vLANE}"); p("s_nop 1"); p(f"v_cndmask_b32 v{vTB}, v{t+3}, v{t+2}, vcc")
def touch(it):
    if not OPT['warm'] or it > 9: return []
    d = vTD + 2*(it % 2)
    return [([Ins(f"s_mov_b32 s{sT}, {it*64*12288}")], Ins(f"buffer_load_dword v{d}, v{vTA}, s[12:15], s{sT} offen", junk=True)),
            ([Ins(f"s_mov_b32 s{sT}, {it*64*3072}")], Ins(f"buffer_load_dword v{d+1}, v{vTB}, s[16:19], s{sT} offen", junk=True))]
def a_xloads(it):
    st = it % 3; out = []
    for ks in range(2):
        for qt in range(4):
            sc = [Ins(f"s_xor_b32 s{sT+1}, s{sX10}, {(it*2+ks)*4096 + qt*1024}")]
            out.append((sc, Ins(f"buffer_load_dwordx4 {ar(XB+32*st+(ks*4+qt)*4)}, v{vL16}, s[20:23], s{sT+1} offen{SC1}", tag=('A', it))))
    return out
def areg(rs): return ARING+4*rs if rs < 8 else 160+4*(rs-8)
def a_read(it, nt, ks, rs, tag, NG=4):
    st = it % 3; o = []; hi = 1 if st == 2 else 0; base = 0 if st == 2 else st*A_STAGE
    for rd in range(2):
        if nt < 12:
            j = nt >> 1; e = nt & 1
            a = vAQ + 2*hi + (j & 1); off = base + (j >> 1)*8192 + ks*4096 + rd*2048 + 8*e; sl = ('A', st)
        else:
            mtx, tt = divmod(nt-12, NG)
            a = vAG[hi] + tt; off = base + mtx*8192 + ks*4096 + rd*2048; sl = ('G', st)
        o.append(Ins(f"ds_read_b64_tr_b16 {ar(areg(rs)+2*rd,2)}, v{a} offset:{off}", tag=('af', tag), slot=sl, gen=(it, 0)))
    return o

def gu_group(r, NG, tt, qt, b, o, pk):
    for k in range(4): r(f"v_accvgpr_read_b32 v{b+k}, a{(tt*4+qt)*4+k}")
    for k in range(4): r(f"v_mul_f32 v{b+8+k}, s{sT+4}, v{b+k}")
    for k in range(4): r(f"v_exp_f32 v{b+8+k}, v{b+8+k}")
    for k in range(4): r(f"v_accvgpr_read_b32 v{b+4+k}, a{16*NG+(tt*4+qt)*4+k}")
    for k in range(4): r(f"v_add_f32 v{b+8+k}, 1.0, v{b+8+k}")
    for k in range(4): r(f"v_rcp_f32 v{b+8+k}, v{b+8+k}")
    if pk:
        for k in range(0, 4, 2): r(f"v_pk_mul_f32 {vr(b+k,2)}, {vr(b+k,2)}, {vr(b+4+k,2)}")
        for k in range(0, 4, 2): r(f"v_pk_mul_f32 {vr(b+k,2)}, {vr(b+k,2)}, {vr(b+8+k,2)}")
    else:
        for k in range(4): r(f"v_mul_f32 v{b+k}, v{b+k}, v{b+4+k}")
        for k in range(4): r(f"v_mul_f32 v{b+k}, v{b+k}, v{b+8+k}")
    r(f"v_cvt_pk_bf16_f32 v{o}, v{b}, v{b+1}"); r(f"v_cvt_pk_bf16_f32 v{o+1}, v{b+2}, v{b+3}")

def phase_a(NG):
    p = Prog(); NT = 12 + 2*NG; NF = 2*NT; LA = 4
    def acc(nt, qt): return vr(QACC + (nt*4+qt)*4) if nt < 12 else ar(((nt-12)*4+qt)*4)
    def xb(it, ks, qt): return ar(XB+32*(it % 3)+(ks*4+qt)*4)
    def place(G, L, g, step, hi):
        for sc, m in L:
            while G.N[g] or not all(G.sc_free(g-1-k) for k in range(len(sc))): g += 1
            for k, s_ in enumerate(reversed(sc)): G.sc(g-1-k, s_)
            G.mem(g, m); g += step
        assert g - step < hi, (g, hi)
    fin = [(8, nt, ks) for nt in range(12, NT) for ks in range(2)] + [(9, nt, ks) for nt in range(12, NT) for ks in range(2)] + \
          [(it, nt, ks) for nt in range(12) for it in (8, 9) for ks in range(2)]
    for it in range(8):
        M = []
        for nt in range(NT):
            for qt in range(4):
                for k, ks in enumerate((0, 1) if qt % 2 == 0 else (1, 0)):
                    M.append(Ins(f"{MF} {acc(nt,qt)}, {ar(ARING+4*((2*nt+ks)%8))}, {xb(it,ks,qt)}, {'0' if (it == 0 and k == 0) else acc(nt,qt)}"))
        G = Gaps(M); n = len(M); BG = 4*(NF-LA)
        for f in range(LA, NF):
            r = a_read(it, f >> 1, f & 1, f % 8, it*64+f, NG); g = 4*(f-LA) - (2 if f >= NF-6 else 0)
            g = G.mem_from(g, r[0]); G.mem_from(g+1, r[1])
        G.sc(BG-1, Wait(vm=[('A', it+1)] + ([('pk', 0)] if it == 4 else []), lgkm='all')); G.sc(BG, Ins("s_barrier"))
        g = BG+1
        for f in range(LA):
            r = a_read(it+1, f >> 1, f & 1, f % 8, (it+1)*64+f, NG) if it < 7 else a_read(*fin[f], f % 8, 512+f, NG)
            g = max(g, 4*((NF+f-8)|1)+4)
            g = G.mem_from(g, r[0]); g = G.mem_from(g+1, r[1]) + 1
        G.sc(n-1, Wait(lgkm=('af', (it+1)*64+1)))
        for f in range(2, NF, 2):
            if 4*f-1 < BG-1: G.sc(4*f-1, Wait(lgkm=('af', it*64+f+1)))
        L = touch(it+OPT['td']) + a_wloads(it+2) + a_xloads(it+2)
        P0 = OPT['pk0']
        if it in (P0, P0+1): L = L + pack_dmas()[5*(it-P0):5*(it-P0)+5]
        place(G, L, 3, 4, BG-2)
        if it == 4:
            q = Prog(); srd(q, 60, kWS, SZ_WP, WS_WP); g = free_sc(G, BG+1, 4)
            for k, x in enumerate(q.items): G.sc(g+k, x)
        if it in (5, 6, 7):
            ts = [(0, 1, 2, 3), (4, 5, 6), (7, 8, 9)][it-5]
            g = 2
            for t in ts:
                for sc, m in pack_reads(t): g = G.mem_from(g, m) + 4
            place(G, [pack_store(t) for t in ts], BG-34, 7, BG-2)
        p.add(G.items())
    M = []; first = []; last = []
    nG = 4*NG
    for blk, it in enumerate((8, 9)):
        for t in range(2*NG):
            d0 = len(M)
            for qt in range(4):
                for ks in ((0, 1) if qt % 2 == 0 else (1, 0)):
                    M.append(Ins(f"{MF} {acc(12+t,qt)}, {ar(areg((blk*nG+2*t+ks)%16))}, {xb(it,ks,qt)}, {acc(12+t,qt)}"))
            first += [d0, d0]; last += [len(M)-1]*2
    q0 = len(M)
    for nt in range(12):
        d0 = len(M)
        for qt in range(4):
            ch = [(8, 0), (8, 1), (9, 0), (9, 1)]
            idx = list(range(4)) if qt % 2 == 0 else [3, 2, 1, 0]
            for k in idx:
                M.append(Ins(f"{MF} {acc(nt,qt)}, {ar(areg((2*nG+4*nt+k)%16))}, {xb(ch[k][0],ch[k][1],qt)}, {acc(nt,qt)}"))
        first += [d0]*4; last += [len(M)-1]*4
    G = Gaps(M); n = len(M)
    MB = 4*(nG-LA)
    G.sc(MB-1, Wait(vm=[('A', 9)], lgkm='all')); G.sc(MB, Ins("s_barrier"))
    g = -2
    for f in range(LA, len(fin)):
        lo = last[f-16]+1 if f >= 16 else 0
        if f >= nG: lo = max(lo, MB+1)
        tgt = 4*f - 28 if f >= nG else 4*f - 24
        r = a_read(*fin[f], f % 16, 512+f, NG)
        d = 2 if (g + 2 <= tgt and f >= 2*nG) else 1
        g = G.mem_from(max(g+d, lo, tgt), r[0]); g = G.mem_from(g+d, r[1])
        assert g < first[f] - 4, (f, g, first[f])
        if f < nG: assert g < MB - 3
    prev = None
    for f in range(2, len(fin)):
        if first[f] != prev and first[f]-1 != MB-1 and not (f < nG and first[f] > MB):
            fl = max(k for k in range(len(fin)) if first[k] == first[f]); G.sc(first[f]-1, Wait(lgkm=('af', 512+fl)))
        prev = first[f]
    L = []
    for tl in range(4):
        for b, (mi, d) in enumerate(k_dma(tl, sKo)):
            d.meta['slot'] = [d.meta['slot'], ('G', 2)]
            L.append((([Ins(f"s_mov_b32 s{sKo}, {tl*SLOT}")] if b == 0 else []) + [mi], d))
    for b, (mi, d) in enumerate(u_dma(1, sVo)):
        d.meta['slot'] = [d.meta['slot'], ('A', 1), ('G', 1)]
        L.append((([Ins(f"s_mov_b32 s{sVo}, 0")] if b == 0 else []) + [mi], d))
    place(G, L, MB+4, 7, n-2)
    G.sc(free_sc(G, 1), Ins(f"s_mov_b32 s{sT+4}, {f32(-LOG2E)}"))
    frags = [(pp, qt) for pp in range(NG//2) for qt in range(4)]
    def hstore(pp, qt, o):
        return [Ins(f"s_xor_b32 s{sT+2}, s{sHo}, {pp*4096 + qt*1024}")], Ins(f"buffer_store_dwordx4 {vr(o)}, v{vL16}, s[24:27], s{sT+2} offen{SC1}", tag=('H', 0))
    g = q0 + 6; k = 0
    while frags:
        pp, qt = frags[0]; o = 40 if k & 1 else 56
        st = []
        for e in range(2):
            r = Rec(); gu_group(r, NG, 2*pp+e, qt, (vT, 44)[e], o+2*e, False); st.append(list(r.q))
        cap = list(G.cap); gg = g; pos = []; nplaced = [0, 0]
        while (st[0] or st[1]) and gg < n:
            cand = [e for e in range(2) if st[e] and st[e][0][0] <= cap[gg]]
            if not cand: gg += 1; continue
            cand.sort(key=lambda e: (-st[e][0][0], (nplaced[e] - (8 if e == 0 else 0))))
            e = cand[0]; c, t = st[e].pop(0); cap[gg] -= c; pos.append((gg, c, t)); nplaced[e] += 1
        gs = gg + 1
        while gs < n and (G.N[gs] or cap[gs] < 1): gs += 1
        if gs >= n: break
        for g_, c, t in pos: G.valu(g_, Ins(t), c)
        sc, m = hstore(pp, qt, o); G.sc(gs, sc[0]); G.mem(gs, m)
        g = gg; frags.pop(0); k += 1
    sys.stderr.write(f"NG={NG}: {k} H frags hidden\n")
    p.add(G.items())
    stamp(p, 5)
    for pp, qt in frags:
        o = 40 if k & 1 else 56; k += 1
        for e in range(2): gu_group(p, NG, 2*pp+e, qt, vT, o+2*e, True)
        sc, m = hstore(pp, qt, o); p.add(sc); p.add(m)
    return p.items

SCR = 81920
def side_issue(p):
    p(f"s_and_b32 s{sT}, s{sH}, 1"); p(f"s_cmp_eq_u32 s{sT}, 1"); p("s_cbranch_scc1 S_o0")
    srd(p, 4, kX, SZ_XN)
    p(f"v_and_b32 v64, 15, v{vLANE}"); p(f"v_lshrrev_b32 v65, 4, v{vLANE}")
    p("v_mul_u32_u24 v66, 1280, v64"); p("v_lshl_add_u32 v66, v65, 4, v66")
    p(f"s_lshl_b32 s{sT+5}, s{sI}, 4"); p(f"s_lshr_b32 s{sT}, s{sH}, 1"); p(f"s_add_u32 s{sT+5}, s{sT+5}, s{sT}")
    p(f"s_mul_i32 s{sT}, s{sT+5}, 20480"); p(f"s_mul_i32 s{sT+1}, s{sW}, 320"); p(f"s_add_u32 s{sT}, s{sT}, s{sT+1}")
    for j in range(5): p(f"buffer_load_dwordx4 {vr(80+4*j)}, v66, s[4:7], s{sT} offen offset:{64*j}")
    wsrds(p)
    p("s_branch S_c0")
    p("S_o0:")
    wsrds(p)
    if OPT['ctouch']: p(f"buffer_load_dword v200, v{vCT}, s[96:99], 0 offen")
    p("S_c0:")

def wsrds(p):
    p(f"s_mul_i32 s{sT+2}, s{sH}, 384")
    srd(p, 12, kWQ, None, f"s{sT+2}"); p(f"s_sub_u32 s14, {640*12288}, s{sT+2}")
    p(f"s_cmp_lt_u32 s{sW}, 2"); p(f"s_cselect_b32 s82, s{kWG}, s{kWU}"); p(f"s_cselect_b32 s83, s{kWG+1}, s{kWU+1}")
def role_setup(p):
    p(f"s_and_b32 s{sT+2}, s{sH}, 3"); p(f"s_lshl_b32 s{sT+3}, s{sT+2}, 7"); p(f"s_lshl_b32 s{sT+2}, s{sT+2}, 6"); p(f"s_add_u32 s{sT+2}, s{sT+2}, 512")
    p(f"s_bitcmp0_b32 s{sROLE}, 0"); p(f"s_cselect_b32 s{sT+2}, s{sT+3}, s{sT+2}"); p(f"s_cselect_b32 s{sT+1}, 128, 64")
    p(f"s_lshr_b32 s{sT+3}, s{sH}, 3"); p(f"s_mul_i32 s{sT+3}, s{sT+3}, 768"); p(f"s_add_u32 s{sT+2}, s{sT+2}, s{sT+3}")
    p(f"s_lshl_b32 s{sHo}, s{sT+2}, 6"); p(f"s_add_u32 s{sHo}, s{sHo}, {192*4096}"); p(f"s_add_u32 s{sHo}, s{sHo}, s{sX10}")
    srd(p, 16, 82, None, f"s{sT+2}"); p(f"s_sub_u32 s18, {640*3072}, s{sT+2}")
    p(f"v_and_b32 v{vT}, 127, v{vGU0}"); p(f"v_mov_b32 v{vT+1}, 0x10000000"); p(f"v_cmp_gt_u32 vcc, s{sT+1}, v{vT}"); p("s_nop 1"); p(f"v_cndmask_b32 v{vGU}, v{vT+1}, v{vGU0}, vcc")

sPKs = 70; sPKm = 71; sPKd = 69
vPKs = 54; vPK = 55; vPK2 = 59
PKL = 122880
def pack_setup(p):
    t = vT
    p(f"s_lshl_b32 s{sT+3}, s{sI}, 5"); p(f"s_add_u32 s{sT+3}, s{sT+3}, s{sH}")
    p(f"s_cmp_lt_u32 s{sT+3}, 192")
    p(f"s_cselect_b32 s60, s{kWO}, s{kWD}"); p(f"s_cselect_b32 s61, s{kWO+1}, s{kWD+1}")
    p(f"s_mov_b32 s{sT}, {6144*1280}"); p(f"s_cselect_b32 s62, s{sT}, {1536*1280}"); p("s_mov_b32 s63, 0x20000")
    p(f"s_cselect_b32 s{sT}, 0, 192"); p(f"s_sub_u32 s{sT}, s{sT+3}, s{sT}"); p(f"s_mul_i32 s{sT}, s{sT}, 40960")
    p(f"s_mul_i32 s{sPKm}, s{sW}, 10240"); p(f"s_add_u32 s{sPKs}, s{sT}, s{sPKm}"); p(f"s_add_u32 s{sPKm}, s{sPKm}, {PKL}")
    p(f"s_mul_i32 s{sPKd}, s{sW}, 480"); p(f"s_add_u32 s{sPKd}, s{sPKd}, s{sT+3}"); p(f"s_mul_i32 s{sPKd}, s{sPKd}, 5120")
    p(f"s_cmp_lt_u32 s{sT+3}, 240"); p(f"s_cselect_b32 s{sPKd}, s{sPKd}, 0x10000000")
    p(f"v_lshrrev_b32 v{t}, 3, v{vLANE}"); p(f"v_mul_u32_u24 v{t}, 1280, v{t}")
    p(f"v_bfe_u32 v{t+1}, v{vLANE}, 4, 2"); p(f"v_lshlrev_b32 v{t+1}, 1, v{t+1}"); p(f"v_and_b32 v{t+2}, 7, v{vLANE}"); p(f"v_xor_b32 v{t+1}, v{t+1}, v{t+2}")
    p(f"v_lshl_add_u32 v{vPKs}, v{t+1}, 4, v{t}")
    p(f"v_lshrrev_b32 v{t}, 5, v{vLANE}"); p(f"v_mul_u32_u24 v{t}, 10240, v{t}")
    p(f"v_bfe_u32 v{t+1}, v{vLANE}, 2, 3"); p(f"v_lshl_add_u32 v{t}, v{t+1}, 7, v{t}")
    p(f"v_and_b32 v{t+1}, 3, v{vLANE}"); p(f"v_lshl_add_u32 v{t}, v{t+1}, 3, v{t}")
    p(f"v_bfe_u32 v{t+1}, v{vLANE}, 3, 2")
    p(f"s_mul_i32 s{sT}, s{sW}, 10")
    for k in range(4):
        p(f"s_add_u32 s{sT+1}, s{sT}, {k}"); p(f"s_and_b32 s{sT+2}, s{sT+1}, 3"); p(f"s_lshr_b32 s{sT+1}, s{sT+1}, 2"); p(f"s_lshl_b32 s{sT+1}, s{sT+1}, 10"); p(f"s_add_u32 s{sT+1}, s{sT+1}, {PKL}")
        p(f"v_xor_b32 v{t+2}, s{sT+2}, v{t+1}"); p(f"v_lshl_add_u32 v{t+2}, v{t+2}, 5, v{t}"); p(f"v_add_u32 v{vPK+k}, s{sT+1}, v{t+2}")
    p(f"v_add_u32 v{vPK2}, {240*5120-1024}, v{vL16}")
def pack_dmas():
    return [([Ins(f"s_add_u32 m0, s{sPKm}, {1024*j - 128*j}")],
             Ins(f"buffer_load_dwordx4 v{vPKs}, s[60:63], s{sPKs} offen offset:{128*j} lds", tag=('pk', 0), slot=[('K', k) for k in range(4)], gen=(99, 0))) for j in range(10)]
def pack_reads(t):
    return [([], Ins(f"ds_read_b64_tr_b16 {vr(28+4*(t%4)+2*rd,2)}, v{vPK+(t&3)} offset:{(t>>2)*1024 + rd*20480}", slot=[('K', k) for k in range(4)], tag=('pr', t))) for rd in range(2)]
def pack_store(t):
    sc = [Ins(f"s_add_u32 s{sPKd}, s{sPKd}, 1024")] if t in (5, 9) else []
    v, o = (vL16, t*1024) if t < 4 else ((vL1K, 3072) if t == 4 else (vPK2, min(t-5, 3)*1024))
    return (sc, Ins(f"buffer_store_dwordx4 {vr(28+4*(t%4))}, v{v}, s[60:63], s{sPKd} offen offset:{o}{SC1}", tag=('H', 0)))
def has_m0(G, g): return any(isinstance(x, Ins) and ('s', 'm0') in x.wr for x in G.S[g % G.n])
def has_dma(G, g): return any(x.meta.get('dma') for x in G.N[g % G.n])
def fill(G, lst, g0, g1, step, cnt=999, strict=False):
    BARG = G.barg; g = g0
    while lst and g < g1 and cnt > 0:
        sc, m, po = lst[0]
        ok = G.cap[g] >= 1 and not (BARG-2 <= g <= BARG+1)
        if strict: ok = ok and not G.N[g] and (m.kind == 'ds' or G.cap[g] == 2)
        if m.meta.get('dma') and sc: ok = ok and not (has_m0(G, g-2) or has_m0(G, g-1) or has_m0(G, g) or has_dma(G, g-1) or has_dma(G, g))
        if ok:
            lst.pop(0); cnt -= 1
            for s_ in sc: G.sc(g-1, s_)
            G.N[g].append(m); G.cap[g] -= 1
            for s_ in po: G.sc(g+1, s_)
            g += step
        else: g += 1
def free_valu(G, g):
    while G.cap[g] < 1: g += 1
    return g
def free_sc(G, g, n=1):
    while not all(G.sc_free(g+k) for k in range(n)): g += 1
    return g

def side_work(p, nyoung):
    p(f"s_and_b32 s{sT}, s{sH}, 1"); p(f"s_cmp_eq_u32 s{sT}, 1"); p("s_cbranch_scc1 S_pk1")
    ln = Prog(); q = ln
    srd(q, 4, kWS, SZ_XN)
    q(f"v_lshlrev_b32 v67, 4, v64"); q(f"v_add_u32 v67, {SCR}, v67")
    q(f"s_lshl_b32 s{sT}, s{sW}, 2"); q(f"v_add_u32 v68, s{sT}, v67")
    q(f"s_waitcnt vmcnt({nyoung})")
    X = 80; U = 104
    for i in range(20):
        q(f"v_lshlrev_b32 v{U+2*i}, 16, v{X+i}"); q(f"v_and_b32 v{U+2*i+1}, 0xffff0000, v{X+i}")
    q(f"v_pk_add_f32 v[70:71], {vr(U,2)}, {vr(U+2,2)}"); q(f"v_pk_add_f32 v[72:73], {vr(U+4,2)}, {vr(U+6,2)}")
    for i in range(8, 40, 4):
        q(f"v_pk_add_f32 v[70:71], v[70:71], {vr(U+i,2)}"); q(f"v_pk_add_f32 v[72:73], v[72:73], {vr(U+i+2,2)}")
    q("v_pk_add_f32 v[70:71], v[70:71], v[72:73]"); q("v_add_f32 v70, v70, v71")
    xlane(q, "v_add_f32", 70, 71)
    q(f"v_mul_f32 v70, {f32(-1/160)}, v70"); q("v_mov_b32 v71, v70")
    q(f"v_pk_add_f32 v[74:75], {vr(U,2)}, v[70:71]"); q(f"v_pk_add_f32 v[76:77], {vr(U+2,2)}, v[70:71]")
    q("v_pk_mul_f32 v[72:73], v[74:75], v[74:75]"); q("v_pk_mul_f32 v[78:79], v[76:77], v[76:77]")
    for i in range(4, 40, 4):
        q(f"v_pk_add_f32 v[74:75], {vr(U+i,2)}, v[70:71]"); q(f"v_pk_add_f32 v[76:77], {vr(U+i+2,2)}, v[70:71]")
        q("v_pk_fma_f32 v[72:73], v[74:75], v[74:75], v[72:73]"); q("v_pk_fma_f32 v[78:79], v[76:77], v[76:77], v[78:79]")
    q("v_pk_add_f32 v[72:73], v[72:73], v[78:79]"); q("v_add_f32 v71, v72, v73")
    xlane(q, "v_add_f32", 71, 72)
    q("ds_write_b32 v68, v70"); q("ds_write_b32 v68, v71 offset:256"); q("s_waitcnt lgkmcnt(0)"); q("s_barrier")
    q("ds_read_b128 v[72:75], v67"); q("ds_read_b128 v[76:79], v67 offset:256"); q("s_waitcnt lgkmcnt(0)")
    q("v_add_f32 v70, v72, v73"); q("v_add_f32 v71, v74, v75"); q("v_add_f32 v70, v70, v71"); q("v_mul_f32 v71, -0.25, v70".replace("-0.25", f32(-0.25)))
    q("v_add_f32 v76, v76, v77"); q("v_add_f32 v78, v78, v79"); q("v_add_f32 v76, v76, v78")
    for k in range(4): q(f"v_add_f32 v{72+k}, v{72+k}, v71")
    q("v_mul_f32 v72, v72, v72"); q("v_fmac_f32 v72, v73, v73"); q("v_fmac_f32 v72, v74, v74"); q("v_fmac_f32 v72, v75, v75")
    q(f"v_mul_f32 v76, {f32(1/640)}, v76"); q(f"v_fmac_f32 v76, {f32(0.25)}, v72"); q("v_mov_b32 v72, v76")
    q("v_cvt_pk_bf16_f32 v73, v71, v72")
    q("v_lshlrev_b32 v71, 16, v73"); q("v_and_b32 v72, 0xffff0000, v73")
    q(f"v_add_f32 v72, {f32(1e-5)}, v72")
    q("v_cvt_pk_bf16_f32 v72, v72, v72"); q("v_lshlrev_b32 v72, 16, v72")
    q("v_sqrt_f32 v72, v72"); q("s_nop 0")
    q("v_cvt_pk_bf16_f32 v72, v72, v72"); q("v_lshlrev_b32 v72, 16, v72")
    q("v_rcp_f32 v72, v72")
    q(f"s_lshr_b32 s{sT}, s{sT+5}, 2"); q(f"s_mul_i32 s{sT}, s{sT}, 81920")
    q(f"s_and_b32 s{sT+1}, s{sT+5}, 3"); q(f"s_lshl_b32 s{sT+1}, s{sT+1}, 10"); q(f"s_add_u32 s{sT}, s{sT}, s{sT+1}")
    q(f"s_mul_i32 s{sT+1}, s{sW}, 20480"); q(f"s_add_u32 s{sT}, s{sT}, s{sT+1}")
    q("v_sub_f32 v70, 0, v71"); q("v_mov_b32 v71, v70"); q("v_mov_b32 v73, v72")
    for i in range(20):
        t = 74 + 2*(i & 1)
        q(f"v_pk_add_f32 {vr(t,2)}, {vr(U+2*i,2)}, v[70:71]")
        q(f"v_cvt_pk_bf16_f32 v{t}, v{t}, v{t+1}")
        q(f"v_and_b32 v{t+1}, 0xffff0000, v{t}"); q(f"v_lshlrev_b32 v{t}, 16, v{t}")
        q(f"v_pk_mul_f32 {vr(t,2)}, {vr(t,2)}, v[72:73]")
        q(f"v_cvt_pk_bf16_f32 v{X+i}, v{t}, v{t+1}")
        if i % 4 == 3:
            q(f"buffer_store_dwordx4 {vr(X+i-3)}, v{vL16}, s[4:7], s{sT} offen{SC1}"); q(f"s_add_u32 s{sT}, s{sT}, 4096")
    q(f"s_lshr_b32 s{sT+1}, s{sT+5}, 2"); q(f"s_lshl_b32 s{sT+1}, s{sT+1}, {OPT['lnsh']}"); q(f"s_and_b32 s{sT}, s{sT+5}, 3"); q(f"s_lshl_b32 s{sT}, s{sT}, 3"); q(f"s_add_u32 s{sT+1}, s{sT+1}, s{sT}"); q(f"s_add_u32 s{sT+1}, s{sT+1}, {FL_LN}")
    q(f"s_xor_b32 s{sT}, s{sPRED}, s2"); q(f"s_or_b32 s{sT}, s{sT}, 0xfffffffe"); q(f"s_and_b32 s{sT}, s{sT}, s{sNON}")
    q(f"v_mov_b32 v70, s{sT}"); q(f"v_mov_b32 v71, s{sNON+1}")
    q("s_waitcnt vmcnt(0)"); q("s_barrier")
    q(f"buffer_store_dwordx2 v[70:71], v{vSIG}, s[{sFL}:{sFL+3}], s{sT+1} offen{SC1}")
    stamp(q, 17)
    q("S_pk1:")
    return ln.items

def kernel():
    p = Prog()
    p("s_cmp_ge_u32 s2, 256"); p("s_cbranch_scc1 K_end")
    p(f"s_load_dwordx16 s[72:87], s[0:1], 0"); p(f"s_load_dwordx8 s[88:95], s[0:1], 64")
    p("s_getpc_b64 s[96:97]"); p("K_pc:"); p("s_mov_b32 s98, K_codeend-K_pc"); p("s_mov_b32 s99, 0x20000")
    if OPT['ct0']:
        p(f"v_lshlrev_b32 v{vCT}, {OPT['ct0']+4}, v0"); p(f"buffer_load_dword v201, v{vCT}, s[96:99], 0 offen")
    p(f"v_lshrrev_b32 v1, 6, v0"); p(f"v_and_b32 v{vLANE}, 63, v0")
    p(f"v_readfirstlane_b32 s{sW}, v1")
    p(f"s_and_b32 s{sH}, s2, 7"); p(f"s_lshl_b32 s{sH}, s{sH}, 2"); p(f"s_bfe_u32 s{sT}, s2, 0x20003"); p(f"s_add_u32 s{sH}, s{sH}, s{sT}")
    p(f"s_lshr_b32 s{sI}, s2, 5")
    p(f"s_bfe_u32 s{sX10}, s{sH}, 0x10002"); p(f"s_lshl_b32 s{sX10}, s{sX10}, 1"); p(f"s_bfe_u32 s{sT}, s{sH}, 0x10003"); p(f"s_add_u32 s{sX10}, s{sX10}, s{sT}"); p(f"s_lshl_b32 s{sX10}, s{sX10}, 10")
    p(f"v_lshlrev_b32 v{vL16}, 4, v{vLANE}"); p(f"v_add_u32 v{vL1K}, 1024, v{vL16}")
    if OPT['stamp']: p(f"v_mov_b32 v{vSTAMP}, 0")
    p(f"s_lshr_b32 s{sT}, s2, 4"); p(f"s_lshl_b32 s{sT}, s{sT}, 2"); p(f"s_add_u32 s{sT}, s{sT}, s{sW}"); p(f"s_and_b32 s{sT}, s{sT}, 15"); p(f"s_lshl_b32 s{sT}, s{sT}, 13")
    p(f"v_lshlrev_b32 v{vCT}, 7, v{vLANE}"); p(f"v_add_u32 v{vCT}, s{sT}, v{vCT}")
    stamp(p, 0)
    p("s_waitcnt lgkmcnt(0)")
    side_issue(p)
    srd(p, sFL, kWS, SZ_FL, WS_FL)
    p(f"s_load_dwordx2 s[{sNON}:{sNON+1}], s[{sFL}:{sFL+1}], 0")
    t = vT
    p(f"v_lshrrev_b32 v{t}, 3, v2"); p(f"v_and_b32 v{t+1}, 7, v2"); p(f"v_bfe_u32 v{t+2}, v2, 4, 2")
    p(f"v_lshlrev_b32 v{t+3}, 1, v{t+2}"); p(f"v_xor_b32 v{t+3}, v{t+3}, v{t+1}"); p(f"v_lshlrev_b32 v{t+3}, 4, v{t+3}")
    p(f"v_lshrrev_b32 v{t+4}, 2, v{t}"); p(f"v_lshlrev_b32 v{t+4}, 3, v{t+4}")
    p(f"v_and_b32 v{t+5}, 3, v{t}"); p(f"v_add_u32 v{t+4}, v{t+4}, v{t+5}")
    p(f"s_lshr_b32 s{sT+2}, s{sW}, 1"); p(f"s_lshl_b32 s{sT+2}, s{sT+2}, 5")
    p(f"s_and_b32 s{sT+3}, s{sW}, 1"); p(f"s_lshl_b32 s{sT+3}, s{sT+3}, 2"); p(f"s_add_u32 s{sT+2}, s{sT+2}, s{sT+3}")
    p(f"v_add_u32 v{t+4}, s{sT+2}, v{t+4}")
    p(f"v_mul_u32_u24 v{t+4}, 12288, v{t+4}"); p(f"v_add_u32 v{vWQ}, v{t+4}, v{t+3}")
    p(f"s_lshl_b32 s{sT+2}, s{sW}, 3"); p(f"v_add_u32 v{t+4}, s{sT+2}, v{t}")
    p(f"v_mul_u32_u24 v{t+5}, 384, v{t+4}"); p(f"v_add_u32 v{vDV}, v{t+5}, v{t+3}")
    p(f"v_bfe_u32 v{t+6}, v{t+4}, 1, 3"); p(f"v_xor_b32 v{t+6}, v{t+6}, v{t+1}")
    p(f"v_lshl_add_u32 v{vDK}, v{t+6}, 4, v{t+5}")
    p(f"s_and_b32 s{sT+3}, s{sW}, 1"); p(f"s_lshl_b32 s{sT+3}, s{sT+3}, 5")
    p(f"v_lshrrev_b32 v{t+4}, 2, v{t}"); p(f"v_lshlrev_b32 v{t+4}, 3, v{t+4}"); p(f"v_and_b32 v{t+5}, 3, v{t}"); p(f"v_add3_u32 v{t+4}, v{t+4}, v{t+5}, s{sT+3}")
    p(f"v_mul_u32_u24 v{t+4}, 3072, v{t+4}"); p(f"v_add_u32 v{vGU0}, v{t+4}, v{t+3}")
    p(f"s_getreg_b32 s{sROLE}, hwreg(HW_REG_XCC_ID)"); p(f"s_xor_b32 s{sROLE}, s{sROLE}, {OPT['hv']}"); p(f"s_mov_b32 s{sPRED}, s{sROLE}")
    role_setup(p)
    p(f"s_lshl_b32 s{sWQm}, s{sW}, 11"); p(f"s_lshl_b32 s{sGUm}, s{sW}, 12")
    ny = 0
    if not OPT['lnfirst']:
        for sc, m in a_wloads(0):
            p.add(sc); p("s_nop 0"); p.add(m); ny += 1
    p(f"v_mov_b32 v{t}, 0x10000000"); p("v_cmp_eq_u32 vcc, 0, v0"); p("s_nop 1"); p(f"v_cndmask_b32 v{vSIG}, v{t}, v0, vcc")
    p("s_waitcnt lgkmcnt(0)")
    p(f"s_add_u32 s{sNON}, s{sNON}, 0x7f4a7c15"); p(f"s_addc_u32 s{sNON+1}, s{sNON+1}, 0x9e3779b9"); p(f"s_or_b32 s{sNON}, s{sNON}, 1")
    p(f"v_mov_b32 v{vNON}, s{sNON}"); p(f"v_mov_b32 v{vNON+1}, s{sNON+1}")
    stamp(p, 1)
    head = p.items
    ln = side_work(p, ny)
    p = Prog()
    touch_setup(p)
    pack_setup(p)
    c_setup(p)
    p(f"v_lshrrev_b32 v{t}, 2, v2"); p(f"v_and_b32 v{t+1}, 3, v2"); p(f"v_bfe_u32 v{t+2}, v2, 3, 2")
    p(f"v_lshlrev_b32 v{t+3}, 7, v{t}")
    p(f"v_lshlrev_b32 v{t+4}, 1, v{t+2}"); p(f"v_xor_b32 v{t+4}, v{t+4}, v{t+1}")
    p(f"v_lshl_add_u32 v{vAQ}, v{t+4}, 4, v{t+3}"); p(f"v_xor_b32 v{vAQ+1}, 64, v{vAQ}")
    for j in range(2): p(f"v_add_u32 v{vAQ+2+j}, {2*A_STAGE}, v{vAQ+j}")
    p(f"v_lshl_add_u32 v{t+4}, v{t+2}, 5, v{t+3}"); p(f"v_lshl_add_u32 v{t+4}, v{t+1}, 3, v{t+4}")
    p(f"v_add_u32 v{vV}, {V_RING}, v{t+4}")
    for u in range(1, 4): p(f"v_xor_b32 v{vV+u}, {32*u}, v{vV}")
    for u in range(4):
        p(f"v_subrev_u32 v{vAG[0]+u}, {V_RING-24576}, v{vV+u}"); p(f"v_add_u32 v{vAG[1]+u}, {2*A_STAGE+24576-V_RING}, v{vV+u}")
    p(f"v_add_u32 v{vDV2}, {SLOT}, v{vDV}")
    p(f"v_lshlrev_b32 v{vP4}, 3, v{t+1}")
    p(f"v_and_b32 v{t}, 15, v2"); p(f"v_lshrrev_b32 v{t+1}, 4, v2"); p(f"v_bfe_u32 v{t+2}, v2, 1, 3")
    p(f"v_xor_b32 v{t+1}, v{t+1}, v{t+2}"); p(f"v_lshlrev_b32 v{t}, 7, v{t}"); p(f"v_lshl_add_u32 v{t}, v{t+1}, 4, v{t}")
    p(f"v_add_u32 v{vK0}, {K_RING}, v{t}"); p(f"v_xor_b32 v{vK0+1}, 64, v{vK0}")
    p(f"v_and_b32 v{vP8}, 7, v2"); p(f"v_lshlrev_b32 v{vP8}, 3, v{vP8}")
    p(f"s_lshl_b32 s{sT+1}, s{sI}, 2"); p(f"s_add_u32 s{sT+1}, s{sT+1}, s{sW}")
    p(f"s_mul_i32 s{sT+2}, s{sT+1}, 81920"); srd(p, 20, kWS, 81920, f"s{sT+2}")
    p(f"s_mul_i32 s{sT+2}, s{sT+1}, {240*4096}"); p(f"s_add_u32 s{sT+2}, s{sT+2}, {WS_OF}"); srd(p, 24, kWS, 240*4096, f"s{sT+2}")
    p(f"s_lshl_b32 s{sT+4}, s{sI}, {OPT['lnsh']+2}"); p(f"s_add_u32 s{sT+4}, s{sT+4}, {FL_LN}")
    p(f"s_lshl_b32 s{sT+2}, s{sW}, {OPT['lnsh']}"); p(f"v_add_u32 v{vX+2}, s{sT+2}, v{vP4}"); p(f"v_cmp_gt_u32 vcc, 4, v{vLANE}"); p("s_nop 1"); p(f"v_cndmask_b32 v{vX+2}, 0, v{vX+2}, vcc")
    p(f"s_lshl_b32 s{sT+2}, s{sW}, 10")
    p(f"s_add_u32 s{sKb}, s{sT+2}, {K_RING}"); p(f"s_add_u32 s{sVb}, s{sT+2}, {V_RING}")
    p(f"s_mul_i32 s{sT+2}, s{sH}, 786432")
    srd(p, 4, kK, 786432, f"s{sT+2}"); srd(p, 8, kV, 786432, f"s{sT+2}")
    def emit(q, l):
        for sc, m in l:
            q.add(sc)
            if m.meta.get('dma'): q("s_nop 0")
            q.add(m)
        return len(l)
    def w1(q): return emit(q, sum([touch(it) for it in range(2, OPT['td'])], []) + a_wloads(1))
    p(f"s_bitcmp0_b32 s{sH}, 0"); p("s_cbranch_scc1 S_e0")
    c0 = p.items; p = Prog(); w1(p); odd0 = p.items; p = Prog()
    p("S_e0:")
    stamp(p, 2)
    poll(p, "A_pl", vX+2, sT+4, slp=OPT["lslp"], role=True)
    stamp(p, 3)
    p(f"s_xor_b32 s{sROLE}, s{sROLE}, s2"); p(f"s_xor_b32 s{sPRED}, s{sPRED}, s{sROLE}"); p(f"s_bitcmp1_b32 s{sPRED}, 0"); p("s_cbranch_scc1 S_redo")
    p("S_rok:")
    redo = Prog(); redo("S_redo:"); role_setup(redo); emit(redo, a_wloads(0, 2) + a_wloads(1, 2)); redo("s_waitcnt vmcnt(0)"); redo("s_branch S_rok")
    emit(p, a_xloads(0) + a_xloads(1))
    p("s_barrier")
    LA = 4
    for f in range(LA): p.add(a_read(0, f >> 1, f & 1, f, f))
    n0 = 8
    p(f"s_bitcmp1_b32 s{sH}, 0"); p("s_cbranch_scc1 S_o1")
    c1 = p.items; p = Prog(); n1 = w1(p); p(f"s_waitcnt vmcnt({n0+n1})"); p("s_branch S_c2"); ev1 = p.items
    p = Prog(); p("S_o1:"); p(f"s_waitcnt vmcnt({n0})"); od1 = p.items
    p = Prog(); p("S_c2:")
    p.wait(lgkm=('af', 1))
    stamp(p, 4)
    p(f"s_bitcmp1_b32 s{sROLE}, 0"); p("s_cbranch_scc1 A_light")
    c2 = p.items
    hvy = phase_a(4) + [Ins("s_branch A_done")]
    lgt = [Ins("A_light:")] + phase_a(2)
    p = Prog(); p("A_done:")
    c_setup2(p)
    p(f"s_mov_b32 s{sPass}, 0")
    p(f"s_mov_b32 s{sT+4}, {f32(QSCALE)}"); p(f"s_mov_b32 s{sT+5}, s{sT+4}")
    for ks in range(6):
        for qt in range(4):
            d = QF + (ks*4+qt)*4
            for e in range(2):
                s = QACC + ((2*ks+e)*4+qt)*4
                p(f"v_pk_mul_f32 {vr(s,2)}, {vr(s,2)}, s[{sT+4}:{sT+5}]")
                p(f"v_pk_mul_f32 {vr(s+2,2)}, {vr(s+2,2)}, s[{sT+4}:{sT+5}]")
                p(f"v_cvt_pk_bf16_f32 v{d+2*e}, v{s}, v{s+1}"); p(f"v_cvt_pk_bf16_f32 v{d+2*e+1}, v{s+2}, v{s+3}")
    for qt in range(4): p(f"v_mov_b32 v{MXI+qt}, 0xff800000")
    pa = p.items

    a = Prog()
    L2 = OPT.get('lst') == 2
    a("K_attn:")
    a(f"s_mov_b32 s{sKo}, {4*SLOT}"); a(f"s_mov_b32 s{sVo}, 0")
    a.wait(vm=[('K', 0), ('K', 1)]); a("s_barrier")
    stamp(a, 6)
    if L2: stamp(a, 1, True)
    for f in range(6): a.add(kfrag_read(f, 0))
    G = Gaps(qk_mfmas(-1, czero=True))
    a.wait(lgkm=('kf', 2)); G.sc(1, Wait(lgkm=('kf', 5)))
    for f in range(6, 12): G.mem(2*(f-6)+2, kfrag_read(f, 0))
    G.sc(23, Wait(lgkm=('kf', 11)))
    for k, (mi, d) in enumerate(u_dma(2, sVo)):
        d.meta['slot'] = [d.meta['slot'], ('A', 2)]; G.sc(16+8*k, mi); G.mem(17+8*k, d)
    G.sc(30, Ins(f"s_mov_b32 s{sVo}, {2*SLOT}"))
    a.add(G.items())
    a("s_barrier")
    for g, m in sorted(PLAN['mem'].items()):
        kind, mp, f, rd, early = m
        if g > PLAN['bar'][1] and early:
            if kind == 'k': a.add(kfrag_read(f, 1))
            elif kind == 'dma':
                mi, d = k_dma(4, sKo)[f] if f < 3 else u_dma(3, sVo)[f-3]
                a.add(mi); a("s_nop 0"); a.add(d)
                if f == 2: a(f"s_add_u32 s{sKo}, s{sKo}, {SLOT}")
    for qt in range(4):
        s0 = SR + qt*4; s1 = SR + 16 + qt*4; m = vX + qt
        a(f"v_max3_f32 v{m}, v{s0}, v{s0+1}, v{MXI+qt}")
        a(f"v_max3_f32 v{m}, v{s0+2}, v{s0+3}, v{m}")
        a(f"v_max3_f32 v{m}, v{s1}, v{s1+1}, v{m}")
        a(f"v_max3_f32 v{m}, v{s1+2}, v{s1+3}, v{m}")
    xlane4(a, "v_max_f32", [vX+q for q in range(4)], vX+4)
    for qt in range(4):
        for r in range(4): a(f"v_sub_f32 v{MR+4*qt+r}, 0, v{vX+qt}")
        a(f"v_mov_b32 v{LR+qt}, 0")
        for kt in range(2):
            for r in range(0, 4, 2):
                s = SR + (kt*4+qt)*4 + r
                a(f"v_pk_add_f32 {vr(s,2)}, {vr(s,2)}, {vr(MR+4*qt,2)}")
    for (c, t_, kt, qt), g in sorted(zip(softmax_items(0), PLAN['vpos'][1]), key=lambda x: x[1]):
        if g < 112: a(t_)
    a.wait(lgkm=[('kf', 12+f) for f in range(OPT['kg'])])
    a("s_nop 1")
    if L2: stamp(a, 2, True)
    for i in range(4):
        G = attn_step(i, 0, pv=(i > 0), czero=(i in (1, 2)))
        if i == 2:
            G.S[G.barg-1][-1].vm.append(('H', 0))
            l = [[[], signal(sFH), []]]; fill(G, l, G.barg+2, G.n-1, 1); assert not l
        a.add(G.items())
        if L2: stamp(a, 3+i, True)
    body = []
    for i in range(4, 8):
        G = attn_step(i, 4)
        if i == 7:
            G.sc(free_sc(G, 30), Ins(f"s_sub_u32 s{sCnt}, s{sCnt}, 1"))
            G.sc(G.n-1, Ins(f"s_cmp_gt_i32 s{sCnt}, 0"))
        body += G.items()
    body.append(Ins("s_cbranch_scc1 K_loop"))
    a(f"s_mov_b32 s{sCnt}, 13")
    a(".p2align 6"); a("K_loop:")
    mid = [Ins(f"s_cmp_lt_i32 s{sCnt}, 0"), Ins("s_cbranch_scc1 K_lx")] + hpoll_loads("0", ('hp', 13)) + \
          [Ins(f"buffer_load_dword v0, v{vCT}, s[96:99], 0 offen"), Ins("s_branch K_loop"), Ins("K_lx:")]
    a.add(Loop("K_loop", 14, body, mid=(12, mid)))
    if L2: stamp(a, 7, True)
    def wl(ns, extra_slots):
        out = []
        for n in ns:
            l, po = c_wloads(n)
            for sc, m in l:
                m.meta['slot'] = [m.meta['slot']] + extra_slots
                out.append([list(sc), m, []])
            out[-1][2].extend(po)
        return out
    def bl(ns):
        out = []
        for n in ns:
            l, po = c_bloads(n)
            for sc, m in l: out.append([list(sc), m, []])
            out[-1][2].extend(po)
        return out
    w012 = wl(range(3), [('A', 0)]); w34 = wl([3], [('U', 61 % 4)]) + wl([4], [('K', 0), ('K', 1), ('K', 2)]); w5 = wl([5], [('K', 2), ('K', 3)])
    b0 = bl([0]); b12 = bl(range(1, OPT['nb']))
    a.wait(vm=('hp', 13)); hpoll(a, "C_ph"); a.add(c_fcursors())
    if OPT['wt']:
        a(f"v_lshlrev_b32 v{vCT}, 7, v{vLANE}")
        a(f"s_mul_i32 s{sT}, s{cC}, 245760"); a(f"s_mul_i32 s{sT+1}, s{sI}, 30720"); a(f"s_add_u32 s{sT}, s{sT}, s{sT+1}")
        a(f"s_mul_i32 s{sT+1}, s{cW1}, 3"); a(f"s_add_u32 s{sT}, s{sT}, s{sT+1}"); a(f"s_add_u32 s{sT+1}, s{sT}, 7680")
    Gs = {}
    for i in range(60, 65):
        G = attn_step(i, 0, qk=(i < 63)); BARG = G.barg; Gs[i] = G
        if i == OPT['wt']:
            l = [[[], Ins(f"buffer_load_dword v{vX+k}, v{vCT}, s[12:15], s{sT+k} offen{SC1}"), []] for k in range(2)]
            fill(G, l, 30, G.n-1, 16); assert not l
        if i == 61: fill(G, w012, max(g for g in range(G.n) if has_dma(G, g))+3, G.n-1, OPT['esp']); w34 = w012 + w34
        if i == 62:
            fill(G, w34, 2, BARG-2, 4); w5 = w34 + w5
            fill(G, w5, BARG+2, G.n-1, 3)
        if i == 63:
            for k in range(16): G.mem(BARG+2+k+(k//2)//2, vfrag_read(k//2, k % 2, 64))
    def loc(g): return (Gs[63], 48+g) if g < 64 else (Gs[64], g-16)
    cur = [0]
    def put(text, cost=1, ming=0, gapafter=0, kind='v', **meta):
        g = max(cur[0], ming)
        while True:
            G, lg = loc(g)
            if kind == 's': break
            if G.cap[lg] >= cost and not (kind == 'm' and (G.N[lg] or G.V[lg])): break
            g += 1
        x = Ins(text, **meta)
        if kind == 'v': G.valu(lg, x, cost)
        elif kind == 'm': G.mem(lg, x)
        else: G.V[lg].append(x)
        cur[0] = g + gapafter
        return g
    L_ = [LR+q for q in range(4)]
    for sw in ("v_permlane32_swap_b32", "v_permlane16_swap_b32"):
        for k, r in enumerate(L_): put(f"v_mov_b32 v{vX+k}, v{r}", gapafter=(1 if k == 3 else 0))
        for k, r in enumerate(L_): put(f"{sw} v{r}, v{vX+k}", 2)
        for k, r in enumerate(L_): put(f"v_add_f32 v{r}, v{r}, v{vX+k}")
    put(f"s_mov_b32 s{sT}, 0x5d800000", kind='s')
    put(f"v_cmp_nle_f32 s[{sT+2}:{sT+3}], v{LR}, s{sT}")
    for qt in range(1, 4):
        put(f"v_cmp_nle_f32 vcc, v{LR+qt}, s{sT}", gapafter=1); put(f"s_or_b64 s[{sT+2}:{sT+3}], s[{sT+2}:{sT+3}], vcc", kind='s')
    put(f"s_or_b32 s{sT+2}, s{sT+2}, s{sT+3}", kind='s', gapafter=1)
    put(f"v_mov_b32 v{vX}, s{sT+2}"); put(f"v_mov_b32 v{vX+1}, s{sVOTE}", gapafter=1)
    g = put(f"ds_write_b32 v{vX+1}, v{vX}", kind='m', gapafter=1)
    assert g < Gs[63].barg - 48 - 3, g
    for qt in range(4): put(f"v_rcp_f32 v{LR+qt}, v{LR+qt}", 2)
    put(f"v_mov_b32 v{vK0}, {VOTE}", gapafter=1)
    for j, qt in EARLY[:OPT['ncv']]:
        for ee in range(2):
            for r in range(4): put(f"v_accvgpr_read_b32 v{vX+4*ee+r}, a{((2*j+ee)*4+qt)*4+r}", ming=16*j+8*ee+2*qt+1+6)
        sc, m = o_store(j, qt, vX)
        for x in sc: put(x.text, kind='s', gapafter=1)
        for r in range(8): put(f"v_mul_f32 v{vX+r}, v{vX+r}, v{LR+qt}")
        for h in range(4): put(f"v_cvt_pk_bf16_f32 v{vX+h}, v{vX+2*h}, v{vX+2*h+1}", gapafter=(1 if h == 3 else 0))
        put(m.text, kind='m', gapafter=2, tag=('O', 0))
    sys.stderr.write(f"final block: last gap {cur[0]}\n")
    l = w5 + b0 + b12
    fill(Gs[63], l, 30, 111, 3); fill(Gs[64], l, 49, 79, 3); assert not l, len(l)
    Gs[64].N[50].append(Ins(f"ds_read_b128 {vr(MXI)}, v{vK0}"))
    for i in range(60, 65):
        a.add(Gs[i].items())
        if L2: stamp(a, 8+i-60, True)
    stamp(a, 7)
    a(f"v_or_b32 v{MXI}, v{MXI}, v{MXI+1}"); a(f"v_or3_b32 v{MXI}, v{MXI}, v{MXI+2}, v{MXI+3}"); a("s_nop 0")
    a(f"v_readfirstlane_b32 s{sT}, v{MXI}")
    a(f"s_cmp_eq_u32 s{sT}, 0"); a("s_cbranch_scc1 K_epi")
    a(f"s_cmp_eq_u32 s{sPass}, 0"); a("s_cbranch_scc1 K_fb")

    e = Prog()
    e("K_epi:")
    if OPT.get('lst') == 2: stamp(e, 13, True)
    phase_c(e)
    if OPT['stamp']: e("s_waitcnt vmcnt(0)")
    stamp(e, 16); stamp_out(e)
    e("K_end:")
    e("s_endpgm")

    fb = Prog()
    fb("K_fb:")
    fb(f"s_mov_b32 s{sPass}, 1");  fb(f"s_mov_b32 s{sKo}, 0"); fb(f"s_mov_b32 s{sCnt}, 64")
    fb(f"v_xor_b32 v{vK0}, 64, v{vK0+1}")
    for qt in range(4): fb(f"v_mov_b32 v{MXI+qt}, 0xff800000")
    fb("s_waitcnt vmcnt(0)"); fb("s_barrier")
    fb("K_fbl:")
    fb.loop_begin("K_fbl", 2)
    for mi, d in k_dma(1000, sKo, 4):
        fb.add(mi); fb("s_nop 0"); fb.add(d)
    fb(f"s_add_u32 s{sKo}, s{sKo}, {SLOT}")
    fb("s_waitcnt vmcnt(0)"); fb("s_barrier")
    for f in range(12): fb.add(kfrag_read(f, 1000, 4))
    fb("s_waitcnt lgkmcnt(0)"); fb.add(qk_mfmas(999, czero=True))
    fb("s_nop 7")
    for qt in range(4):
        for kt in range(2):
            s0 = SR + (kt*4+qt)*4
            fb(f"v_max3_f32 v{MXI+qt}, v{s0}, v{s0+1}, v{MXI+qt}")
            fb(f"v_max3_f32 v{MXI+qt}, v{s0+2}, v{s0+3}, v{MXI+qt}")
    fb("s_barrier")
    fb(f"s_sub_u32 s{sCnt}, s{sCnt}, 1"); fb(f"s_cmp_lg_u32 s{sCnt}, 0"); fb("s_cbranch_scc1 K_fbl")
    fb.loop_end()
    for tl in range(4):
        fb(f"s_mov_b32 s{sKo}, {tl*SLOT}")
        for mi, d in k_dma(tl, sKo): fb.add(mi); fb("s_nop 0"); fb.add(d)
    fb(f"s_mov_b32 s{sVo}, 0")
    for mi, d in u_dma(1, sVo): fb.add(mi); fb("s_nop 0"); fb.add(d)
    fb("s_waitcnt vmcnt(0)")
    fb("s_branch K_attn")
    fb.add(redo.items)
    fb("K_codeend:")

    out = Prog(); out.items += head + ln + c0 + odd0 + c1 + ev1 + od1 + c2 + hvy + lgt + pa + a.items + e.items + fb.items
    chks = []
    for mid in (hvy, lgt):
        res = Prog(); res.items += skip_retry(head + ln + c0 + c1 + ev1 + c2 + mid + pa + a.items + e.items); res.resolve()
        res = Prog(); res.items += head + c0 + odd0 + c1 + od1 + c2 + mid; res.resolve()
    for mid in (hvy, lgt):
        c = Prog(); c.items += skip_retry(head + ln + c0 + c1 + ev1 + c2 + mid + pa + a.items + fb.items[:-len(redo.items)-1] + a.items + e.items); chks.append(c)
        c = Prog(); c.items += head + c0 + odd0 + c1 + od1 + c2 + mid[:900]; chks.append(c)
    return out, chks

def skip_retry(items):
    out = []; skipping = None
    for k, x in enumerate(items):
        if isinstance(x, Ins):
            if x.text.startswith("s_branch") and x.text.endswith("_chk"):
                skipping = x.text.split()[1] + ":"
            elif skipping and x.text == skipping: skipping = None
            elif skipping: continue
        out.append(x)
    return out

HDR = open('recurrent_scan__mha_block_cached__swiglu_ffn__prompt.s.ref').read().split('; Override launch')[0]
def main():
    out = [HDR.rstrip(), "; @launch grid=(256,1,1) block=(256,1,1) lds=163840", '.amdgcn_target "amdgcn-amd-amdhsa--gfx950"', ".text"]
    prog, chks = kernel()
    ok = all([c.check("k") for c in chks])
    out += [f".globl {NAME}", ".p2align 8", f".type {NAME},@function", f"{NAME}:"] + prog.emit()
    out += ['.section .rodata,"a"', ".p2align 6", f".amdhsa_kernel {NAME}", "  .amdhsa_next_free_vgpr 512", "  .amdhsa_next_free_sgpr 102",
            "  .amdhsa_accum_offset 256", "  .amdhsa_group_segment_fixed_size 0", "  .amdhsa_kernarg_size 96",
            "  .amdhsa_user_sgpr_count 2", "  .amdhsa_user_sgpr_kernarg_segment_ptr 1", "  .amdhsa_system_sgpr_workgroup_id_x 1", ".end_amdhsa_kernel"]
    print("\n".join(out))
    if not ok: sys.stderr.write("CHECK FAILED\n"); sys.exit(1)
main()
```
